```python
import torch

def _softmax(x, axis=-1):
    return torch.softmax(x, dim=axis)
def _gelu(x):
    return torch.nn.functional.gelu(x, approximate="tanh")
def _silu(x):
    return torch.nn.functional.silu(x)
def _sigmoid(x):
    return torch.sigmoid(x)
def _layernorm(x, axis=-1, eps=1e-5):
    m = x.mean(dim=axis, keepdim=True)
    v = x.var(dim=axis, keepdim=True, unbiased=False)
    return (x - m) / torch.sqrt(v + eps)
def _scatter_add(tgt, idx, src, axis=0):
    return tgt.clone().index_add_(axis, idx, src)
def _segment_sum(src, seg, n):
    out = torch.zeros((n,) + src.shape[1:], dtype=src.dtype)
    return out.index_add_(0, seg, src)
def _pad(x, pw):
    flat = tuple(v for pair in reversed(pw) for v in pair)
    return torch.nn.functional.pad(x, flat)

kernel_name = 'concat_heads__gqa_block_cached__gqa_block_cached__near_ridge'

def setup_inputs():

    _w = (lambda a: (lambda t: t.to(torch.bfloat16) if t.is_floating_point() else t)(torch.as_tensor(a)))
    def _A_setup():
        B, Sq, D = 16, 64, 448
        Hq, Hkv, Sk, Dh = 16, 8, 1024, 256
        assert Hq % Hkv == 0, (Hq, Hkv)
        return {
            "x": _w((lambda *s: torch.randn(*s, dtype=torch.bfloat16) * 0.8)(B, Sq, D)),
            "k_cache": _w((lambda *s: torch.randn(*s, dtype=torch.bfloat16) * 0.8)(B, Hkv, Sk, Dh)),
            "v_cache": _w((lambda *s: torch.randn(*s, dtype=torch.bfloat16) * 0.05)(B, Hkv, Sk, Dh)),
            "wq": _w((lambda *s: torch.randn(*s, dtype=torch.bfloat16) * 0.8)(D, Hq * Dh) * (D ** -0.5)),
            "wo": _w((lambda *s: torch.randn(*s, dtype=torch.bfloat16) * 0.05)(Hq * Dh, D) * ((Hq * Dh) ** -0.5)),
        }
    _A_in = _A_setup()

    def _B_setup():
        B, Sq, D = 16, 64, 448
        Hq, Hkv, Sk, Dh = 16, 8, 1024, 256
        assert Hq % Hkv == 0, (Hq, Hkv)
        return {
            "x": _w((lambda *s: torch.randn(*s, dtype=torch.bfloat16) * 0.8)(B, Sq, D)),
            "k_cache": _w((lambda *s: torch.randn(*s, dtype=torch.bfloat16) * 0.8)(B, Hkv, Sk, Dh)),
            "v_cache": _w((lambda *s: torch.randn(*s, dtype=torch.bfloat16) * 0.05)(B, Hkv, Sk, Dh)),
            "wq": _w((lambda *s: torch.randn(*s, dtype=torch.bfloat16) * 0.8)(D, Hq * Dh) * (D ** -0.5)),
            "wo": _w((lambda *s: torch.randn(*s, dtype=torch.bfloat16) * 0.05)(Hq * Dh, D) * ((Hq * Dh) ** -0.5)),
        }
    _B_in = _B_setup()

    return {
        "A_x": _A_in["x"],
        "A_k_cache": _A_in["k_cache"],
        "A_v_cache": _A_in["v_cache"],
        "A_wq": _A_in["wq"],
        "A_wo": _A_in["wo"],
        "B_x": _B_in["x"],
        "B_k_cache": _B_in["k_cache"],
        "B_v_cache": _B_in["v_cache"],
        "B_wq": _B_in["wq"],
        "B_wo": _B_in["wo"],
    }

def reference(A_x, A_k_cache, A_v_cache, A_wq, A_wo, B_x, B_k_cache, B_v_cache, B_wq, B_wo):
    def _A_ref(x, k_cache, v_cache, wq, wo):
        B, Sq, D = x.shape
        Hq, Dh = 16, 256
        Hkv = k_cache.shape[1]
        rep = Hq // Hkv
        q = (lambda x, *d: x.permute(*d))((x @ wq).reshape(B, Sq, Hq, Dh), 0, 2, 1, 3)
        k = (lambda x, n, axis: torch.repeat_interleave(x, n, dim=axis))(k_cache, rep, axis=1)
        v = (lambda x, n, axis: torch.repeat_interleave(x, n, dim=axis))(v_cache, rep, axis=1)
        scores = torch.einsum("bhqd,bhkd->bhqk", q, k) * (Dh ** -0.5)
        p = _softmax(scores, axis=-1)
        o = torch.einsum("bhqk,bhkd->bhqd", p, v)
        return (lambda x, *d: x.permute(*d))(o, 0, 2, 1, 3).reshape(B, Sq, Hq * Dh) @ wo

    def _B_ref(x, k_cache, v_cache, wq, wo):
        B, Sq, D = x.shape
        Hq, Dh = 16, 256
        Hkv = k_cache.shape[1]
        rep = Hq // Hkv
        q = (lambda x, *d: x.permute(*d))((x @ wq).reshape(B, Sq, Hq, Dh), 0, 2, 1, 3)
        k = (lambda x, n, axis: torch.repeat_interleave(x, n, dim=axis))(k_cache, rep, axis=1)
        v = (lambda x, n, axis: torch.repeat_interleave(x, n, dim=axis))(v_cache, rep, axis=1)
        scores = torch.einsum("bhqd,bhkd->bhqk", q, k) * (Dh ** -0.5)
        p = _softmax(scores, axis=-1)
        o = torch.einsum("bhqk,bhkd->bhqd", p, v)
        return (lambda x, *d: x.permute(*d))(o, 0, 2, 1, 3).reshape(B, Sq, Hq * Dh) @ wo

    a = _A_ref(A_x, A_k_cache, A_v_cache, A_wq, A_wo)
    b = _B_ref(B_x, B_k_cache, B_v_cache, B_wq, B_wo)
    return torch.concatenate([a, b], axis=-1)
```

```python
import sys, math

NAME = "concat_heads__gqa_block_cached__gqa_block_cached__near_ridge"
KMAIN = NAME + "_kernel"
KRED = "reduce_partials_kernel"

OPT = dict(nt=False)
for a in sys.argv[2:]:
    k, v = a.split("=")
    OPT[k] = int(v)


class Asm:
    def __init__(self):
        self.lines = []
        self.lds = []
        self.nbar = 0

    def e(self, s):
        self.lines.append("    " + s)

    def label(self, s):
        self.lines.append(s + ":")

    def c(self, s):
        self.lines.append("    ; " + s)

    def lds_issue(self, tag, s):
        self.e(s)
        self.lds.append(tag)

    def lds_wait(self, tag):
        idx = max(i for i, t in enumerate(self.lds) if t == tag)
        n = len(self.lds) - 1 - idx
        assert n <= 15
        self.e(f"s_waitcnt lgkmcnt({n})")
        self.lds = self.lds[idx + 1:]

    def lds_wait_all(self):
        self.e("s_waitcnt lgkmcnt(0)")
        self.lds = []

    def barrier(self):
        self.e("s_barrier")
        self.nbar += 1


def vr(a, n):
    return f"v[{a}:{a+n-1}]"


def sr(a, n):
    return f"s[{a}:{a+n-1}]"


SLOT = 32768
NT = " nt" if OPT["nt"] else ""

S_BLK, S_HKV, S_B, S_WID = 34, 35, 36, 37
S_T0, S_T1, S_T2, S_T3 = 60, 61, 62, 63
SRD0, SRD1, SRD2 = 40, 44, 48
S_SOFF, S_M0, S_CNT, S_DELTA, S_SLOTI, S_C = 52, 53, 54, 55, 56, 57
S_X, S_K, S_V, S_WQ, S_WO = 64, 66, 68, 70, 72
S_OUT, S_DBG, S_WS = 28, 30, 32

V_O = 0
V_Q = 128
V_S = 192
V_P = 208
V_F = 216
V_AK = 232
V_AV = 240
V_MC, V_L = 244, 245
V_T = 246
V_LANE = 252
V_X1, V_X2, V_X3 = 253, 254, 255


def gen_main():
    A = Asm()
    e = A.e
    A.label(KMAIN)
    e("s_cmp_ge_u32 s2, 256")
    e("s_cbranch_scc1 L_exit")
    e("s_load_dwordx16 s[8:23], s[0:1], 0")
    e("s_load_dwordx8 s[24:31], s[0:1], 64")
    e("s_load_dwordx2 s[32:33], s[0:1], 96")
    e(f"s_and_b32 s{S_T0}, s2, 7")
    e(f"s_lshl_b32 s{S_T0}, s{S_T0}, 1")
    e(f"s_lshr_b32 s{S_T1}, s2, 3")
    e(f"s_and_b32 s{S_T1}, s{S_T1}, 1")
    e(f"s_add_u32 s{S_T0}, s{S_T0}, s{S_T1}")
    e(f"s_lshr_b32 s{S_B}, s2, 4")
    e(f"s_lshr_b32 s{S_BLK}, s{S_T0}, 3")
    e(f"s_and_b32 s{S_HKV}, s{S_T0}, 7")
    e("v_lshrrev_b32 v1, 6, v0")
    e(f"v_and_b32 v{V_LANE}, 63, v0")
    e("s_nop 0")
    e(f"v_readfirstlane_b32 s{S_WID}, v1")
    e("s_waitcnt lgkmcnt(0)")
    e(f"s_cmp_eq_u32 s{S_BLK}, 0")
    e(f"s_cselect_b64 {sr(S_X,2)}, s[8:9], s[18:19]")
    e(f"s_cselect_b64 {sr(S_K,2)}, s[10:11], s[20:21]")
    e(f"s_cselect_b64 {sr(S_V,2)}, s[12:13], s[22:23]")
    e(f"s_cselect_b64 {sr(S_WQ,2)}, s[14:15], s[24:25]")
    e(f"s_cselect_b64 {sr(S_WO,2)}, s[16:17], s[26:27]")
    e(f"s_cmp_ge_u32 s{S_WID}, 4")
    e("s_cbranch_scc1 L_producer")

    L = V_LANE
    e(f"s_lshl_b32 s{S_T0}, s{S_HKV}, 10")
    e(f"s_add_u32 s{SRD0}, s{S_WQ}, s{S_T0}")
    e(f"s_addc_u32 s{SRD0+1}, s{S_WQ+1}, 0")
    e(f"s_sub_u32 s{SRD0+2}, {448*8192}, s{S_T0}")
    e(f"s_mov_b32 s{SRD0+3}, 0x00020000")
    e(f"s_mul_i32 s{S_T0}, s{S_B}, 57344")
    e(f"s_add_u32 s{SRD1}, s{S_X}, s{S_T0}")
    e(f"s_addc_u32 s{SRD1+1}, s{S_X+1}, 0")
    e(f"s_mov_b32 s{SRD1+2}, 57344")
    e(f"s_mov_b32 s{SRD1+3}, 0x00020000")
    e(f"s_lshl_b32 s{S_T0}, s{S_BLK}, 4")
    e(f"s_add_u32 s{S_T0}, s{S_T0}, s{S_B}")
    e(f"s_lshl_b32 s{S_T0}, s{S_T0}, 3")
    e(f"s_add_u32 s{S_T0}, s{S_T0}, s{S_HKV}")
    e(f"s_mul_i32 s{S_T0}, s{S_T0}, 114688")
    e(f"s_add_u32 s{SRD2}, s{S_WS}, s{S_T0}")
    e(f"s_addc_u32 s{SRD2+1}, s{S_WS+1}, 0")
    e(f"s_mov_b32 s{SRD2+2}, 114688")
    e(f"s_mov_b32 s{SRD2+3}, 0x00020000")
    S_HEAD, S_QB = 58, 59
    e(f"s_lshr_b32 s{S_HEAD}, s{S_WID}, 1")
    e(f"s_and_b32 s{S_QB}, s{S_WID}, 1")

    Vh, Vu, Vr, Vcc = V_T, V_T + 1, V_T + 2, V_T + 3
    Vt0, Vt1 = V_T + 4, V_T + 5
    e(f"v_lshrrev_b32 v{Vh}, 5, v{L}")
    e(f"v_bfe_u32 v{Vu}, v{L}, 4, 1")
    e(f"v_bfe_u32 v{Vr}, v{L}, 2, 2")
    e(f"v_and_b32 v{Vcc}, 3, v{L}")

    V_XF = V_S
    V_OFFW = V_P
    V_OFFX = V_P + 4
    V_AW = V_AK
    WBASE = 3 * SLOT
    e(f"s_lshl_b32 s{S_T0}, s{S_WID}, 15")
    for jj in range(4):
        e(f"v_xor_b32 v{Vt0}, {jj<<2}, v{L}")
        e(f"v_lshlrev_b32 v{Vt0}, 4, v{Vt0}")
        e(f"v_add_u32 v{Vt0}, {jj*8192 - jj*1024}, v{Vt0}")
        e(f"v_add_u32 v{V_OFFW+jj}, s{S_T0}, v{Vt0}")
    e(f"v_and_b32 v{Vt0}, 31, v{L}")
    e(f"s_lshl_b32 s{S_T0}, s{S_QB}, 5")
    e(f"v_add_u32 v{Vt0}, s{S_T0}, v{Vt0}")
    e(f"v_mul_u32_u24 v{Vt0}, 896, v{Vt0}")
    e(f"v_lshlrev_b32 v{Vt1}, 4, v{Vh}")
    e(f"v_add_u32 v{V_OFFX}, v{Vt0}, v{Vt1}")
    e(f"v_lshlrev_b32 v{Vt0}, 3, v{Vh}")
    e(f"v_add_u32 v{Vt0}, v{Vt0}, v{Vr}")
    e(f"v_lshlrev_b32 v{Vt0}, 10, v{Vt0}")
    e(f"v_lshlrev_b32 v{Vt1}, 5, v{Vu}")
    e(f"v_add_u32 v{Vt0}, v{Vt0}, v{Vt1}")
    e(f"v_and_b32 v{Vt1}, 1, v{Vcc}")
    e(f"v_lshlrev_b32 v{Vt1}, 4, v{Vt1}")
    e(f"v_add_u32 v{Vt0}, v{Vt0}, v{Vt1}")
    e(f"v_lshrrev_b32 v{Vt1}, 1, v{Vcc}")
    e(f"v_lshlrev_b32 v{Vt1}, 3, v{Vt1}")
    e(f"v_add_u32 v{Vt0}, v{Vt0}, v{Vt1}")
    e(f"s_lshl_b32 s{S_T0}, s{S_HEAD}, 9")
    e(f"s_add_u32 s{S_T0}, s{S_T0}, {WBASE}")
    e(f"v_add_u32 v{Vt0}, s{S_T0}, v{Vt0}")
    for t2 in range(4):
        e(f"v_xor_b32 v{Vt1}, {t2}, v{Vr}")
        e(f"v_lshlrev_b32 v{Vt1}, 6, v{Vt1}")
        e(f"v_add_u32 v{V_AW+t2}, v{Vt0}, v{Vt1}")

    def w_issue(j):
        e(f"s_mov_b32 s{S_SOFF}, {j*131072}")
        e(f"s_add_u32 m0, s{S_M0}, {(j%4)*16384}")
        e("s_nop 0")
        for jj in range(4):
            e(f"buffer_load_dwordx4 v{V_OFFW+jj}, {sr(SRD0,4)}, s{S_SOFF} offen offset:{jj*1024} lds")
        e(f"buffer_load_dwordx4 {vr(V_XF+4*(j%4),4)}, v{V_OFFX}, {sr(SRD1,4)}, 0 offen offset:{j*32}")

    e(f"s_lshl_b32 s{S_M0}, s{S_WID}, 12")
    e(f"s_add_u32 s{S_M0}, s{S_M0}, {WBASE}")
    for j in range(3):
        w_issue(j)
    NJ = 28
    for j in range(NJ):
        A.c(f"---- Q-proj step {j}")
        rem = min(2, NJ - 1 - j)
        e(f"s_waitcnt vmcnt({5*rem})")
        A.barrier()
        if j + 3 < NJ:
            w_issue(j + 3)

        def rd(T):
            f = V_F + 4 * (T % 4)
            base = (j % 4) * 16384 + (T >> 2) * 256
            A.lds_issue(("w", T), f"ds_read_b64_tr_b16 {vr(f,2)}, v{V_AW+(T&3)} offset:{base}")
            A.lds_issue(("w", T), f"ds_read_b64_tr_b16 {vr(f+2,2)}, v{V_AW+(T&3)} offset:{base+4096}")
        for T in range(4):
            rd(T)
        for T in range(8):
            A.lds_wait(("w", T))
            cacc = "0" if j == 0 else vr(V_O + 16 * T, 16)
            e(f"v_mfma_f32_32x32x16_bf16 {vr(V_O+16*T,16)}, {vr(V_F+4*(T%4),4)}, {vr(V_XF+4*(j%4),4)}, {cacc}")
            if T + 4 < 8:
                rd(T + 4)
    A.c("---- main loop address setup")
    e(f"v_and_b32 v{Vt0}, 31, v{L}")
    e(f"v_and_b32 v{Vt1}, 15, v{L}")
    e(f"v_lshlrev_b32 v{Vt0}, 9, v{Vt0}")
    for k7 in range(8):
        e(f"v_add_u32 v{V_X1}, {2*k7}, v{Vh}")
        e(f"v_xor_b32 v{V_X1}, v{V_X1}, v{Vt1}")
        e(f"v_lshlrev_b32 v{V_X1}, 4, v{V_X1}")
        e(f"v_add_u32 v{V_AK+k7}, v{Vt0}, v{V_X1}")
    e(f"v_lshlrev_b32 v{Vt0}, 2, v{Vh}")
    e(f"v_add_u32 v{Vt0}, v{Vt0}, v{Vr}")
    e(f"v_lshlrev_b32 v{Vt0}, 9, v{Vt0}")
    e(f"v_lshlrev_b32 v{Vt1}, 5, v{Vu}")
    e(f"v_add_u32 v{Vt0}, v{Vt0}, v{Vt1}")
    e(f"v_lshlrev_b32 v{Vt1}, 3, v{Vcc}")
    e(f"v_add_u32 v{Vt0}, v{Vt0}, v{Vt1}")
    e(f"v_add_u32 v{Vt0}, 16384, v{Vt0}")
    for t2 in range(4):
        e(f"v_xor_b32 v{Vt1}, {t2}, v{Vr}")
        e(f"v_lshlrev_b32 v{Vt1}, 6, v{Vt1}")
        e(f"v_add_u32 v{V_AV+t2}, v{Vt0}, v{Vt1}")
    e("s_nop 7")
    for T in range(8):
        for u in range(2):
            for r in range(4):
                a = V_O + 16 * T + 8 * u + 2 * r
                e(f"v_cvt_pk_bf16_f32 v{V_Q + 4*(2*T+u) + r}, v{a}, v{a+1}")
    for i in range(128):
        e(f"v_mov_b32 v{V_O+i}, 0")
    e(f"v_mov_b32 v{V_MC}, 0xff800000")
    e(f"v_mov_b32 v{V_L}, 0")
    cval = math.log2(math.e) / 16.0
    import struct
    cbits = struct.unpack("<I", struct.pack("<f", cval))[0]
    e(f"s_mov_b32 s{S_C}, 0x{cbits:08x}")
    e(f"s_mov_b32 s{S_CNT}, 0")
    e(f"s_mov_b32 s{S_SLOTI}, 0")
    e(f"s_mov_b32 s74, {SLOT}")
    e(f"s_mov_b32 s75, {(-4*SLOT) & 0xffffffff}")

    A.label("L_loop")
    nb0 = A.nbar
    A.barrier()

    def rdK(ks):
        f = V_F + 4 * (ks % 4)
        A.lds_issue(("k", ks), f"ds_read_b128 {vr(f,4)}, v{V_AK+(ks&7)} offset:{(ks>>3)*256}")

    pv = [(dt, kk) for dt in range(8) for kk in range(2)]

    def rdV(i):
        dt, kk = pv[i]
        f = V_F + 4 * (i % 4)
        base = kk * 8192 + (dt >> 2) * 256
        A.lds_issue(("v", i), f"ds_read_b64_tr_b16 {vr(f,2)}, v{V_AV+(dt&3)} offset:{base}")
        A.lds_issue(("v", i), f"ds_read_b64_tr_b16 {vr(f+2,2)}, v{V_AV+(dt&3)} offset:{base+4096}")

    for ks in range(4):
        rdK(ks)
    for ks in range(16):
        A.lds_wait(("k", ks))
        cacc = "0" if ks == 0 else vr(V_S, 16)
        e(f"v_mfma_f32_32x32x16_bf16 {vr(V_S,16)}, {vr(V_F+4*(ks%4),4)}, {vr(V_Q+4*ks,4)}, {cacc}")
        if ks + 4 < 16:
            rdK(ks + 4)
        else:
            rdV(ks - 12)
    e(f"s_add_u32 s{S_SLOTI}, s{S_SLOTI}, 1")
    e(f"s_cmp_eq_u32 s{S_SLOTI}, 5")
    e(f"s_cselect_b32 s{S_DELTA}, s75, s74")
    e(f"s_cselect_b32 s{S_SLOTI}, 0, s{S_SLOTI}")
    for k7 in range(8):
        e(f"v_add_u32 v{V_AK+k7}, s{S_DELTA}, v{V_AK+k7}")
    e("s_nop 3")
    S = V_S
    t0, t1, t2_, t3, t4, t5 = V_T, V_T + 1, V_T + 2, V_T + 3, V_T + 4, V_T + 5
    e(f"v_max3_f32 v{t0}, v{S}, v{S+1}, v{S+2}")
    e(f"v_max3_f32 v{t1}, v{S+3}, v{S+4}, v{S+5}")
    e(f"v_max3_f32 v{t2_}, v{S+6}, v{S+7}, v{S+8}")
    e(f"v_max3_f32 v{t3}, v{S+9}, v{S+10}, v{S+11}")
    e(f"v_max3_f32 v{t4}, v{S+12}, v{S+13}, v{S+14}")
    e(f"v_max3_f32 v{t0}, v{t0}, v{t1}, v{S+15}")
    e(f"v_max3_f32 v{t2_}, v{t2_}, v{t3}, v{t4}")
    e(f"v_max_f32 v{t0}, v{t0}, v{t2_}")
    e(f"v_mov_b32 v{t1}, v{t0}")
    e("s_nop 1")
    e(f"v_permlane32_swap_b32 v{t0}, v{t1}")
    e("s_nop 1")
    e(f"v_max_f32 v{t0}, v{t0}, v{t1}")
    e(f"v_mul_f32 v{t0}, s{S_C}, v{t0}")
    e(f"v_sub_f32 v{t1}, v{t0}, v{V_MC}")
    e(f"v_cmp_lt_f32 vcc, 0x41000000, v{t1}")
    e("s_nop 1")
    e("s_cbranch_vccnz L_rescale")
    A.label("L_rescale_done")
    for i in range(16):
        e(f"v_fma_f32 v{S+i}, v{S+i}, s{S_C}, -v{V_MC}")
    for i in range(16):
        e(f"v_exp_f32 v{S+i}, v{S+i}")
    e("s_nop 0")
    e(f"v_add_f32 v{t0}, v{S}, v{S+1}")
    e(f"v_add_f32 v{t1}, v{S+2}, v{S+3}")
    e(f"v_add_f32 v{t2_}, v{S+4}, v{S+5}")
    e(f"v_add_f32 v{t3}, v{S+6}, v{S+7}")
    for i in range(8):
        e(f"v_cvt_pk_bf16_f32 v{V_P+i}, v{S+2*i}, v{S+2*i+1}")
    e(f"v_add_f32 v{t0}, v{t0}, v{S+8}")
    e(f"v_add_f32 v{t1}, v{t1}, v{S+9}")
    e(f"v_add_f32 v{t2_}, v{t2_}, v{S+10}")
    e(f"v_add_f32 v{t3}, v{t3}, v{S+11}")
    e(f"v_add_f32 v{t0}, v{t0}, v{S+12}")
    e(f"v_add_f32 v{t1}, v{t1}, v{S+13}")
    e(f"v_add_f32 v{t2_}, v{t2_}, v{S+14}")
    e(f"v_add_f32 v{t3}, v{t3}, v{S+15}")
    for i in range(16):
        dt, kk = pv[i]
        A.lds_wait(("v", i))
        e(f"v_mfma_f32_32x32x16_bf16 {vr(V_O+16*dt,16)}, {vr(V_F+4*(i%4),4)}, {vr(V_P+4*kk,4)}, {vr(V_O+16*dt,16)}")
        if i + 4 < 16:
            rdV(i + 4)
        if i == 0:
            e(f"v_add_f32 v{t0}, v{t0}, v{t1}")
            e(f"v_add_f32 v{t2_}, v{t2_}, v{t3}")
        if i == 1:
            e(f"v_add_f32 v{t0}, v{t0}, v{t2_}")
            e(f"v_add_f32 v{V_L}, v{V_L}, v{t0}")
    assert not A.lds
    for t2 in range(4):
        e(f"v_add_u32 v{V_AV+t2}, s{S_DELTA}, v{V_AV+t2}")
    e(f"s_add_u32 s{S_CNT}, s{S_CNT}, 1")
    e(f"s_cmp_lt_u32 s{S_CNT}, 32")
    e("s_cbranch_scc1 L_loop")
    A.nbar = nb0 + 32

    A.c("---- finalize: normalise O, write bf16 frags to LDS")
    e(f"v_mov_b32 v{t1}, v{V_L}")
    e("s_nop 1")
    e(f"v_permlane32_swap_b32 v{V_L}, v{t1}")
    e("s_nop 1")
    e(f"v_add_f32 v{t0}, v{V_L}, v{t1}")
    e(f"v_rcp_f32 v{t0}, v{t0}")
    e(f"s_lshl_b32 s{S_T0}, s{S_QB}, 14")
    e(f"s_add_u32 s{S_T1}, s{S_T0}, {4*SLOT}")
    e(f"s_cmp_eq_u32 s{S_HEAD}, 0")
    e(f"s_cselect_b32 s{S_T2}, s{S_T1}, s{S_T0}")
    V_AB = V_AK
    V_AOWN = V_AK + 2
    V_AWO = V_AK + 4
    e(f"v_lshlrev_b32 v{t1}, 4, v{L}")
    e(f"v_add_u32 v{V_AB}, s{S_T1}, v{t1}")
    e(f"v_add_u32 v{V_AB+1}, s{S_T0}, v{t1}")
    e(f"v_add_u32 v{V_AOWN}, s{S_T2}, v{t1}")
    e("s_nop 7")
    for fr in range(16):
        dt, u = fr >> 1, fr & 1
        q = V_Q + 4 * fr
        for r in range(4):
            a = V_O + 16 * dt + 8 * u + 2 * r
            e(f"v_mul_f32 v{a}, v{a}, v{t0}")
            e(f"v_mul_f32 v{a+1}, v{a+1}, v{t0}")
            e(f"v_cvt_pk_bf16_f32 v{q+r}, v{a}, v{a+1}")
        e(f"ds_write_b128 v{V_AOWN}, {vr(q,4)} offset:{fr*1024}")
    e(f"v_lshrrev_b32 v{Vh}, 5, v{L}")
    e(f"v_bfe_u32 v{Vu}, v{L}, 4, 1")
    e(f"v_bfe_u32 v{Vr}, v{L}, 2, 2")
    e(f"v_and_b32 v{Vcc}, 3, v{L}")
    e(f"v_lshlrev_b32 v{Vt0}, 2, v{Vh}")
    e(f"v_add_u32 v{Vt0}, v{Vt0}, v{Vr}")
    e(f"v_mul_u32_u24 v{Vt0}, 896, v{Vt0}")
    e(f"v_lshlrev_b32 v{Vt1}, 5, v{Vu}")
    e(f"v_add_u32 v{Vt0}, v{Vt0}, v{Vt1}")
    e(f"v_lshlrev_b32 v{Vt1}, 3, v{Vcc}")
    e(f"v_add_u32 v{Vt0}, v{Vt0}, v{Vt1}")
    e(f"s_mul_i32 s{S_T0}, s{S_HEAD}, 448")
    e(f"s_add_u32 s{S_T0}, s{S_T0}, {2*SLOT}")
    e(f"v_add_u32 v{Vt0}, s{S_T0}, v{Vt0}")
    e(f"v_lshrrev_b32 v{Vt1}, 1, v{Vr}")
    e(f"v_lshlrev_b32 v{Vt1}, 6, v{Vt1}")
    e(f"v_add_u32 v{V_X1}, v{Vt0}, v{Vt1}")
    e(f"v_sub_u32 v{V_X2}, v{Vt0}, v{Vt1}")
    e(f"s_cmp_eq_u32 s{S_HEAD}, 0")
    e("s_cselect_b64 vcc, -1, 0")
    e("s_nop 1")
    e(f"v_cndmask_b32 v{V_AWO}, v{V_X2}, v{V_X1}, vcc")
    e(f"v_cndmask_b32 v{V_AWO+1}, v{V_X1}, v{V_X2}, vcc")
    e("s_waitcnt lgkmcnt(0)")

    V_ACC = 0
    V_BF = V_S
    ring = [2, 3, 1]
    for k in range(16):
        A.c(f"---- O-proj stage {k}")
        A.barrier()
        head = k >> 3
        for ksl in range(2):
            kq = 2 * k + ksl
            A.lds_issue(("b", ksl), f"ds_read_b128 {vr(V_BF+4*ksl,4)}, v{V_AB+head} offset:{(kq&15)*1024}")
        seq = [(ksl, nt) for ksl in range(2) for nt in range(7)]

        def rdA(i):
            ksl, nt = seq[i]
            f = V_F + 4 * (i % 4)
            base = ksl * 16 * 896 + nt * 64
            A.lds_issue(("a", i), f"ds_read_b64_tr_b16 {vr(f,2)}, v{V_AWO+(nt&1)} offset:{base}")
            A.lds_issue(("a", i), f"ds_read_b64_tr_b16 {vr(f+2,2)}, v{V_AWO+(nt&1)} offset:{base+8*896}")
        for i in range(4):
            rdA(i)
        for i in range(14):
            ksl, nt = seq[i]
            A.lds_wait(("a", i))
            cacc = "0" if (k == 0 and ksl == 0) else vr(V_ACC + 16 * nt, 16)
            e(f"v_mfma_f32_32x32x16_bf16 {vr(V_ACC+16*nt,16)}, {vr(V_F+4*(i%4),4)}, {vr(V_BF+4*ksl,4)}, {cacc}")
            if i + 4 < 14:
                rdA(i + 4)
        assert not A.lds
        if k < 15:
            d = (ring[(k + 1) % 3] - ring[k % 3]) * SLOT
            e(f"v_add_u32 v{V_AWO}, {d & 0xffffffff}, v{V_AWO}")
            e(f"v_add_u32 v{V_AWO+1}, {d & 0xffffffff}, v{V_AWO+1}")
    A.c("---- store partials")
    e(f"v_lshlrev_b32 v{t0}, 4, v{L}")
    e(f"s_mul_i32 s{S_SOFF}, s{S_WID}, 28672")
    e("s_nop 15")
    for nt in range(7):
        for g in range(4):
            e(f"buffer_store_dwordx4 {vr(V_ACC+16*nt+4*g,4)}, v{t0}, {sr(SRD2,4)}, s{S_SOFF} offen offset:{g*1024}")
        if nt < 6:
            e(f"s_add_u32 s{S_SOFF}, s{S_SOFF}, 4096")
    e("s_endpgm")
    nbar_cons = A.nbar

    A.label("L_rescale")
    e(f"v_max_f32 v{t0}, v{t0}, v{V_MC}")
    e(f"v_sub_f32 v{t1}, v{V_MC}, v{t0}")
    e(f"v_exp_f32 v{t1}, v{t1}")
    e(f"v_mov_b32 v{V_MC}, v{t0}")
    e("s_nop 0")
    e(f"v_mul_f32 v{V_L}, v{V_L}, v{t1}")
    for i in range(128):
        e(f"v_mul_f32 v{V_O+i}, v{V_O+i}, v{t1}")
    e("s_branch L_rescale_done")

    A.label("L_producer")
    A.nbar = 0
    S_P = 58
    e(f"s_sub_u32 s{S_P}, s{S_WID}, 4")
    e(f"s_lshl_b32 s{S_T0}, s{S_B}, 22")
    e(f"s_lshl_b32 s{S_T1}, s{S_HKV}, 19")
    e(f"s_add_u32 s{S_T0}, s{S_T0}, s{S_T1}")
    e(f"s_add_u32 s{SRD0}, s{S_K}, s{S_T0}")
    e(f"s_addc_u32 s{SRD0+1}, s{S_K+1}, 0")
    e(f"s_mov_b32 s{SRD0+2}, 524288")
    e(f"s_mov_b32 s{SRD0+3}, 0x00020000")
    e(f"s_add_u32 s{SRD1}, s{S_V}, s{S_T0}")
    e(f"s_addc_u32 s{SRD1+1}, s{S_V+1}, 0")
    e(f"s_mov_b32 s{SRD1+2}, 524288")
    e(f"s_mov_b32 s{SRD1+3}, 0x00020000")
    e(f"s_mul_i32 s{S_T0}, s{S_HKV}, 458752")
    e(f"s_add_u32 s{SRD2}, s{S_WO}, s{S_T0}")
    e(f"s_addc_u32 s{SRD2+1}, s{S_WO+1}, 0")
    e(f"s_mov_b32 s{SRD2+2}, 458752")
    e(f"s_mov_b32 s{SRD2+3}, 0x00020000")
    PK, PV_, PW = 10, 14, 16
    a, b2, c2, d2 = 2, 3, 4, 5
    e(f"v_lshrrev_b32 v{a}, 5, v{L}")
    e(f"v_and_b32 v{b2}, 31, v{L}")
    e(f"s_lshl_b32 s{S_T0}, s{S_P}, 3")
    e(f"v_add_u32 v{c2}, s{S_T0}, v{a}")
    e(f"v_lshlrev_b32 v{d2}, 9, v{c2}")
    for j in range(4):
        e(f"v_add_u32 v6, {2*j}, v{c2}")
        e("v_and_b32 v6, 15, v6")
        e(f"v_xor_b32 v6, v6, v{b2}")
        e("v_lshlrev_b32 v6, 4, v6")
        e(f"v_add_u32 v{PK+j}, v{d2}, v6")
    for jp in range(2):
        e(f"v_add_u32 v6, {2*jp}, v{a}")
        e("v_lshlrev_b32 v6, 2, v6")
        e(f"v_xor_b32 v6, v6, v{b2}")
        e("v_lshlrev_b32 v6, 4, v6")
        e(f"v_add_u32 v{PV_+jp}, v{d2}, v6")
    e(f"s_mul_i32 s{S_T0}, s{S_P}, 448")
    e(f"s_mov_b32 s{S_T1}, {(1<<32)//56 + 1}")
    for j in range(7):
        e(f"v_add_u32 v6, {64*j}, v{L}")
        e(f"v_add_u32 v6, s{S_T0}, v6")
        e(f"v_mul_hi_u32 v7, v6, s{S_T1}")
        e("v_mul_u32_u24 v8, 56, v7")
        e("v_sub_u32 v8, v6, v8")
        e("v_bfe_u32 v9, v7, 1, 1")
        e("v_lshlrev_b32 v9, 2, v9")
        e("v_xor_b32 v8, v8, v9")
        e("v_lshlrev_b32 v8, 4, v8")
        e("v_mul_u32_u24 v7, 896, v7")
        e(f"v_add_u32 v{PW+j}, v7, v8")
    e(f"s_lshl_b32 s{S_M0}, s{S_P}, 12")
    e(f"s_mul_i32 s{S_T3}, s{S_P}, 7168")

    def kv_issue_static(stage):
        slot = stage % 5
        e(f"s_mov_b32 s{S_SOFF}, {stage*16384}")
        e(f"s_add_u32 m0, s{S_M0}, {slot*SLOT}")
        e("s_nop 0")
        for j in range(4):
            e(f"buffer_load_dwordx4 v{PK+j}, {sr(SRD0,4)}, s{S_SOFF} offen offset:{j*1024}{NT} lds")
        e(f"s_add_u32 m0, s{S_M0}, {slot*SLOT+16384}")
        e("s_nop 0")
        for j in range(4):
            e(f"buffer_load_dwordx4 v{PV_+(j&1)}, {sr(SRD1,4)}, s{S_SOFF} offen offset:{j*1024}{NT} lds")

    def wo_issue(k, slot):
        e(f"s_mov_b32 s{S_SOFF}, {k*28672}")
        for j in range(7):
            e(f"s_add_u32 m0, s{S_T3}, {slot*SLOT + j*1024}")
            e("s_nop 0")
            e(f"buffer_load_dwordx4 v{PW+j}, {sr(SRD2,4)}, s{S_SOFF} offen lds")

    for st in range(3):
        kv_issue_static(st)
    for j in range(28):
        A.barrier()
    for t in range(32):
        if t == 0:
            e("s_waitcnt vmcnt(16)")
        elif t <= 28:
            e("s_waitcnt vmcnt(24)")
        elif t == 29:
            e("s_waitcnt vmcnt(23)")
        elif t == 30:
            e("s_waitcnt vmcnt(22)")
        else:
            e("s_waitcnt vmcnt(14)")
        A.barrier()
        if t == 0:
            kv_issue_static(3)
            kv_issue_static(4)
        elif t + 4 < 32:
            kv_issue_static(t + 4)
        elif t == 28:
            wo_issue(0, 2)
        elif t == 29:
            wo_issue(1, 3)
    for k in range(16):
        e("s_waitcnt vmcnt(7)" if k < 15 else "s_waitcnt vmcnt(0)")
        A.barrier()
        if k + 2 < 16:
            wo_issue(k + 2, ring[(k + 2) % 3])
    assert A.nbar == nbar_cons, (A.nbar, nbar_cons)
    A.label("L_exit")
    e("s_endpgm")
    return A.lines


def gen_reduce():
    A = Asm()
    e = A.e
    A.label(KRED)
    e("s_cmp_ge_u32 s2, 896")
    e("s_cbranch_scc1 R_exit")
    e("s_load_dwordx2 s[4:5], s[0:1], 80")
    e("s_load_dwordx2 s[6:7], s[0:1], 96")
    e(f"s_mov_b32 s16, {(1<<32)//28 + 1}")
    e("s_mul_hi_u32 s17, s2, s16")
    e("s_mul_i32 s18, s17, 28")
    e("s_sub_u32 s18, s2, s18")
    e(f"s_mov_b32 s16, {(1<<32)//7 + 1}")
    e("s_mul_hi_u32 s19, s18, s16")
    e("s_mul_i32 s20, s19, 7")
    e("s_sub_u32 s20, s18, s20")
    e("s_waitcnt lgkmcnt(0)")
    e("s_mul_i32 s21, s17, 917504")
    e("s_lshl_b32 s22, s18, 12")
    e("s_add_u32 s21, s21, s22")
    e("s_add_u32 s8, s6, s21")
    e("s_addc_u32 s9, s7, 0")
    e(f"s_mov_b32 s10, {7*114688+4096}")
    e("s_mov_b32 s11, 0x00020000")
    e("s_mov_b32 s12, s4")
    e("s_mov_b32 s13, s5")
    e("s_mov_b32 s14, 1835008")
    e("s_mov_b32 s15, 0x00020000")
    e("v_lshlrev_b32 v1, 4, v0")
    for h in range(8):
        e(f"s_mov_b32 s23, {h*114688}")
        e(f"buffer_load_dwordx4 {vr(8+4*h,4)}, v1, s[8:11], s23 offen")
    e("s_and_b32 s24, s17, 15")
    e("s_lshr_b32 s25, s17, 4")
    e("s_lshl_b32 s24, s24, 6")
    e("s_and_b32 s26, s19, 1")
    e("s_lshl_b32 s26, s26, 5")
    e("s_add_u32 s24, s24, s26")
    e("s_mul_i32 s24, s24, 896")
    e("s_mul_i32 s25, s25, 448")
    e("s_add_u32 s24, s24, s25")
    e("s_lshr_b32 s26, s19, 1")
    e("s_mul_i32 s26, s26, 224")
    e("s_add_u32 s24, s24, s26")
    e("s_lshl_b32 s26, s20, 5")
    e("s_add_u32 s24, s24, s26")
    e("s_lshl_b32 s24, s24, 1")
    e("v_and_b32 v2, 31, v0")
    e("v_mul_u32_u24 v2, 1792, v2")
    e("v_lshrrev_b32 v3, 6, v0")
    e("v_lshlrev_b32 v3, 4, v3")
    e("v_add_u32 v2, v2, v3")
    e("v_bfe_u32 v3, v0, 5, 1")
    e("v_lshlrev_b32 v3, 3, v3")
    e("v_add_u32 v2, v2, v3")
    for h in range(1, 8):
        e(f"s_waitcnt vmcnt({7-h})")
        for i in range(4):
            e(f"v_add_f32 v{8+i}, v{8+i}, v{8+4*h+i}")
    e("v_cvt_pk_bf16_f32 v4, v8, v9")
    e("v_cvt_pk_bf16_f32 v5, v10, v11")
    e("buffer_store_dwordx2 v[4:5], v2, s[12:15], s24 offen")
    A.label("R_exit")
    e("s_endpgm")
    return A.lines


def kd(name, vgpr, sgpr):
    acc = (vgpr + 3) // 4 * 4
    return f""".amdhsa_kernel {name}
  .amdhsa_next_free_vgpr {vgpr}
  .amdhsa_next_free_sgpr {sgpr}
  .amdhsa_accum_offset {acc}
  .amdhsa_group_segment_fixed_size 0
  .amdhsa_kernarg_size 104
  .amdhsa_user_sgpr_count 2
  .amdhsa_user_sgpr_kernarg_segment_ptr 1
  .amdhsa_system_sgpr_workgroup_id_x 1
.end_amdhsa_kernel
"""


def main():
    out = []
    out.append(f"; @launch kernel={KMAIN} grid=(256,1,1) block=(512,1,1) lds=163840")
    out.append(f"; @launch kernel={KRED} grid=(896,1,1) block=(256,1,1) lds=0")
    out.append('.amdgcn_target "amdgcn-amd-amdhsa--gfx950"')
    out.append(".text")
    for name, lines in ((KMAIN, gen_main()), (KRED, gen_reduce())):
        out.append(f".globl {name}")
        out.append(".p2align 8")
        out.append(f".type {name},@function")
        out += lines
    out.append('.section .rodata,"a"')
    out.append(".p2align 6")
    out.append(kd(KMAIN, 256, 96))
    out.append(".p2align 6")
    out.append(kd(KRED, 40, 32))
    open(sys.argv[1], "w").write("\n".join(out) + "\n")


main()
```

```python
import sys, math

NAME = "concat_heads__gqa_block_cached__gqa_block_cached__near_ridge"
KMAIN = NAME + "_kernel"
KRED = "reduce_partials_kernel"

OPT = dict(nt=0, stamp=0, nocompute=0, nodma=0)
for a in sys.argv[2:]:
    k, v = a.split("=")
    OPT[k] = int(v)


class Asm:
    def __init__(self):
        self.lines = []
        self.lds = []
        self.nbar = 0

    def e(self, s):
        if OPT["nodma"] and s.endswith(" lds"):
            return
        if OPT["nocompute"] and (s.startswith("ds_read") or s.startswith("v_mfma") or s.startswith("v_exp") or s.startswith("v_fma")):
            return
        self.lines.append("    " + s)

    def label(self, s):
        self.lines.append(s + ":")

    def c(self, s):
        self.lines.append("    ; " + s)

    def lds_issue(self, tag, s):
        self.e(s)
        self.lds.append(tag)

    def lds_wait(self, tag):
        idx = max(i for i, t in enumerate(self.lds) if t == tag)
        n = len(self.lds) - 1 - idx
        assert n <= 15
        self.e(f"s_waitcnt lgkmcnt({n})")
        self.lds = self.lds[idx + 1:]

    def lds_wait_all(self):
        self.e("s_waitcnt lgkmcnt(0)")
        self.lds = []

    def stamp(self, i):
        if not OPT["stamp"]:
            return
        assert not self.lds
        self.e(f"s_memrealtime s[{76+2*i}:{77+2*i}]")
        self.e("s_waitcnt lgkmcnt(0)")

    def stamp_flush(self, n):
        if not OPT["stamp"]:
            return
        e = self.e
        e("s_lshl_b32 s92, s2, 3")
        e(f"s_add_u32 s92, s92, s{S_WID}")
        e("s_lshl_b32 s92, s92, 7")
        e(f"s_add_u32 s92, s92, {64<<20}")
        e(f"s_add_u32 s92, s{S_WS}, s92")
        e(f"s_addc_u32 s93, s{S_WS+1}, 0")
        e("s_mov_b32 s94, 128")
        e("s_mov_b32 s95, 0x00020000")
        e("v_mov_b32 v2, 0")
        for i in range(n):
            e(f"v_mov_b32 v4, s{76+2*i}")
            e(f"v_mov_b32 v5, s{77+2*i}")
            e(f"buffer_store_dwordx2 v[4:5], v2, s[92:95], 0 offen offset:{8*i}")
            e("s_nop 1")

    def barrier(self):
        self.e("s_barrier")
        self.nbar += 1


def vr(a, n):
    return f"v[{a}:{a+n-1}]"


def sr(a, n):
    return f"s[{a}:{a+n-1}]"


SLOT = 32768
NT = " nt" if OPT["nt"] else ""

S_BLK, S_HKV, S_B, S_WID = 34, 35, 36, 37
S_T0, S_T1, S_T2, S_T3 = 60, 61, 62, 63
SRD0, SRD1, SRD2 = 40, 44, 48
S_SOFF, S_M0, S_CNT, S_DELTA, S_SLOTI, S_C = 52, 53, 54, 55, 56, 57
S_X, S_K, S_V, S_WQ, S_WO = 64, 66, 68, 70, 72
S_OUT, S_DBG, S_WS = 28, 30, 32

V_O = 0
V_Q = 128
V_S = 192
V_P = 208
V_F = 216
V_AK = 232
V_AV = 240
V_MC, V_L = 244, 245
V_T = 246
V_LANE = 252
V_X1, V_X2, V_X3 = 253, 254, 255


def gen_main():
    A = Asm()
    e = A.e
    A.label(KMAIN)
    e("s_cmp_ge_u32 s2, 256")
    e("s_cbranch_scc1 L_exit")
    e("s_load_dwordx16 s[8:23], s[0:1], 0")
    e("s_load_dwordx8 s[24:31], s[0:1], 64")
    e("s_load_dwordx2 s[32:33], s[0:1], 96")
    e(f"s_and_b32 s{S_T0}, s2, 7")
    e(f"s_lshl_b32 s{S_T0}, s{S_T0}, 1")
    e(f"s_lshr_b32 s{S_T1}, s2, 3")
    e(f"s_and_b32 s{S_T1}, s{S_T1}, 1")
    e(f"s_add_u32 s{S_T0}, s{S_T0}, s{S_T1}")
    e(f"s_lshr_b32 s{S_B}, s2, 4")
    e(f"s_lshr_b32 s{S_BLK}, s{S_T0}, 3")
    e(f"s_and_b32 s{S_HKV}, s{S_T0}, 7")
    e("v_lshrrev_b32 v1, 6, v0")
    e(f"v_and_b32 v{V_LANE}, 63, v0")
    e("s_nop 0")
    e(f"v_readfirstlane_b32 s{S_WID}, v1")
    e("s_waitcnt lgkmcnt(0)")
    e(f"s_cmp_eq_u32 s{S_BLK}, 0")
    e(f"s_cselect_b64 {sr(S_X,2)}, s[8:9], s[18:19]")
    e(f"s_cselect_b64 {sr(S_K,2)}, s[10:11], s[20:21]")
    e(f"s_cselect_b64 {sr(S_V,2)}, s[12:13], s[22:23]")
    e(f"s_cselect_b64 {sr(S_WQ,2)}, s[14:15], s[24:25]")
    e(f"s_cselect_b64 {sr(S_WO,2)}, s[16:17], s[26:27]")
    A.stamp(0)
    e(f"s_cmp_ge_u32 s{S_WID}, 4")
    e("s_cbranch_scc1 L_producer")

    L = V_LANE
    e(f"s_lshl_b32 s{S_T0}, s{S_HKV}, 10")
    e(f"s_add_u32 s{SRD0}, s{S_WQ}, s{S_T0}")
    e(f"s_addc_u32 s{SRD0+1}, s{S_WQ+1}, 0")
    e(f"s_sub_u32 s{SRD0+2}, {448*8192}, s{S_T0}")
    e(f"s_mov_b32 s{SRD0+3}, 0x00020000")
    e(f"s_mul_i32 s{S_T0}, s{S_B}, 57344")
    e(f"s_add_u32 s{SRD1}, s{S_X}, s{S_T0}")
    e(f"s_addc_u32 s{SRD1+1}, s{S_X+1}, 0")
    e(f"s_mov_b32 s{SRD1+2}, 57344")
    e(f"s_mov_b32 s{SRD1+3}, 0x00020000")
    e(f"s_lshl_b32 s{S_T0}, s{S_BLK}, 4")
    e(f"s_add_u32 s{S_T0}, s{S_T0}, s{S_B}")
    e(f"s_lshl_b32 s{S_T0}, s{S_T0}, 3")
    e(f"s_add_u32 s{S_T0}, s{S_T0}, s{S_HKV}")
    e(f"s_mul_i32 s{S_T0}, s{S_T0}, 114688")
    e(f"s_add_u32 s{SRD2}, s{S_WS}, s{S_T0}")
    e(f"s_addc_u32 s{SRD2+1}, s{S_WS+1}, 0")
    e(f"s_mov_b32 s{SRD2+2}, 114688")
    e(f"s_mov_b32 s{SRD2+3}, 0x00020000")
    S_HEAD, S_QB = 58, 59
    e(f"s_lshr_b32 s{S_HEAD}, s{S_WID}, 1")
    e(f"s_and_b32 s{S_QB}, s{S_WID}, 1")

    Vh, Vu, Vr, Vcc = V_T, V_T + 1, V_T + 2, V_T + 3
    Vt0, Vt1 = V_T + 4, V_T + 5
    e(f"v_lshrrev_b32 v{Vh}, 5, v{L}")
    e(f"v_bfe_u32 v{Vu}, v{L}, 4, 1")
    e(f"v_bfe_u32 v{Vr}, v{L}, 2, 2")
    e(f"v_and_b32 v{Vcc}, 3, v{L}")

    V_XF = V_S
    V_OFFW = V_P
    V_OFFX = V_P + 4
    V_AW = V_AK
    WBASE = 3 * SLOT
    e(f"s_lshl_b32 s{S_T0}, s{S_WID}, 15")
    for jj in range(4):
        e(f"v_xor_b32 v{Vt0}, {jj<<2}, v{L}")
        e(f"v_lshlrev_b32 v{Vt0}, 4, v{Vt0}")
        e(f"v_add_u32 v{Vt0}, {jj*8192 - jj*1024}, v{Vt0}")
        e(f"v_add_u32 v{V_OFFW+jj}, s{S_T0}, v{Vt0}")
    e(f"v_and_b32 v{Vt0}, 31, v{L}")
    e(f"s_lshl_b32 s{S_T0}, s{S_QB}, 5")
    e(f"v_add_u32 v{Vt0}, s{S_T0}, v{Vt0}")
    e(f"v_mul_u32_u24 v{Vt0}, 896, v{Vt0}")
    e(f"v_lshlrev_b32 v{Vt1}, 4, v{Vh}")
    e(f"v_add_u32 v{V_OFFX}, v{Vt0}, v{Vt1}")
    e(f"v_lshlrev_b32 v{Vt0}, 3, v{Vh}")
    e(f"v_add_u32 v{Vt0}, v{Vt0}, v{Vr}")
    e(f"v_lshlrev_b32 v{Vt0}, 10, v{Vt0}")
    e(f"v_lshlrev_b32 v{Vt1}, 5, v{Vu}")
    e(f"v_add_u32 v{Vt0}, v{Vt0}, v{Vt1}")
    e(f"v_and_b32 v{Vt1}, 1, v{Vcc}")
    e(f"v_lshlrev_b32 v{Vt1}, 4, v{Vt1}")
    e(f"v_add_u32 v{Vt0}, v{Vt0}, v{Vt1}")
    e(f"v_lshrrev_b32 v{Vt1}, 1, v{Vcc}")
    e(f"v_lshlrev_b32 v{Vt1}, 3, v{Vt1}")
    e(f"v_add_u32 v{Vt0}, v{Vt0}, v{Vt1}")
    e(f"s_lshl_b32 s{S_T0}, s{S_HEAD}, 9")
    e(f"s_add_u32 s{S_T0}, s{S_T0}, {WBASE}")
    e(f"v_add_u32 v{Vt0}, s{S_T0}, v{Vt0}")
    for t2 in range(4):
        e(f"v_xor_b32 v{Vt1}, {t2}, v{Vr}")
        e(f"v_lshlrev_b32 v{Vt1}, 6, v{Vt1}")
        e(f"v_add_u32 v{V_AW+t2}, v{Vt0}, v{Vt1}")

    def w_issue(j):
        e(f"s_mov_b32 s{S_SOFF}, {j*131072}")
        e(f"s_add_u32 m0, s{S_M0}, {(j%4)*16384}")
        e("s_nop 0")
        for jj in range(4):
            e(f"buffer_load_dwordx4 v{V_OFFW+jj}, {sr(SRD0,4)}, s{S_SOFF} offen offset:{jj*1024} lds")
        e(f"buffer_load_dwordx4 {vr(V_XF+4*(j%4),4)}, v{V_OFFX}, {sr(SRD1,4)}, 0 offen offset:{j*32}")

    e(f"s_lshl_b32 s{S_M0}, s{S_WID}, 12")
    e(f"s_add_u32 s{S_M0}, s{S_M0}, {WBASE}")
    for j in range(3):
        w_issue(j)
    NJ = 28
    for j in range(NJ):
        A.c(f"---- Q-proj step {j}")
        rem = min(2, NJ - 1 - j)
        e(f"s_waitcnt vmcnt({5*rem})")
        A.barrier()
        if j + 3 < NJ:
            w_issue(j + 3)

        def rd(T):
            f = V_F + 4 * (T % 4)
            base = (j % 4) * 16384 + (T >> 2) * 256
            A.lds_issue(("w", T), f"ds_read_b64_tr_b16 {vr(f,2)}, v{V_AW+(T&3)} offset:{base}")
            A.lds_issue(("w", T), f"ds_read_b64_tr_b16 {vr(f+2,2)}, v{V_AW+(T&3)} offset:{base+4096}")
        for T in range(4):
            rd(T)
        for T in range(8):
            A.lds_wait(("w", T))
            cacc = "0" if j == 0 else vr(V_O + 16 * T, 16)
            e(f"v_mfma_f32_32x32x16_bf16 {vr(V_O+16*T,16)}, {vr(V_F+4*(T%4),4)}, {vr(V_XF+4*(j%4),4)}, {cacc}")
            if T + 4 < 8:
                rd(T + 4)
    A.stamp(1)
    A.c("---- main loop address setup")
    e(f"v_and_b32 v{Vt0}, 31, v{L}")
    e(f"v_and_b32 v{Vt1}, 15, v{L}")
    e(f"v_lshlrev_b32 v{Vt0}, 9, v{Vt0}")
    for k7 in range(8):
        e(f"v_add_u32 v{V_X1}, {2*k7}, v{Vh}")
        e(f"v_xor_b32 v{V_X1}, v{V_X1}, v{Vt1}")
        e(f"v_lshlrev_b32 v{V_X1}, 4, v{V_X1}")
        e(f"v_add_u32 v{V_AK+k7}, v{Vt0}, v{V_X1}")
    e(f"v_lshlrev_b32 v{Vt0}, 2, v{Vh}")
    e(f"v_add_u32 v{Vt0}, v{Vt0}, v{Vr}")
    e(f"v_lshlrev_b32 v{Vt0}, 9, v{Vt0}")
    e(f"v_lshlrev_b32 v{Vt1}, 5, v{Vu}")
    e(f"v_add_u32 v{Vt0}, v{Vt0}, v{Vt1}")
    e(f"v_lshlrev_b32 v{Vt1}, 3, v{Vcc}")
    e(f"v_add_u32 v{Vt0}, v{Vt0}, v{Vt1}")
    e(f"v_add_u32 v{Vt0}, 16384, v{Vt0}")
    for t2 in range(4):
        e(f"v_xor_b32 v{Vt1}, {t2}, v{Vr}")
        e(f"v_lshlrev_b32 v{Vt1}, 6, v{Vt1}")
        e(f"v_add_u32 v{V_AV+t2}, v{Vt0}, v{Vt1}")
    e("s_nop 7")
    for T in range(8):
        for u in range(2):
            for r in range(4):
                a = V_O + 16 * T + 8 * u + 2 * r
                e(f"v_cvt_pk_bf16_f32 v{V_Q + 4*(2*T+u) + r}, v{a}, v{a+1}")
    for i in range(128):
        e(f"v_mov_b32 v{V_O+i}, 0")
    e(f"v_mov_b32 v{V_MC}, 0xff800000")
    e(f"v_mov_b32 v{V_L}, 0")
    cval = math.log2(math.e) / 16.0
    import struct
    cbits = struct.unpack("<I", struct.pack("<f", cval))[0]
    e(f"s_mov_b32 s{S_C}, 0x{cbits:08x}")
    e(f"s_mov_b32 s{S_CNT}, 0")
    e(f"s_mov_b32 s{S_SLOTI}, 0")
    e(f"s_mov_b32 s74, {SLOT}")
    e(f"s_mov_b32 s75, {(-4*SLOT) & 0xffffffff}")

    A.label("L_loop")
    nb0 = A.nbar
    A.barrier()

    def rdK(ks):
        f = V_F + 4 * (ks % 4)
        A.lds_issue(("k", ks), f"ds_read_b128 {vr(f,4)}, v{V_AK+(ks&7)} offset:{(ks>>3)*256}")

    pv = [(dt, kk) for dt in range(8) for kk in range(2)]

    def rdV(i):
        dt, kk = pv[i]
        f = V_F + 4 * (i % 4)
        base = kk * 8192 + (dt >> 2) * 256
        A.lds_issue(("v", i), f"ds_read_b64_tr_b16 {vr(f,2)}, v{V_AV+(dt&3)} offset:{base}")
        A.lds_issue(("v", i), f"ds_read_b64_tr_b16 {vr(f+2,2)}, v{V_AV+(dt&3)} offset:{base+4096}")

    for ks in range(4):
        rdK(ks)
    for ks in range(16):
        A.lds_wait(("k", ks))
        cacc = "0" if ks == 0 else vr(V_S, 16)
        e(f"v_mfma_f32_32x32x16_bf16 {vr(V_S,16)}, {vr(V_F+4*(ks%4),4)}, {vr(V_Q+4*ks,4)}, {cacc}")
        if ks + 4 < 16:
            rdK(ks + 4)
        else:
            rdV(ks - 12)
    e(f"s_add_u32 s{S_SLOTI}, s{S_SLOTI}, 1")
    e(f"s_cmp_eq_u32 s{S_SLOTI}, 5")
    e(f"s_cselect_b32 s{S_DELTA}, s75, s74")
    e(f"s_cselect_b32 s{S_SLOTI}, 0, s{S_SLOTI}")
    for k7 in range(8):
        e(f"v_add_u32 v{V_AK+k7}, s{S_DELTA}, v{V_AK+k7}")
    e("s_nop 3")
    S = V_S
    t0, t1, t2_, t3, t4, t5 = V_T, V_T + 1, V_T + 2, V_T + 3, V_T + 4, V_T + 5
    e(f"v_max3_f32 v{t0}, v{S}, v{S+1}, v{S+2}")
    e(f"v_max3_f32 v{t1}, v{S+3}, v{S+4}, v{S+5}")
    e(f"v_max3_f32 v{t2_}, v{S+6}, v{S+7}, v{S+8}")
    e(f"v_max3_f32 v{t3}, v{S+9}, v{S+10}, v{S+11}")
    e(f"v_max3_f32 v{t4}, v{S+12}, v{S+13}, v{S+14}")
    e(f"v_max3_f32 v{t0}, v{t0}, v{t1}, v{S+15}")
    e(f"v_max3_f32 v{t2_}, v{t2_}, v{t3}, v{t4}")
    e(f"v_max_f32 v{t0}, v{t0}, v{t2_}")
    e(f"v_mov_b32 v{t1}, v{t0}")
    e("s_nop 1")
    e(f"v_permlane32_swap_b32 v{t0}, v{t1}")
    e("s_nop 1")
    e(f"v_max_f32 v{t0}, v{t0}, v{t1}")
    e(f"v_mul_f32 v{t0}, s{S_C}, v{t0}")
    e(f"v_sub_f32 v{t1}, v{t0}, v{V_MC}")
    e(f"v_cmp_lt_f32 vcc, 0x41000000, v{t1}")
    e("s_nop 1")
    e("s_cbranch_vccnz L_rescale")
    A.label("L_rescale_done")
    for i in range(16):
        e(f"v_fma_f32 v{S+i}, v{S+i}, s{S_C}, -v{V_MC}")
    for i in range(16):
        e(f"v_exp_f32 v{S+i}, v{S+i}")
    e("s_nop 0")
    e(f"v_add_f32 v{t0}, v{S}, v{S+1}")
    e(f"v_add_f32 v{t1}, v{S+2}, v{S+3}")
    e(f"v_add_f32 v{t2_}, v{S+4}, v{S+5}")
    e(f"v_add_f32 v{t3}, v{S+6}, v{S+7}")
    for i in range(8):
        e(f"v_cvt_pk_bf16_f32 v{V_P+i}, v{S+2*i}, v{S+2*i+1}")
    e(f"v_add_f32 v{t0}, v{t0}, v{S+8}")
    e(f"v_add_f32 v{t1}, v{t1}, v{S+9}")
    e(f"v_add_f32 v{t2_}, v{t2_}, v{S+10}")
    e(f"v_add_f32 v{t3}, v{t3}, v{S+11}")
    e(f"v_add_f32 v{t0}, v{t0}, v{S+12}")
    e(f"v_add_f32 v{t1}, v{t1}, v{S+13}")
    e(f"v_add_f32 v{t2_}, v{t2_}, v{S+14}")
    e(f"v_add_f32 v{t3}, v{t3}, v{S+15}")
    for i in range(16):
        dt, kk = pv[i]
        A.lds_wait(("v", i))
        e(f"v_mfma_f32_32x32x16_bf16 {vr(V_O+16*dt,16)}, {vr(V_F+4*(i%4),4)}, {vr(V_P+4*kk,4)}, {vr(V_O+16*dt,16)}")
        if i + 4 < 16:
            rdV(i + 4)
        if i == 0:
            e(f"v_add_f32 v{t0}, v{t0}, v{t1}")
            e(f"v_add_f32 v{t2_}, v{t2_}, v{t3}")
        if i == 1:
            e(f"v_add_f32 v{t0}, v{t0}, v{t2_}")
            e(f"v_add_f32 v{V_L}, v{V_L}, v{t0}")
    assert not A.lds
    for t2 in range(4):
        e(f"v_add_u32 v{V_AV+t2}, s{S_DELTA}, v{V_AV+t2}")
    e(f"s_add_u32 s{S_CNT}, s{S_CNT}, 1")
    e(f"s_cmp_lt_u32 s{S_CNT}, 32")
    e("s_cbranch_scc1 L_loop")
    A.nbar = nb0 + 32

    A.stamp(2)
    A.c("---- finalize: normalise O, write bf16 frags to LDS")
    e(f"v_mov_b32 v{t1}, v{V_L}")
    e("s_nop 1")
    e(f"v_permlane32_swap_b32 v{V_L}, v{t1}")
    e("s_nop 1")
    e(f"v_add_f32 v{t0}, v{V_L}, v{t1}")
    e(f"v_rcp_f32 v{t0}, v{t0}")
    e(f"s_lshl_b32 s{S_T0}, s{S_QB}, 14")
    e(f"s_add_u32 s{S_T1}, s{S_T0}, {4*SLOT}")
    e(f"s_cmp_eq_u32 s{S_HEAD}, 0")
    e(f"s_cselect_b32 s{S_T2}, s{S_T1}, s{S_T0}")
    V_AB = V_AK
    V_AOWN = V_AK + 2
    V_AWO = V_AK + 4
    e(f"v_lshlrev_b32 v{t1}, 4, v{L}")
    e(f"v_add_u32 v{V_AB}, s{S_T1}, v{t1}")
    e(f"v_add_u32 v{V_AB+1}, s{S_T0}, v{t1}")
    e(f"v_add_u32 v{V_AOWN}, s{S_T2}, v{t1}")
    e("s_nop 7")
    for fr in range(16):
        dt, u = fr >> 1, fr & 1
        q = V_Q + 4 * fr
        for r in range(4):
            a = V_O + 16 * dt + 8 * u + 2 * r
            e(f"v_mul_f32 v{a}, v{a}, v{t0}")
            e(f"v_mul_f32 v{a+1}, v{a+1}, v{t0}")
            e(f"v_cvt_pk_bf16_f32 v{q+r}, v{a}, v{a+1}")
        e(f"ds_write_b128 v{V_AOWN}, {vr(q,4)} offset:{fr*1024}")
    e(f"v_lshrrev_b32 v{Vh}, 5, v{L}")
    e(f"v_bfe_u32 v{Vu}, v{L}, 4, 1")
    e(f"v_bfe_u32 v{Vr}, v{L}, 2, 2")
    e(f"v_and_b32 v{Vcc}, 3, v{L}")
    e(f"v_lshlrev_b32 v{Vt0}, 2, v{Vh}")
    e(f"v_add_u32 v{Vt0}, v{Vt0}, v{Vr}")
    e(f"v_mul_u32_u24 v{Vt0}, 896, v{Vt0}")
    e(f"v_lshlrev_b32 v{Vt1}, 5, v{Vu}")
    e(f"v_add_u32 v{Vt0}, v{Vt0}, v{Vt1}")
    e(f"v_lshlrev_b32 v{Vt1}, 3, v{Vcc}")
    e(f"v_add_u32 v{Vt0}, v{Vt0}, v{Vt1}")
    e(f"s_mul_i32 s{S_T0}, s{S_HEAD}, 448")
    e(f"s_add_u32 s{S_T0}, s{S_T0}, {2*SLOT}")
    e(f"v_add_u32 v{Vt0}, s{S_T0}, v{Vt0}")
    e(f"v_lshrrev_b32 v{Vt1}, 1, v{Vr}")
    e(f"v_lshlrev_b32 v{Vt1}, 6, v{Vt1}")
    e(f"v_add_u32 v{V_X1}, v{Vt0}, v{Vt1}")
    e(f"v_sub_u32 v{V_X2}, v{Vt0}, v{Vt1}")
    e(f"s_cmp_eq_u32 s{S_HEAD}, 0")
    e("s_cselect_b64 vcc, -1, 0")
    e("s_nop 1")
    e(f"v_cndmask_b32 v{V_AWO}, v{V_X2}, v{V_X1}, vcc")
    e(f"v_cndmask_b32 v{V_AWO+1}, v{V_X1}, v{V_X2}, vcc")
    e("s_waitcnt lgkmcnt(0)")

    A.stamp(3)
    V_ACC = 0
    V_BF = V_S
    ring = [2, 3, 1]
    for k in range(16):
        A.c(f"---- O-proj stage {k}")
        A.barrier()
        head = k >> 3
        for ksl in range(2):
            kq = 2 * k + ksl
            A.lds_issue(("b", ksl), f"ds_read_b128 {vr(V_BF+4*ksl,4)}, v{V_AB+head} offset:{(kq&15)*1024}")
        seq = [(ksl, nt) for ksl in range(2) for nt in range(7)]

        def rdA(i):
            ksl, nt = seq[i]
            f = V_F + 4 * (i % 4)
            base = ksl * 16 * 896 + nt * 64
            A.lds_issue(("a", i), f"ds_read_b64_tr_b16 {vr(f,2)}, v{V_AWO+(nt&1)} offset:{base}")
            A.lds_issue(("a", i), f"ds_read_b64_tr_b16 {vr(f+2,2)}, v{V_AWO+(nt&1)} offset:{base+8*896}")
        for i in range(4):
            rdA(i)
        for i in range(14):
            ksl, nt = seq[i]
            A.lds_wait(("a", i))
            cacc = "0" if (k == 0 and ksl == 0) else vr(V_ACC + 16 * nt, 16)
            e(f"v_mfma_f32_32x32x16_bf16 {vr(V_ACC+16*nt,16)}, {vr(V_F+4*(i%4),4)}, {vr(V_BF+4*ksl,4)}, {cacc}")
            if i + 4 < 14:
                rdA(i + 4)
        assert not A.lds
        if k < 15:
            d = (ring[(k + 1) % 3] - ring[k % 3]) * SLOT
            e(f"v_add_u32 v{V_AWO}, {d & 0xffffffff}, v{V_AWO}")
            e(f"v_add_u32 v{V_AWO+1}, {d & 0xffffffff}, v{V_AWO+1}")
    A.stamp(4)
    A.c("---- store partials")
    e(f"v_lshlrev_b32 v{t0}, 4, v{L}")
    e(f"s_mul_i32 s{S_SOFF}, s{S_WID}, 28672")
    e("s_nop 15")
    for nt in range(7):
        for g in range(4):
            e(f"buffer_store_dwordx4 {vr(V_ACC+16*nt+4*g,4)}, v{t0}, {sr(SRD2,4)}, s{S_SOFF} offen offset:{g*1024}")
        if nt < 6:
            e(f"s_add_u32 s{S_SOFF}, s{S_SOFF}, 4096")
    if OPT["stamp"]:
        e("s_waitcnt vmcnt(0)")
    A.stamp(5)
    A.stamp_flush(6)
    e("s_endpgm")
    nbar_cons = A.nbar

    A.label("L_rescale")
    e(f"v_max_f32 v{t0}, v{t0}, v{V_MC}")
    e(f"v_sub_f32 v{t1}, v{V_MC}, v{t0}")
    e(f"v_exp_f32 v{t1}, v{t1}")
    e(f"v_mov_b32 v{V_MC}, v{t0}")
    e("s_nop 0")
    e(f"v_mul_f32 v{V_L}, v{V_L}, v{t1}")
    for i in range(128):
        e(f"v_mul_f32 v{V_O+i}, v{V_O+i}, v{t1}")
    e("s_branch L_rescale_done")

    A.label("L_producer")
    A.nbar = 0
    S_P = 58
    e(f"s_sub_u32 s{S_P}, s{S_WID}, 4")
    e(f"s_lshl_b32 s{S_T0}, s{S_B}, 22")
    e(f"s_lshl_b32 s{S_T1}, s{S_HKV}, 19")
    e(f"s_add_u32 s{S_T0}, s{S_T0}, s{S_T1}")
    e(f"s_add_u32 s{SRD0}, s{S_K}, s{S_T0}")
    e(f"s_addc_u32 s{SRD0+1}, s{S_K+1}, 0")
    e(f"s_mov_b32 s{SRD0+2}, 524288")
    e(f"s_mov_b32 s{SRD0+3}, 0x00020000")
    e(f"s_add_u32 s{SRD1}, s{S_V}, s{S_T0}")
    e(f"s_addc_u32 s{SRD1+1}, s{S_V+1}, 0")
    e(f"s_mov_b32 s{SRD1+2}, 524288")
    e(f"s_mov_b32 s{SRD1+3}, 0x00020000")
    e(f"s_mul_i32 s{S_T0}, s{S_HKV}, 458752")
    e(f"s_add_u32 s{SRD2}, s{S_WO}, s{S_T0}")
    e(f"s_addc_u32 s{SRD2+1}, s{S_WO+1}, 0")
    e(f"s_mov_b32 s{SRD2+2}, 458752")
    e(f"s_mov_b32 s{SRD2+3}, 0x00020000")
    PK, PV_, PW = 10, 14, 16
    a, b2, c2, d2 = 2, 3, 4, 5
    e(f"v_lshrrev_b32 v{a}, 5, v{L}")
    e(f"v_and_b32 v{b2}, 31, v{L}")
    e(f"s_lshl_b32 s{S_T0}, s{S_P}, 3")
    e(f"v_add_u32 v{c2}, s{S_T0}, v{a}")
    e(f"v_lshlrev_b32 v{d2}, 9, v{c2}")
    for j in range(4):
        e(f"v_add_u32 v6, {2*j}, v{c2}")
        e("v_and_b32 v6, 15, v6")
        e(f"v_xor_b32 v6, v6, v{b2}")
        e("v_lshlrev_b32 v6, 4, v6")
        e(f"v_add_u32 v{PK+j}, v{d2}, v6")
    for jp in range(2):
        e(f"v_add_u32 v6, {2*jp}, v{a}")
        e("v_lshlrev_b32 v6, 2, v6")
        e(f"v_xor_b32 v6, v6, v{b2}")
        e("v_lshlrev_b32 v6, 4, v6")
        e(f"v_add_u32 v{PV_+jp}, v{d2}, v6")
    e(f"s_mul_i32 s{S_T0}, s{S_P}, 448")
    e(f"s_mov_b32 s{S_T1}, {(1<<32)//56 + 1}")
    for j in range(7):
        e(f"v_add_u32 v6, {64*j}, v{L}")
        e(f"v_add_u32 v6, s{S_T0}, v6")
        e(f"v_mul_hi_u32 v7, v6, s{S_T1}")
        e("v_mul_u32_u24 v8, 56, v7")
        e("v_sub_u32 v8, v6, v8")
        e("v_bfe_u32 v9, v7, 1, 1")
        e("v_lshlrev_b32 v9, 2, v9")
        e("v_xor_b32 v8, v8, v9")
        e("v_lshlrev_b32 v8, 4, v8")
        e("v_mul_u32_u24 v7, 896, v7")
        e(f"v_add_u32 v{PW+j}, v7, v8")
    e(f"s_lshl_b32 s{S_M0}, s{S_P}, 12")
    e(f"s_mul_i32 s{S_T3}, s{S_P}, 7168")

    def kv_issue_static(stage):
        slot = stage % 5
        e(f"s_mov_b32 s{S_SOFF}, {stage*16384}")
        e(f"s_add_u32 m0, s{S_M0}, {slot*SLOT}")
        e("s_nop 0")
        for j in range(4):
            e(f"buffer_load_dwordx4 v{PK+j}, {sr(SRD0,4)}, s{S_SOFF} offen offset:{j*1024}{NT} lds")
        e(f"s_add_u32 m0, s{S_M0}, {slot*SLOT+16384}")
        e("s_nop 0")
        for j in range(4):
            e(f"buffer_load_dwordx4 v{PV_+(j&1)}, {sr(SRD1,4)}, s{S_SOFF} offen offset:{j*1024}{NT} lds")

    def wo_issue(k, slot):
        e(f"s_mov_b32 s{S_SOFF}, {k*28672}")
        for j in range(7):
            e(f"s_add_u32 m0, s{S_T3}, {slot*SLOT + j*1024}")
            e("s_nop 0")
            e(f"buffer_load_dwordx4 v{PW+j}, {sr(SRD2,4)}, s{S_SOFF} offen lds")

    for st in range(3):
        kv_issue_static(st)
    A.stamp(1)
    for j in range(28):
        A.barrier()
    A.stamp(2)
    for t in range(32):
        if t == 0:
            e("s_waitcnt vmcnt(16)")
        elif t <= 28:
            e("s_waitcnt vmcnt(24)")
        elif t == 29:
            e("s_waitcnt vmcnt(23)")
        elif t == 30:
            e("s_waitcnt vmcnt(22)")
        else:
            e("s_waitcnt vmcnt(14)")
        A.barrier()
        if t == 0:
            kv_issue_static(3)
            kv_issue_static(4)
        elif t + 4 < 32:
            kv_issue_static(t + 4)
        elif t == 28:
            wo_issue(0, 2)
        elif t == 29:
            wo_issue(1, 3)
    A.stamp(3)
    for k in range(16):
        e("s_waitcnt vmcnt(7)" if k < 15 else "s_waitcnt vmcnt(0)")
        A.barrier()
        if k + 2 < 16:
            wo_issue(k + 2, ring[(k + 2) % 3])
    assert A.nbar == nbar_cons, (A.nbar, nbar_cons)
    A.stamp(4)
    A.stamp(5)
    A.stamp_flush(6)
    A.label("L_exit")
    e("s_endpgm")
    return A.lines


def gen_reduce():
    A = Asm()
    e = A.e
    A.label(KRED)
    e("s_cmp_ge_u32 s2, 896")
    e("s_cbranch_scc1 R_exit")
    e("s_load_dwordx2 s[4:5], s[0:1], 80")
    e("s_load_dwordx2 s[6:7], s[0:1], 96")
    e(f"s_mov_b32 s16, {(1<<32)//28 + 1}")
    e("s_mul_hi_u32 s17, s2, s16")
    e("s_mul_i32 s18, s17, 28")
    e("s_sub_u32 s18, s2, s18")
    e(f"s_mov_b32 s16, {(1<<32)//7 + 1}")
    e("s_mul_hi_u32 s19, s18, s16")
    e("s_mul_i32 s20, s19, 7")
    e("s_sub_u32 s20, s18, s20")
    e("s_waitcnt lgkmcnt(0)")
    e("s_mul_i32 s21, s17, 917504")
    e("s_lshl_b32 s22, s18, 12")
    e("s_add_u32 s21, s21, s22")
    e("s_add_u32 s8, s6, s21")
    e("s_addc_u32 s9, s7, 0")
    e(f"s_mov_b32 s10, {7*114688+4096}")
    e("s_mov_b32 s11, 0x00020000")
    e("s_mov_b32 s12, s4")
    e("s_mov_b32 s13, s5")
    e("s_mov_b32 s14, 1835008")
    e("s_mov_b32 s15, 0x00020000")
    e("v_lshlrev_b32 v1, 4, v0")
    for h in range(8):
        e(f"s_mov_b32 s23, {h*114688}")
        e(f"buffer_load_dwordx4 {vr(8+4*h,4)}, v1, s[8:11], s23 offen")
    e("s_and_b32 s24, s17, 15")
    e("s_lshr_b32 s25, s17, 4")
    e("s_lshl_b32 s24, s24, 6")
    e("s_and_b32 s26, s19, 1")
    e("s_lshl_b32 s26, s26, 5")
    e("s_add_u32 s24, s24, s26")
    e("s_mul_i32 s24, s24, 896")
    e("s_mul_i32 s25, s25, 448")
    e("s_add_u32 s24, s24, s25")
    e("s_lshr_b32 s26, s19, 1")
    e("s_mul_i32 s26, s26, 224")
    e("s_add_u32 s24, s24, s26")
    e("s_lshl_b32 s26, s20, 5")
    e("s_add_u32 s24, s24, s26")
    e("s_lshl_b32 s24, s24, 1")
    e("v_and_b32 v2, 31, v0")
    e("v_mul_u32_u24 v2, 1792, v2")
    e("v_lshrrev_b32 v3, 6, v0")
    e("v_lshlrev_b32 v3, 4, v3")
    e("v_add_u32 v2, v2, v3")
    e("v_bfe_u32 v3, v0, 5, 1")
    e("v_lshlrev_b32 v3, 3, v3")
    e("v_add_u32 v2, v2, v3")
    for h in range(1, 8):
        e(f"s_waitcnt vmcnt({7-h})")
        for i in range(4):
            e(f"v_add_f32 v{8+i}, v{8+i}, v{8+4*h+i}")
    e("v_cvt_pk_bf16_f32 v4, v8, v9")
    e("v_cvt_pk_bf16_f32 v5, v10, v11")
    e("buffer_store_dwordx2 v[4:5], v2, s[12:15], s24 offen")
    A.label("R_exit")
    e("s_endpgm")
    return A.lines


def kd(name, vgpr, sgpr):
    acc = (vgpr + 3) // 4 * 4
    return f""".amdhsa_kernel {name}
  .amdhsa_next_free_vgpr {vgpr}
  .amdhsa_next_free_sgpr {sgpr}
  .amdhsa_accum_offset {acc}
  .amdhsa_group_segment_fixed_size 0
  .amdhsa_kernarg_size 104
  .amdhsa_user_sgpr_count 2
  .amdhsa_user_sgpr_kernarg_segment_ptr 1
  .amdhsa_system_sgpr_workgroup_id_x 1
.end_amdhsa_kernel
"""


def main():
    out = []
    out.append(f"; @launch kernel={KMAIN} grid=(256,1,1) block=(512,1,1) lds=163840")
    out.append(f"; @launch kernel={KRED} grid=(896,1,1) block=(256,1,1) lds=0")
    out.append('.amdgcn_target "amdgcn-amd-amdhsa--gfx950"')
    out.append(".text")
    for name, lines in ((KMAIN, gen_main()), (KRED, gen_reduce())):
        out.append(f".globl {name}")
        out.append(".p2align 8")
        out.append(f".type {name},@function")
        out += lines
    out.append('.section .rodata,"a"')
    out.append(".p2align 6")
    out.append(kd(KMAIN, 256, 96))
    out.append(".p2align 6")
    out.append(kd(KRED, 40, 32))
    open(sys.argv[1], "w").write("\n".join(out) + "\n")


main()
```

```python
import sys, math

NAME = "concat_heads__gqa_block_cached__gqa_block_cached__near_ridge"
KMAIN = NAME + "_kernel"
KRED = "reduce_partials_kernel"

OPT = dict(kvdelay=0, nt=1, stamp=0, nocompute=0, nodma=0, warm=1, warmt=20)
for a in sys.argv[2:]:
    k, v = a.split("=")
    OPT[k] = int(v)


class Asm:
    def __init__(self):
        self.lines = []
        self.lds = []
        self.nbar = 0
        self.vm = []

    def e(self, s):
        if OPT["nodma"] and s.endswith(" lds"):
            return
        if OPT["nocompute"] and (s.startswith("ds_read") or s.startswith("v_mfma") or s.startswith("v_exp") or s.startswith("v_fma")):
            return
        self.lines.append("    " + s)

    def label(self, s):
        self.lines.append(s + ":")

    def c(self, s):
        self.lines.append("    ; " + s)

    def lds_issue(self, tag, s):
        self.e(s)
        self.lds.append(tag)

    def lds_wait(self, tag):
        idx = max(i for i, t in enumerate(self.lds) if t == tag)
        n = len(self.lds) - 1 - idx
        assert n <= 15
        self.e(f"s_waitcnt lgkmcnt({n})")
        self.lds = self.lds[idx + 1:]

    def lds_wait_all(self):
        self.e("s_waitcnt lgkmcnt(0)")
        self.lds = []

    def vm_issue(self, tag, s):
        self.e(s)
        self.vm.append(tag)

    def vm_wait(self, tag):
        idx = max(i for i, t in enumerate(self.vm) if t == tag)
        n = len(self.vm) - 1 - idx
        assert n <= 63
        self.e(f"s_waitcnt vmcnt({n})")
        self.vm = self.vm[idx + 1:]

    def stamp(self, i):
        if not OPT["stamp"]:
            return
        assert not self.lds
        self.e(f"s_memrealtime s[{76+2*i}:{77+2*i}]")
        self.e("s_waitcnt lgkmcnt(0)")

    def stamp_flush(self, n):
        if not OPT["stamp"]:
            return
        e = self.e
        e("s_lshl_b32 s92, s2, 3")
        e(f"s_add_u32 s92, s92, s{S_WID}")
        e("s_lshl_b32 s92, s92, 7")
        e(f"s_add_u32 s92, s92, {64<<20}")
        e(f"s_add_u32 s92, s{S_WS}, s92")
        e(f"s_addc_u32 s93, s{S_WS+1}, 0")
        e("s_mov_b32 s94, 128")
        e("s_mov_b32 s95, 0x00020000")
        e("v_mov_b32 v2, 0")
        for i in range(n):
            e(f"v_mov_b32 v4, s{76+2*i}")
            e(f"v_mov_b32 v5, s{77+2*i}")
            e(f"buffer_store_dwordx2 v[4:5], v2, s[92:95], 0 offen offset:{8*i}")
            e("s_nop 1")

    def barrier(self):
        self.e("s_barrier")
        self.nbar += 1


def vr(a, n):
    return f"v[{a}:{a+n-1}]"


def sr(a, n):
    return f"s[{a}:{a+n-1}]"


SLOT = 32768
NT = " nt" if OPT["nt"] else ""

S_BLK, S_HKV, S_B, S_WID = 34, 35, 36, 37
S_T0, S_T1, S_T2, S_T3 = 60, 61, 62, 63
SRD0, SRD1, SRD2 = 40, 44, 48
S_SOFF, S_M0, S_CNT, S_DELTA, S_SLOTI, S_C = 52, 53, 54, 55, 56, 57
S_X, S_K, S_V, S_WQ, S_WO = 64, 66, 68, 70, 72
S_OUT, S_DBG, S_WS = 28, 30, 32

V_O = 0
V_Q = 128
V_S = 192
V_P = 208
V_F = 216
V_AK = 232
V_AV = 240
V_MC, V_L = 244, 245
V_T = 246
V_LANE = 252
V_X1, V_X2, V_X3 = 253, 254, 255


def gen_main():
    A = Asm()
    e = A.e
    A.label(KMAIN)
    e("s_cmp_ge_u32 s2, 256")
    e("s_cbranch_scc1 L_exit")
    e("s_load_dwordx16 s[8:23], s[0:1], 0")
    e("s_load_dwordx8 s[24:31], s[0:1], 64")
    e("s_load_dwordx2 s[32:33], s[0:1], 96")
    e(f"s_and_b32 s{S_T0}, s2, 7")
    e(f"s_lshl_b32 s{S_T0}, s{S_T0}, 1")
    e(f"s_lshr_b32 s{S_T1}, s2, 3")
    e(f"s_and_b32 s{S_T1}, s{S_T1}, 1")
    e(f"s_add_u32 s{S_T0}, s{S_T0}, s{S_T1}")
    e(f"s_lshr_b32 s{S_B}, s2, 4")
    e(f"s_lshr_b32 s{S_BLK}, s{S_T0}, 3")
    e(f"s_and_b32 s{S_HKV}, s{S_T0}, 7")
    e("v_lshrrev_b32 v1, 6, v0")
    e(f"v_and_b32 v{V_LANE}, 63, v0")
    e("s_nop 0")
    e(f"v_readfirstlane_b32 s{S_WID}, v1")
    e("s_waitcnt lgkmcnt(0)")
    e(f"s_cmp_eq_u32 s{S_BLK}, 0")
    e(f"s_cselect_b64 {sr(S_X,2)}, s[8:9], s[18:19]")
    e(f"s_cselect_b64 {sr(S_K,2)}, s[10:11], s[20:21]")
    e(f"s_cselect_b64 {sr(S_V,2)}, s[12:13], s[22:23]")
    e(f"s_cselect_b64 {sr(S_WQ,2)}, s[14:15], s[24:25]")
    e(f"s_cselect_b64 {sr(S_WO,2)}, s[16:17], s[26:27]")
    A.stamp(0)
    e(f"s_cmp_ge_u32 s{S_WID}, 4")
    e("s_cbranch_scc1 L_producer")

    L = V_LANE
    e(f"s_lshl_b32 s{S_T0}, s{S_HKV}, 10")
    e(f"s_add_u32 s{SRD0}, s{S_WQ}, s{S_T0}")
    e(f"s_addc_u32 s{SRD0+1}, s{S_WQ+1}, 0")
    e(f"s_sub_u32 s{SRD0+2}, {448*8192}, s{S_T0}")
    e(f"s_mov_b32 s{SRD0+3}, 0x00020000")
    e(f"s_mul_i32 s{S_T0}, s{S_B}, 57344")
    e(f"s_add_u32 s{SRD1}, s{S_X}, s{S_T0}")
    e(f"s_addc_u32 s{SRD1+1}, s{S_X+1}, 0")
    e(f"s_mov_b32 s{SRD1+2}, 57344")
    e(f"s_mov_b32 s{SRD1+3}, 0x00020000")
    e(f"s_lshl_b32 s{S_T0}, s{S_BLK}, 4")
    e(f"s_add_u32 s{S_T0}, s{S_T0}, s{S_B}")
    e(f"s_lshl_b32 s{S_T0}, s{S_T0}, 3")
    e(f"s_add_u32 s{S_T0}, s{S_T0}, s{S_HKV}")
    e(f"s_mul_i32 s{S_T0}, s{S_T0}, 114688")
    e(f"s_add_u32 s{SRD2}, s{S_WS}, s{S_T0}")
    e(f"s_addc_u32 s{SRD2+1}, s{S_WS+1}, 0")
    e(f"s_mov_b32 s{SRD2+2}, 114688")
    e(f"s_mov_b32 s{SRD2+3}, 0x00020000")
    S_HEAD, S_QB = 58, 59
    e(f"s_lshr_b32 s{S_HEAD}, s{S_WID}, 1")
    e(f"s_and_b32 s{S_QB}, s{S_WID}, 1")

    Vh, Vu, Vr, Vcc = V_T, V_T + 1, V_T + 2, V_T + 3
    Vt0, Vt1 = V_T + 4, V_T + 5
    e(f"v_lshrrev_b32 v{Vh}, 5, v{L}")
    e(f"v_bfe_u32 v{Vu}, v{L}, 4, 1")
    e(f"v_bfe_u32 v{Vr}, v{L}, 2, 2")
    e(f"v_and_b32 v{Vcc}, 3, v{L}")

    V_XF = V_S
    V_OFFW = V_P
    V_OFFX = V_P + 4
    V_AW = V_AK
    WBASE = 3 * SLOT
    e(f"s_lshl_b32 s{S_T0}, s{S_WID}, 15")
    for jj in range(4):
        e(f"v_xor_b32 v{Vt0}, {jj<<2}, v{L}")
        e(f"v_lshlrev_b32 v{Vt0}, 4, v{Vt0}")
        e(f"v_add_u32 v{Vt0}, {jj*8192 - jj*1024}, v{Vt0}")
        e(f"v_add_u32 v{V_OFFW+jj}, s{S_T0}, v{Vt0}")
    e(f"v_and_b32 v{Vt0}, 31, v{L}")
    e(f"s_lshl_b32 s{S_T0}, s{S_QB}, 5")
    e(f"v_add_u32 v{Vt0}, s{S_T0}, v{Vt0}")
    e(f"v_mul_u32_u24 v{Vt0}, 896, v{Vt0}")
    e(f"v_lshlrev_b32 v{Vt1}, 4, v{Vh}")
    e(f"v_add_u32 v{V_OFFX}, v{Vt0}, v{Vt1}")
    e(f"v_lshlrev_b32 v{Vt0}, 3, v{Vh}")
    e(f"v_add_u32 v{Vt0}, v{Vt0}, v{Vr}")
    e(f"v_lshlrev_b32 v{Vt0}, 10, v{Vt0}")
    e(f"v_lshlrev_b32 v{Vt1}, 5, v{Vu}")
    e(f"v_add_u32 v{Vt0}, v{Vt0}, v{Vt1}")
    e(f"v_and_b32 v{Vt1}, 1, v{Vcc}")
    e(f"v_lshlrev_b32 v{Vt1}, 4, v{Vt1}")
    e(f"v_add_u32 v{Vt0}, v{Vt0}, v{Vt1}")
    e(f"v_lshrrev_b32 v{Vt1}, 1, v{Vcc}")
    e(f"v_lshlrev_b32 v{Vt1}, 3, v{Vt1}")
    e(f"v_add_u32 v{Vt0}, v{Vt0}, v{Vt1}")
    e(f"s_lshl_b32 s{S_T0}, s{S_HEAD}, 9")
    e(f"s_add_u32 s{S_T0}, s{S_T0}, {WBASE}")
    e(f"v_add_u32 v{Vt0}, s{S_T0}, v{Vt0}")
    for t2 in range(4):
        e(f"v_xor_b32 v{Vt1}, {t2}, v{Vr}")
        e(f"v_lshlrev_b32 v{Vt1}, 6, v{Vt1}")
        e(f"v_add_u32 v{V_AW+t2}, v{Vt0}, v{Vt1}")

    def w_issue(j):
        e(f"s_mov_b32 s{S_SOFF}, {j*131072}")
        e(f"s_add_u32 m0, s{S_M0}, {(j%4)*16384}")
        e("s_nop 0")
        for jj in range(4):
            A.vm_issue(("w", j), f"buffer_load_dwordx4 v{V_OFFW+jj}, {sr(SRD0,4)}, s{S_SOFF} offen offset:{jj*1024} lds")

    def x_issue(j):
        A.vm_issue(("x", j), f"buffer_load_dwordx4 {vr(V_Q+4*(j%16),4)}, v{V_OFFX}, {sr(SRD1,4)}, 0 offen offset:{j*32}")

    e(f"s_lshl_b32 s{S_M0}, s{S_WID}, 12")
    e(f"s_add_u32 s{S_M0}, s{S_M0}, {WBASE}")
    w_issue(0)
    if OPT["warm"]:
        e(f"s_mul_i32 s{S_T0}, s{S_B}, 28")
        e(f"s_mul_i32 s{S_T1}, s{S_WID}, 7")
        e(f"s_add_u32 s{S_T0}, s{S_T0}, s{S_T1}")
        e(f"s_lshl_b32 s{S_T0}, s{S_T0}, 13")
        e(f"v_lshlrev_b32 v{Vt0}, 4, v{L}")
        for i in range(7):
            A.vm_issue(("warm", 0), f"buffer_load_dwordx4 {vr(V_O+4*i,4)}, v{Vt0}, {sr(SRD0,4)}, s{S_T0} offen")
            if i < 6:
                e(f"s_add_u32 s{S_T0}, s{S_T0}, 8192")
    for j in range(16):
        x_issue(j)
    for j in range(1, 3):
        w_issue(j)
    NJ = 28
    for j in range(NJ):
        A.c(f"---- Q-proj step {j}")
        if j == 0:
            A.vm_wait(("x", 15))
        else:
            A.vm_wait(("w", j))
        A.barrier()
        if OPT["stamp"] == 2 and j in (0, 7, 14, 21):
            A.stamp(1 + j // 7)
        if j + 3 < NJ:
            w_issue(j + 3)

        def rd(T):
            f = V_F + 4 * (T % 4)
            base = (j % 4) * 16384 + (T >> 2) * 256
            A.lds_issue(("w", T), f"ds_read_b64_tr_b16 {vr(f,2)}, v{V_AW+(T&3)} offset:{base}")
            A.lds_issue(("w", T), f"ds_read_b64_tr_b16 {vr(f+2,2)}, v{V_AW+(T&3)} offset:{base+4096}")
        for T in range(4):
            rd(T)
        for T in range(8):
            A.lds_wait(("w", T))
            cacc = "0" if j == 0 else vr(V_O + 16 * T, 16)
            e(f"v_mfma_f32_32x32x16_bf16 {vr(V_O+16*T,16)}, {vr(V_F+4*(T%4),4)}, {vr(V_Q+4*(j%16),4)}, {cacc}")
            if T + 4 < 8:
                rd(T + 4)
        if j + 16 < NJ:
            x_issue(j + 16)
    assert not A.vm
    A.stamp(5 if OPT["stamp"] == 2 else 1)
    A.c("---- main loop address setup")
    e(f"v_and_b32 v{Vt0}, 31, v{L}")
    e(f"v_and_b32 v{Vt1}, 15, v{L}")
    e(f"v_lshlrev_b32 v{Vt0}, 9, v{Vt0}")
    for k7 in range(8):
        e(f"v_add_u32 v{V_X1}, {2*k7}, v{Vh}")
        e(f"v_xor_b32 v{V_X1}, v{V_X1}, v{Vt1}")
        e(f"v_lshlrev_b32 v{V_X1}, 4, v{V_X1}")
        e(f"v_add_u32 v{V_AK+k7}, v{Vt0}, v{V_X1}")
    e(f"v_lshlrev_b32 v{Vt0}, 2, v{Vh}")
    e(f"v_add_u32 v{Vt0}, v{Vt0}, v{Vr}")
    e(f"v_lshlrev_b32 v{Vt0}, 9, v{Vt0}")
    e(f"v_lshlrev_b32 v{Vt1}, 5, v{Vu}")
    e(f"v_add_u32 v{Vt0}, v{Vt0}, v{Vt1}")
    e(f"v_lshlrev_b32 v{Vt1}, 3, v{Vcc}")
    e(f"v_add_u32 v{Vt0}, v{Vt0}, v{Vt1}")
    e(f"v_add_u32 v{Vt0}, 16384, v{Vt0}")
    for t2 in range(4):
        e(f"v_xor_b32 v{Vt1}, {t2}, v{Vr}")
        e(f"v_lshlrev_b32 v{Vt1}, 6, v{Vt1}")
        e(f"v_add_u32 v{V_AV+t2}, v{Vt0}, v{Vt1}")
    e("s_nop 7")
    for T in range(8):
        for u in range(2):
            for r in range(4):
                a = V_O + 16 * T + 8 * u + 2 * r
                e(f"v_cvt_pk_bf16_f32 v{V_Q + 4*(2*T+u) + r}, v{a}, v{a+1}")
    for i in range(128):
        e(f"v_mov_b32 v{V_O+i}, 0")
    e(f"v_mov_b32 v{V_MC}, 0xff800000")
    e(f"v_mov_b32 v{V_L}, 0")
    cval = math.log2(math.e) / 16.0
    import struct
    cbits = struct.unpack("<I", struct.pack("<f", cval))[0]
    e(f"s_mov_b32 s{S_C}, 0x{cbits:08x}")
    e(f"s_mov_b32 s{S_CNT}, 0")
    e(f"s_mov_b32 s{S_SLOTI}, 0")
    e(f"s_mov_b32 s74, {SLOT}")
    e(f"s_mov_b32 s75, {(-4*SLOT) & 0xffffffff}")

    A.label("L_loop")
    nb0 = A.nbar
    A.barrier()

    def rdK(ks):
        f = V_F + 4 * (ks % 4)
        A.lds_issue(("k", ks), f"ds_read_b128 {vr(f,4)}, v{V_AK+(ks&7)} offset:{(ks>>3)*256}")

    pv = [(dt, kk) for dt in range(8) for kk in range(2)]

    def rdV(i):
        dt, kk = pv[i]
        f = V_F + 4 * (i % 4)
        base = kk * 8192 + (dt >> 2) * 256
        A.lds_issue(("v", i), f"ds_read_b64_tr_b16 {vr(f,2)}, v{V_AV+(dt&3)} offset:{base}")
        A.lds_issue(("v", i), f"ds_read_b64_tr_b16 {vr(f+2,2)}, v{V_AV+(dt&3)} offset:{base+4096}")

    for ks in range(4):
        rdK(ks)
    for ks in range(16):
        A.lds_wait(("k", ks))
        cacc = "0" if ks == 0 else vr(V_S, 16)
        e(f"v_mfma_f32_32x32x16_bf16 {vr(V_S,16)}, {vr(V_F+4*(ks%4),4)}, {vr(V_Q+4*ks,4)}, {cacc}")
        if ks + 4 < 16:
            rdK(ks + 4)
        else:
            rdV(ks - 12)
    e(f"s_add_u32 s{S_SLOTI}, s{S_SLOTI}, 1")
    e(f"s_cmp_eq_u32 s{S_SLOTI}, 5")
    e(f"s_cselect_b32 s{S_DELTA}, s75, s74")
    e(f"s_cselect_b32 s{S_SLOTI}, 0, s{S_SLOTI}")
    for k7 in range(8):
        e(f"v_add_u32 v{V_AK+k7}, s{S_DELTA}, v{V_AK+k7}")
    e("s_nop 3")
    S = V_S
    t0, t1, t2_, t3, t4, t5 = V_T, V_T + 1, V_T + 2, V_T + 3, V_T + 4, V_T + 5
    e(f"v_max3_f32 v{t0}, v{S}, v{S+1}, v{S+2}")
    e(f"v_max3_f32 v{t1}, v{S+3}, v{S+4}, v{S+5}")
    e(f"v_max3_f32 v{t2_}, v{S+6}, v{S+7}, v{S+8}")
    e(f"v_max3_f32 v{t3}, v{S+9}, v{S+10}, v{S+11}")
    e(f"v_max3_f32 v{t4}, v{S+12}, v{S+13}, v{S+14}")
    e(f"v_max3_f32 v{t0}, v{t0}, v{t1}, v{S+15}")
    e(f"v_max3_f32 v{t2_}, v{t2_}, v{t3}, v{t4}")
    e(f"v_max_f32 v{t0}, v{t0}, v{t2_}")
    e(f"v_mov_b32 v{t1}, v{t0}")
    e("s_nop 1")
    e(f"v_permlane32_swap_b32 v{t0}, v{t1}")
    e("s_nop 1")
    e(f"v_max_f32 v{t0}, v{t0}, v{t1}")
    e(f"v_mul_f32 v{t0}, s{S_C}, v{t0}")
    e(f"v_sub_f32 v{t1}, v{t0}, v{V_MC}")
    e(f"v_cmp_lt_f32 vcc, 0x41000000, v{t1}")
    e("s_nop 1")
    e("s_cbranch_vccnz L_rescale")
    A.label("L_rescale_done")
    for i in range(16):
        e(f"v_fma_f32 v{S+i}, v{S+i}, s{S_C}, -v{V_MC}")
    for i in range(16):
        e(f"v_exp_f32 v{S+i}, v{S+i}")
    e("s_nop 0")
    e(f"v_add_f32 v{t0}, v{S}, v{S+1}")
    e(f"v_add_f32 v{t1}, v{S+2}, v{S+3}")
    e(f"v_add_f32 v{t2_}, v{S+4}, v{S+5}")
    e(f"v_add_f32 v{t3}, v{S+6}, v{S+7}")
    for i in range(8):
        e(f"v_cvt_pk_bf16_f32 v{V_P+i}, v{S+2*i}, v{S+2*i+1}")
    e(f"v_add_f32 v{t0}, v{t0}, v{S+8}")
    e(f"v_add_f32 v{t1}, v{t1}, v{S+9}")
    e(f"v_add_f32 v{t2_}, v{t2_}, v{S+10}")
    e(f"v_add_f32 v{t3}, v{t3}, v{S+11}")
    e(f"v_add_f32 v{t0}, v{t0}, v{S+12}")
    e(f"v_add_f32 v{t1}, v{t1}, v{S+13}")
    e(f"v_add_f32 v{t2_}, v{t2_}, v{S+14}")
    e(f"v_add_f32 v{t3}, v{t3}, v{S+15}")
    for i in range(16):
        dt, kk = pv[i]
        A.lds_wait(("v", i))
        e(f"v_mfma_f32_32x32x16_bf16 {vr(V_O+16*dt,16)}, {vr(V_F+4*(i%4),4)}, {vr(V_P+4*kk,4)}, {vr(V_O+16*dt,16)}")
        if i + 4 < 16:
            rdV(i + 4)
        if i == 0:
            e(f"v_add_f32 v{t0}, v{t0}, v{t1}")
            e(f"v_add_f32 v{t2_}, v{t2_}, v{t3}")
        if i == 1:
            e(f"v_add_f32 v{t0}, v{t0}, v{t2_}")
            e(f"v_add_f32 v{V_L}, v{V_L}, v{t0}")
    assert not A.lds
    for t2 in range(4):
        e(f"v_add_u32 v{V_AV+t2}, s{S_DELTA}, v{V_AV+t2}")
    e(f"s_add_u32 s{S_CNT}, s{S_CNT}, 1")
    e(f"s_cmp_lt_u32 s{S_CNT}, 32")
    e("s_cbranch_scc1 L_loop")
    A.nbar = nb0 + 32

    A.stamp(6 if OPT["stamp"] == 2 else 2)
    A.c("---- finalize: normalise O, write bf16 frags to LDS")
    e(f"v_mov_b32 v{t1}, v{V_L}")
    e("s_nop 1")
    e(f"v_permlane32_swap_b32 v{V_L}, v{t1}")
    e("s_nop 1")
    e(f"v_add_f32 v{t0}, v{V_L}, v{t1}")
    e(f"v_rcp_f32 v{t0}, v{t0}")
    e(f"s_lshl_b32 s{S_T0}, s{S_QB}, 14")
    e(f"s_add_u32 s{S_T1}, s{S_T0}, {4*SLOT}")
    e(f"s_cmp_eq_u32 s{S_HEAD}, 0")
    e(f"s_cselect_b32 s{S_T2}, s{S_T1}, s{S_T0}")
    V_AB = V_AK
    V_AOWN = V_AK + 2
    V_AWO = V_AK + 4
    e(f"v_lshlrev_b32 v{t1}, 4, v{L}")
    e(f"v_add_u32 v{V_AB}, s{S_T1}, v{t1}")
    e(f"v_add_u32 v{V_AB+1}, s{S_T0}, v{t1}")
    e(f"v_add_u32 v{V_AOWN}, s{S_T2}, v{t1}")
    e("s_nop 7")
    for fr in range(16):
        dt, u = fr >> 1, fr & 1
        q = V_Q + 4 * fr
        for r in range(4):
            a = V_O + 16 * dt + 8 * u + 2 * r
            e(f"v_mul_f32 v{a}, v{a}, v{t0}")
            e(f"v_mul_f32 v{a+1}, v{a+1}, v{t0}")
            e(f"v_cvt_pk_bf16_f32 v{q+r}, v{a}, v{a+1}")
        e(f"ds_write_b128 v{V_AOWN}, {vr(q,4)} offset:{fr*1024}")
    e(f"v_lshrrev_b32 v{Vh}, 5, v{L}")
    e(f"v_bfe_u32 v{Vu}, v{L}, 4, 1")
    e(f"v_bfe_u32 v{Vr}, v{L}, 2, 2")
    e(f"v_and_b32 v{Vcc}, 3, v{L}")
    e(f"v_lshlrev_b32 v{Vt0}, 2, v{Vh}")
    e(f"v_add_u32 v{Vt0}, v{Vt0}, v{Vr}")
    e(f"v_mul_u32_u24 v{Vt0}, 896, v{Vt0}")
    e(f"v_lshlrev_b32 v{Vt1}, 5, v{Vu}")
    e(f"v_add_u32 v{Vt0}, v{Vt0}, v{Vt1}")
    e(f"v_lshlrev_b32 v{Vt1}, 3, v{Vcc}")
    e(f"v_add_u32 v{Vt0}, v{Vt0}, v{Vt1}")
    e(f"s_mul_i32 s{S_T0}, s{S_HEAD}, 448")
    e(f"s_add_u32 s{S_T0}, s{S_T0}, {2*SLOT}")
    e(f"v_add_u32 v{Vt0}, s{S_T0}, v{Vt0}")
    e(f"v_lshrrev_b32 v{Vt1}, 1, v{Vr}")
    e(f"v_lshlrev_b32 v{Vt1}, 6, v{Vt1}")
    e(f"v_add_u32 v{V_X1}, v{Vt0}, v{Vt1}")
    e(f"v_sub_u32 v{V_X2}, v{Vt0}, v{Vt1}")
    e(f"s_cmp_eq_u32 s{S_HEAD}, 0")
    e("s_cselect_b64 vcc, -1, 0")
    e("s_nop 1")
    e(f"v_cndmask_b32 v{V_AWO}, v{V_X2}, v{V_X1}, vcc")
    e(f"v_cndmask_b32 v{V_AWO+1}, v{V_X1}, v{V_X2}, vcc")
    e("s_waitcnt lgkmcnt(0)")

    if OPT["stamp"] == 1: A.stamp(3)
    V_ACC = 0
    V_BF = V_S
    ring = [2, 3, 1]
    for k in range(16):
        A.c(f"---- O-proj stage {k}")
        A.barrier()
        head = k >> 3
        for ksl in range(2):
            kq = 2 * k + ksl
            A.lds_issue(("b", ksl), f"ds_read_b128 {vr(V_BF+4*ksl,4)}, v{V_AB+head} offset:{(kq&15)*1024}")
        seq = [(ksl, nt) for ksl in range(2) for nt in range(7)]

        def rdA(i):
            ksl, nt = seq[i]
            f = V_F + 4 * (i % 4)
            base = ksl * 16 * 896 + nt * 64
            A.lds_issue(("a", i), f"ds_read_b64_tr_b16 {vr(f,2)}, v{V_AWO+(nt&1)} offset:{base}")
            A.lds_issue(("a", i), f"ds_read_b64_tr_b16 {vr(f+2,2)}, v{V_AWO+(nt&1)} offset:{base+8*896}")
        for i in range(4):
            rdA(i)
        for i in range(14):
            ksl, nt = seq[i]
            A.lds_wait(("a", i))
            cacc = "0" if (k == 0 and ksl == 0) else vr(V_ACC + 16 * nt, 16)
            e(f"v_mfma_f32_32x32x16_bf16 {vr(V_ACC+16*nt,16)}, {vr(V_F+4*(i%4),4)}, {vr(V_BF+4*ksl,4)}, {cacc}")
            if i + 4 < 14:
                rdA(i + 4)
        assert not A.lds
        if k < 15:
            d = (ring[(k + 1) % 3] - ring[k % 3]) * SLOT
            e(f"v_add_u32 v{V_AWO}, {d & 0xffffffff}, v{V_AWO}")
            e(f"v_add_u32 v{V_AWO+1}, {d & 0xffffffff}, v{V_AWO+1}")
    if OPT["stamp"] == 1: A.stamp(4)
    A.c("---- store partials")
    e(f"v_lshlrev_b32 v{t0}, 4, v{L}")
    e(f"s_mul_i32 s{S_SOFF}, s{S_WID}, 28672")
    e("s_nop 15")
    for nt in range(7):
        for g in range(4):
            e(f"buffer_store_dwordx4 {vr(V_ACC+16*nt+4*g,4)}, v{t0}, {sr(SRD2,4)}, s{S_SOFF} offen offset:{g*1024}")
        if nt < 6:
            e(f"s_add_u32 s{S_SOFF}, s{S_SOFF}, 4096")
    if OPT["stamp"]:
        e("s_waitcnt vmcnt(0)")
    A.stamp(7 if OPT["stamp"] == 2 else 5)
    A.stamp_flush(8)
    e("s_endpgm")
    nbar_cons = A.nbar

    A.label("L_rescale")
    e(f"v_max_f32 v{t0}, v{t0}, v{V_MC}")
    e(f"v_sub_f32 v{t1}, v{V_MC}, v{t0}")
    e(f"v_exp_f32 v{t1}, v{t1}")
    e(f"v_mov_b32 v{V_MC}, v{t0}")
    e("s_nop 0")
    e(f"v_mul_f32 v{V_L}, v{V_L}, v{t1}")
    for i in range(128):
        e(f"v_mul_f32 v{V_O+i}, v{V_O+i}, v{t1}")
    e("s_branch L_rescale_done")

    A.label("L_producer")
    A.nbar = 0
    S_P = 58
    e(f"s_sub_u32 s{S_P}, s{S_WID}, 4")
    e(f"s_lshl_b32 s{S_T0}, s{S_B}, 22")
    e(f"s_lshl_b32 s{S_T1}, s{S_HKV}, 19")
    e(f"s_add_u32 s{S_T0}, s{S_T0}, s{S_T1}")
    e(f"s_add_u32 s{SRD0}, s{S_K}, s{S_T0}")
    e(f"s_addc_u32 s{SRD0+1}, s{S_K+1}, 0")
    e(f"s_mov_b32 s{SRD0+2}, 524288")
    e(f"s_mov_b32 s{SRD0+3}, 0x00020000")
    e(f"s_add_u32 s{SRD1}, s{S_V}, s{S_T0}")
    e(f"s_addc_u32 s{SRD1+1}, s{S_V+1}, 0")
    e(f"s_mov_b32 s{SRD1+2}, 524288")
    e(f"s_mov_b32 s{SRD1+3}, 0x00020000")
    e(f"s_mul_i32 s{S_T0}, s{S_HKV}, 458752")
    e(f"s_add_u32 s{SRD2}, s{S_WO}, s{S_T0}")
    e(f"s_addc_u32 s{SRD2+1}, s{S_WO+1}, 0")
    e(f"s_mov_b32 s{SRD2+2}, 458752")
    e(f"s_mov_b32 s{SRD2+3}, 0x00020000")
    PK, PV_, PW = 10, 14, 16
    a, b2, c2, d2 = 2, 3, 4, 5
    e(f"v_lshrrev_b32 v{a}, 5, v{L}")
    e(f"v_and_b32 v{b2}, 31, v{L}")
    e(f"s_lshl_b32 s{S_T0}, s{S_P}, 3")
    e(f"v_add_u32 v{c2}, s{S_T0}, v{a}")
    e(f"v_lshlrev_b32 v{d2}, 9, v{c2}")
    for j in range(4):
        e(f"v_add_u32 v6, {2*j}, v{c2}")
        e("v_and_b32 v6, 15, v6")
        e(f"v_xor_b32 v6, v6, v{b2}")
        e("v_lshlrev_b32 v6, 4, v6")
        e(f"v_add_u32 v{PK+j}, v{d2}, v6")
    for jp in range(2):
        e(f"v_add_u32 v6, {2*jp}, v{a}")
        e("v_lshlrev_b32 v6, 2, v6")
        e(f"v_xor_b32 v6, v6, v{b2}")
        e("v_lshlrev_b32 v6, 4, v6")
        e(f"v_add_u32 v{PV_+jp}, v{d2}, v6")
    e(f"s_mul_i32 s{S_T0}, s{S_P}, 448")
    e(f"s_mov_b32 s{S_T1}, {(1<<32)//56 + 1}")
    for j in range(7):
        e(f"v_add_u32 v6, {64*j}, v{L}")
        e(f"v_add_u32 v6, s{S_T0}, v6")
        e(f"v_mul_hi_u32 v7, v6, s{S_T1}")
        e("v_mul_u32_u24 v8, 56, v7")
        e("v_sub_u32 v8, v6, v8")
        e("v_bfe_u32 v9, v7, 1, 1")
        e("v_lshlrev_b32 v9, 2, v9")
        e("v_xor_b32 v8, v8, v9")
        e("v_lshlrev_b32 v8, 4, v8")
        e("v_mul_u32_u24 v7, 896, v7")
        e(f"v_add_u32 v{PW+j}, v7, v8")
    e(f"s_lshl_b32 s{S_M0}, s{S_P}, 12")
    e(f"s_mul_i32 s{S_T3}, s{S_P}, 7168")

    def kv_issue_static(stage):
        slot = stage % 5
        e(f"s_mov_b32 s{S_SOFF}, {stage*16384}")
        e(f"s_add_u32 m0, s{S_M0}, {slot*SLOT}")
        e("s_nop 0")
        for j in range(4):
            A.vm_issue(("kv", stage), f"buffer_load_dwordx4 v{PK+j}, {sr(SRD0,4)}, s{S_SOFF} offen offset:{j*1024}{NT} lds")
        e(f"s_add_u32 m0, s{S_M0}, {slot*SLOT+16384}")
        e("s_nop 0")
        for j in range(4):
            A.vm_issue(("kv", stage), f"buffer_load_dwordx4 v{PV_+(j&1)}, {sr(SRD1,4)}, s{S_SOFF} offen offset:{j*1024}{NT} lds")

    def wo_issue(k, slot):
        e(f"s_mov_b32 s{S_SOFF}, {k*28672}")
        for j in range(7):
            e(f"s_add_u32 m0, s{S_T3}, {slot*SLOT + j*1024}")
            e("s_nop 0")
            A.vm_issue(("wo", k), f"buffer_load_dwordx4 v{PW+j}, {sr(SRD2,4)}, s{S_SOFF} offen lds")

    def wo_warm():
        e(f"s_mul_i32 s{S_T0}, s{S_B}, 28672")
        e(f"s_add_u32 s{S_T0}, s{S_T0}, s{S_T3}")
        e(f"v_lshlrev_b32 v6, 4, v{L}")
        for i in range(7):
            A.vm_issue(("warm", 0), f"buffer_load_dwordx4 {vr(32+4*i,4)}, v6, {sr(SRD2,4)}, s{S_T0} offen")
            if i < 6:
                e(f"s_add_u32 s{S_T0}, s{S_T0}, 1024")

    A.vm = []
    if OPT["kvdelay"] == 0:
        for st in range(3):
            kv_issue_static(st)
    A.stamp(1)
    for j in range(28):
        A.barrier()
        if OPT["kvdelay"] and j + 1 == OPT["kvdelay"]:
            for st in range(3):
                kv_issue_static(st)
    A.stamp(2)
    for t in range(32):
        A.vm_wait(("kv", t))
        A.barrier()
        if t == 0:
            kv_issue_static(3)
            kv_issue_static(4)
        elif t + 4 < 32:
            kv_issue_static(t + 4)
        elif t == 28:
            wo_issue(0, 2)
        elif t == 29:
            wo_issue(1, 3)
        if OPT["warm"] and t == OPT["warmt"]:
            wo_warm()
    A.stamp(3)
    for k in range(16):
        A.vm_wait(("wo", k))
        A.barrier()
        if k + 2 < 16:
            wo_issue(k + 2, ring[(k + 2) % 3])
    assert A.nbar == nbar_cons, (A.nbar, nbar_cons)
    A.stamp(4)
    A.stamp(5)
    A.stamp(6)
    A.stamp(7)
    A.stamp_flush(8)
    A.label("L_exit")
    e("s_endpgm")
    return A.lines


def gen_reduce():
    A = Asm()
    e = A.e
    A.label(KRED)
    e("s_cmp_ge_u32 s2, 896")
    e("s_cbranch_scc1 R_exit")
    e("s_load_dwordx2 s[4:5], s[0:1], 80")
    e("s_load_dwordx2 s[6:7], s[0:1], 96")
    e(f"s_mov_b32 s16, {(1<<32)//28 + 1}")
    e("s_mul_hi_u32 s17, s2, s16")
    e("s_mul_i32 s18, s17, 28")
    e("s_sub_u32 s18, s2, s18")
    e(f"s_mov_b32 s16, {(1<<32)//7 + 1}")
    e("s_mul_hi_u32 s19, s18, s16")
    e("s_mul_i32 s20, s19, 7")
    e("s_sub_u32 s20, s18, s20")
    e("s_waitcnt lgkmcnt(0)")
    e("s_mul_i32 s21, s17, 917504")
    e("s_lshl_b32 s22, s18, 12")
    e("s_add_u32 s21, s21, s22")
    e("s_add_u32 s8, s6, s21")
    e("s_addc_u32 s9, s7, 0")
    e(f"s_mov_b32 s10, {7*114688+4096}")
    e("s_mov_b32 s11, 0x00020000")
    e("s_mov_b32 s12, s4")
    e("s_mov_b32 s13, s5")
    e("s_mov_b32 s14, 1835008")
    e("s_mov_b32 s15, 0x00020000")
    e("v_lshlrev_b32 v1, 4, v0")
    for h in range(8):
        e(f"s_mov_b32 s23, {h*114688}")
        e(f"buffer_load_dwordx4 {vr(8+4*h,4)}, v1, s[8:11], s23 offen")
    e("s_and_b32 s24, s17, 15")
    e("s_lshr_b32 s25, s17, 4")
    e("s_lshl_b32 s24, s24, 6")
    e("s_and_b32 s26, s19, 1")
    e("s_lshl_b32 s26, s26, 5")
    e("s_add_u32 s24, s24, s26")
    e("s_mul_i32 s24, s24, 896")
    e("s_mul_i32 s25, s25, 448")
    e("s_add_u32 s24, s24, s25")
    e("s_lshr_b32 s26, s19, 1")
    e("s_mul_i32 s26, s26, 224")
    e("s_add_u32 s24, s24, s26")
    e("s_lshl_b32 s26, s20, 5")
    e("s_add_u32 s24, s24, s26")
    e("s_lshl_b32 s24, s24, 1")
    e("v_and_b32 v2, 31, v0")
    e("v_mul_u32_u24 v2, 1792, v2")
    e("v_lshrrev_b32 v3, 6, v0")
    e("v_lshlrev_b32 v3, 4, v3")
    e("v_add_u32 v2, v2, v3")
    e("v_bfe_u32 v3, v0, 5, 1")
    e("v_lshlrev_b32 v3, 3, v3")
    e("v_add_u32 v2, v2, v3")
    for h in range(1, 8):
        e(f"s_waitcnt vmcnt({7-h})")
        for i in range(4):
            e(f"v_add_f32 v{8+i}, v{8+i}, v{8+4*h+i}")
    e("v_cvt_pk_bf16_f32 v4, v8, v9")
    e("v_cvt_pk_bf16_f32 v5, v10, v11")
    e("buffer_store_dwordx2 v[4:5], v2, s[12:15], s24 offen")
    A.label("R_exit")
    e("s_endpgm")
    return A.lines


def kd(name, vgpr, sgpr):
    acc = (vgpr + 3) // 4 * 4
    return f""".amdhsa_kernel {name}
  .amdhsa_next_free_vgpr {vgpr}
  .amdhsa_next_free_sgpr {sgpr}
  .amdhsa_accum_offset {acc}
  .amdhsa_group_segment_fixed_size 0
  .amdhsa_kernarg_size 104
  .amdhsa_user_sgpr_count 2
  .amdhsa_user_sgpr_kernarg_segment_ptr 1
  .amdhsa_system_sgpr_workgroup_id_x 1
.end_amdhsa_kernel
"""


def main():
    out = []
    out.append(f"; @launch kernel={KMAIN} grid=(256,1,1) block=(512,1,1) lds=163840")
    out.append(f"; @launch kernel={KRED} grid=(896,1,1) block=(256,1,1) lds=0")
    out.append('.amdgcn_target "amdgcn-amd-amdhsa--gfx950"')
    out.append(".text")
    for name, lines in ((KMAIN, gen_main()), (KRED, gen_reduce())):
        out.append(f".globl {name}")
        out.append(".p2align 8")
        out.append(f".type {name},@function")
        out += lines
    out.append('.section .rodata,"a"')
    out.append(".p2align 6")
    out.append(kd(KMAIN, 256, 96))
    out.append(".p2align 6")
    out.append(kd(KRED, 40, 32))
    open(sys.argv[1], "w").write("\n".join(out) + "\n")


main()
```

```python
import sys, math

NAME = "concat_heads__gqa_block_cached__gqa_block_cached__near_ridge"
KMAIN = NAME + "_kernel"
KRED = "reduce_partials_kernel"

OPT = dict(dbg=0, dbgwg=0, kvdelay=0, nt=1, stamp=0, nocompute=0, nodma=0, warm=1, warmt=20)
for a in sys.argv[2:]:
    k, v = a.split("=")
    OPT[k] = int(v)


class Asm:
    def __init__(self):
        self.lines = []
        self.lds = []
        self.nbar = 0
        self.vm = []

    def e(self, s):
        if OPT["nodma"] and s.endswith(" lds"):
            return
        if OPT["nocompute"] and (s.startswith("ds_read") or s.startswith("v_mfma") or s.startswith("v_exp") or s.startswith("v_fma")):
            return
        self.lines.append("    " + s)

    def label(self, s):
        self.lines.append(s + ":")

    def c(self, s):
        self.lines.append("    ; " + s)

    def lds_issue(self, tag, s):
        self.e(s)
        self.lds.append(tag)

    def lds_wait(self, tag):
        idx = max(i for i, t in enumerate(self.lds) if t == tag)
        n = len(self.lds) - 1 - idx
        assert n <= 15
        self.e(f"s_waitcnt lgkmcnt({n})")
        self.lds = self.lds[idx + 1:]

    def lds_wait_all(self):
        self.e("s_waitcnt lgkmcnt(0)")
        self.lds = []

    def vm_issue(self, tag, s):
        self.e(s)
        self.vm.append(tag)

    def vm_wait(self, tag):
        idx = max(i for i, t in enumerate(self.vm) if t == tag)
        n = len(self.vm) - 1 - idx
        assert n <= 63
        self.e(f"s_waitcnt vmcnt({n})")
        self.vm = self.vm[idx + 1:]

    def stamp(self, i):
        if not OPT["stamp"]:
            return
        assert not self.lds
        self.e(f"s_memrealtime s[{76+2*i}:{77+2*i}]")
        self.e("s_waitcnt lgkmcnt(0)")

    def stamp_flush(self, n):
        if not OPT["stamp"]:
            return
        e = self.e
        if OPT["dbg"]:
            self.nflush = getattr(self, "nflush", 0) + 1
            lab = f"L_nodbg{self.nflush}"
            e(f"s_cmp_lg_u32 s2, {OPT['dbgwg']}")
            e(f"s_cbranch_scc1 {lab}")
            e(f"s_and_b32 s92, s{S_WID}, 3")
            e("s_cmp_lg_u32 s92, 0")
            e(f"s_cbranch_scc1 {lab}")
            e(f"s_lshl_b32 s92, s{S_WID}, 3")
            e(f"s_add_u32 s92, s{S_DBG}, s92")
            e(f"s_addc_u32 s93, s{S_DBG+1}, 0")
            e("s_mov_b32 s94, 32")
            e("s_mov_b32 s95, 0x00020000")
            e("v_mov_b32 v2, 0")
            for i in range(n):
                e(f"s_sub_u32 s96, s{76+2*i}, s76")
                e(f"v_mov_b32 v4, s96")
                e(f"buffer_store_dword v4, v2, s[92:95], 0 offen offset:{4*i}")
                e("s_nop 1")
            self.label(lab)
            return
        e("s_lshl_b32 s92, s2, 3")
        e(f"s_add_u32 s92, s92, s{S_WID}")
        e("s_lshl_b32 s92, s92, 7")
        e(f"s_add_u32 s92, s92, {64<<20}")
        e(f"s_add_u32 s92, s{S_WS}, s92")
        e(f"s_addc_u32 s93, s{S_WS+1}, 0")
        e("s_mov_b32 s94, 128")
        e("s_mov_b32 s95, 0x00020000")
        e("v_mov_b32 v2, 0")
        for i in range(n):
            e(f"v_mov_b32 v4, s{76+2*i}")
            e(f"v_mov_b32 v5, s{77+2*i}")
            e(f"buffer_store_dwordx2 v[4:5], v2, s[92:95], 0 offen offset:{8*i}")
            e("s_nop 1")

    def barrier(self):
        self.e("s_barrier")
        self.nbar += 1


def vr(a, n):
    return f"v[{a}:{a+n-1}]"


def sr(a, n):
    return f"s[{a}:{a+n-1}]"


SLOT = 32768
NT = " nt" if OPT["nt"] else ""

S_BLK, S_HKV, S_B, S_WID = 34, 35, 36, 37
S_T0, S_T1, S_T2, S_T3 = 60, 61, 62, 63
SRD0, SRD1, SRD2 = 40, 44, 48
S_SOFF, S_M0, S_CNT, S_DELTA, S_SLOTI, S_C = 52, 53, 54, 55, 56, 57
S_X, S_K, S_V, S_WQ, S_WO = 64, 66, 68, 70, 72
S_OUT, S_DBG, S_WS = 28, 30, 32

V_O = 0
V_Q = 128
V_S = 192
V_P = 208
V_F = 216
V_AK = 232
V_AV = 240
V_MC, V_L = 244, 245
V_T = 246
V_LANE = 252
V_X1, V_X2, V_X3 = 253, 254, 255


def gen_main():
    A = Asm()
    e = A.e
    A.label(KMAIN)
    e("s_cmp_ge_u32 s2, 256")
    e("s_cbranch_scc1 L_exit")
    e("s_load_dwordx16 s[8:23], s[0:1], 0")
    e("s_load_dwordx8 s[24:31], s[0:1], 64")
    e("s_load_dwordx2 s[32:33], s[0:1], 96")
    e(f"s_and_b32 s{S_T0}, s2, 7")
    e(f"s_lshl_b32 s{S_T0}, s{S_T0}, 1")
    e(f"s_lshr_b32 s{S_T1}, s2, 3")
    e(f"s_and_b32 s{S_T1}, s{S_T1}, 1")
    e(f"s_add_u32 s{S_T0}, s{S_T0}, s{S_T1}")
    e(f"s_lshr_b32 s{S_B}, s2, 4")
    e(f"s_lshr_b32 s{S_BLK}, s{S_T0}, 3")
    e(f"s_and_b32 s{S_HKV}, s{S_T0}, 7")
    e("v_lshrrev_b32 v1, 6, v0")
    e(f"v_and_b32 v{V_LANE}, 63, v0")
    e("s_nop 0")
    e(f"v_readfirstlane_b32 s{S_WID}, v1")
    e("s_waitcnt lgkmcnt(0)")
    e(f"s_cmp_eq_u32 s{S_BLK}, 0")
    e(f"s_cselect_b64 {sr(S_X,2)}, s[8:9], s[18:19]")
    e(f"s_cselect_b64 {sr(S_K,2)}, s[10:11], s[20:21]")
    e(f"s_cselect_b64 {sr(S_V,2)}, s[12:13], s[22:23]")
    e(f"s_cselect_b64 {sr(S_WQ,2)}, s[14:15], s[24:25]")
    e(f"s_cselect_b64 {sr(S_WO,2)}, s[16:17], s[26:27]")
    A.stamp(0)
    e(f"s_cmp_ge_u32 s{S_WID}, 4")
    e("s_cbranch_scc1 L_producer")

    L = V_LANE
    e(f"s_lshl_b32 s{S_T0}, s{S_HKV}, 10")
    e(f"s_add_u32 s{SRD0}, s{S_WQ}, s{S_T0}")
    e(f"s_addc_u32 s{SRD0+1}, s{S_WQ+1}, 0")
    e(f"s_sub_u32 s{SRD0+2}, {448*8192}, s{S_T0}")
    e(f"s_mov_b32 s{SRD0+3}, 0x00020000")
    e(f"s_mul_i32 s{S_T0}, s{S_B}, 57344")
    e(f"s_add_u32 s{SRD1}, s{S_X}, s{S_T0}")
    e(f"s_addc_u32 s{SRD1+1}, s{S_X+1}, 0")
    e(f"s_mov_b32 s{SRD1+2}, 57344")
    e(f"s_mov_b32 s{SRD1+3}, 0x00020000")
    e(f"s_lshl_b32 s{S_T0}, s{S_BLK}, 4")
    e(f"s_add_u32 s{S_T0}, s{S_T0}, s{S_B}")
    e(f"s_lshl_b32 s{S_T0}, s{S_T0}, 3")
    e(f"s_add_u32 s{S_T0}, s{S_T0}, s{S_HKV}")
    e(f"s_mul_i32 s{S_T0}, s{S_T0}, 114688")
    e(f"s_add_u32 s{SRD2}, s{S_WS}, s{S_T0}")
    e(f"s_addc_u32 s{SRD2+1}, s{S_WS+1}, 0")
    e(f"s_mov_b32 s{SRD2+2}, 114688")
    e(f"s_mov_b32 s{SRD2+3}, 0x00020000")
    S_HEAD, S_QB = 58, 59
    e(f"s_lshr_b32 s{S_HEAD}, s{S_WID}, 1")
    e(f"s_and_b32 s{S_QB}, s{S_WID}, 1")

    Vh, Vu, Vr, Vcc = V_T, V_T + 1, V_T + 2, V_T + 3
    Vt0, Vt1 = V_T + 4, V_T + 5
    e(f"v_lshrrev_b32 v{Vh}, 5, v{L}")
    e(f"v_bfe_u32 v{Vu}, v{L}, 4, 1")
    e(f"v_bfe_u32 v{Vr}, v{L}, 2, 2")
    e(f"v_and_b32 v{Vcc}, 3, v{L}")

    V_XF = V_S
    V_OFFW = V_P
    V_OFFX = V_P + 4
    V_AW = V_AK
    WBASE = 3 * SLOT
    e(f"s_lshl_b32 s{S_T0}, s{S_WID}, 15")
    for jj in range(4):
        e(f"v_xor_b32 v{Vt0}, {jj<<2}, v{L}")
        e(f"v_lshlrev_b32 v{Vt0}, 4, v{Vt0}")
        e(f"v_add_u32 v{Vt0}, {jj*8192 - jj*1024}, v{Vt0}")
        e(f"v_add_u32 v{V_OFFW+jj}, s{S_T0}, v{Vt0}")
    e(f"v_and_b32 v{Vt0}, 31, v{L}")
    e(f"s_lshl_b32 s{S_T0}, s{S_QB}, 5")
    e(f"v_add_u32 v{Vt0}, s{S_T0}, v{Vt0}")
    e(f"v_mul_u32_u24 v{Vt0}, 896, v{Vt0}")
    e(f"v_lshlrev_b32 v{Vt1}, 4, v{Vh}")
    e(f"v_add_u32 v{V_OFFX}, v{Vt0}, v{Vt1}")
    e(f"v_lshlrev_b32 v{Vt0}, 3, v{Vh}")
    e(f"v_add_u32 v{Vt0}, v{Vt0}, v{Vr}")
    e(f"v_lshlrev_b32 v{Vt0}, 10, v{Vt0}")
    e(f"v_lshlrev_b32 v{Vt1}, 5, v{Vu}")
    e(f"v_add_u32 v{Vt0}, v{Vt0}, v{Vt1}")
    e(f"v_and_b32 v{Vt1}, 1, v{Vcc}")
    e(f"v_lshlrev_b32 v{Vt1}, 4, v{Vt1}")
    e(f"v_add_u32 v{Vt0}, v{Vt0}, v{Vt1}")
    e(f"v_lshrrev_b32 v{Vt1}, 1, v{Vcc}")
    e(f"v_lshlrev_b32 v{Vt1}, 3, v{Vt1}")
    e(f"v_add_u32 v{Vt0}, v{Vt0}, v{Vt1}")
    e(f"s_lshl_b32 s{S_T0}, s{S_HEAD}, 9")
    e(f"s_add_u32 s{S_T0}, s{S_T0}, {WBASE}")
    e(f"v_add_u32 v{Vt0}, s{S_T0}, v{Vt0}")
    for t2 in range(4):
        e(f"v_xor_b32 v{Vt1}, {t2}, v{Vr}")
        e(f"v_lshlrev_b32 v{Vt1}, 6, v{Vt1}")
        e(f"v_add_u32 v{V_AW+t2}, v{Vt0}, v{Vt1}")

    def w_issue(j):
        e(f"s_mov_b32 s{S_SOFF}, {j*131072}")
        e(f"s_add_u32 m0, s{S_M0}, {(j%4)*16384}")
        e("s_nop 0")
        for jj in range(4):
            A.vm_issue(("w", j), f"buffer_load_dwordx4 v{V_OFFW+jj}, {sr(SRD0,4)}, s{S_SOFF} offen offset:{jj*1024} lds")

    def x_issue(j):
        A.vm_issue(("x", j), f"buffer_load_dwordx4 {vr(V_Q+4*(j%16),4)}, v{V_OFFX}, {sr(SRD1,4)}, 0 offen offset:{j*32}")

    e(f"s_lshl_b32 s{S_M0}, s{S_WID}, 12")
    e(f"s_add_u32 s{S_M0}, s{S_M0}, {WBASE}")
    w_issue(0)
    if OPT["warm"]:
        e(f"s_mul_i32 s{S_T0}, s{S_B}, 28")
        e(f"s_mul_i32 s{S_T1}, s{S_WID}, 7")
        e(f"s_add_u32 s{S_T0}, s{S_T0}, s{S_T1}")
        e(f"s_lshl_b32 s{S_T0}, s{S_T0}, 13")
        e(f"v_lshlrev_b32 v{Vt0}, 4, v{L}")
        for i in range(7):
            A.vm_issue(("warm", 0), f"buffer_load_dwordx4 {vr(V_O+4*i,4)}, v{Vt0}, {sr(SRD0,4)}, s{S_T0} offen")
            if i < 6:
                e(f"s_add_u32 s{S_T0}, s{S_T0}, 8192")
    for j in range(16):
        x_issue(j)
    for j in range(1, 3):
        w_issue(j)
    NJ = 28
    for j in range(NJ):
        A.c(f"---- Q-proj step {j}")
        if j == 0:
            A.vm_wait(("x", 15))
        else:
            A.vm_wait(("w", j))
        A.barrier()
        if OPT["stamp"] == 2 and j in (0, 7, 14, 21):
            A.stamp(1 + j // 7)
        if j + 3 < NJ:
            w_issue(j + 3)

        def rd(T):
            f = V_F + 4 * (T % 4)
            base = (j % 4) * 16384 + (T >> 2) * 256
            A.lds_issue(("w", T), f"ds_read_b64_tr_b16 {vr(f,2)}, v{V_AW+(T&3)} offset:{base}")
            A.lds_issue(("w", T), f"ds_read_b64_tr_b16 {vr(f+2,2)}, v{V_AW+(T&3)} offset:{base+4096}")
        for T in range(4):
            rd(T)
        for T in range(8):
            A.lds_wait(("w", T))
            cacc = "0" if j == 0 else vr(V_O + 16 * T, 16)
            e(f"v_mfma_f32_32x32x16_bf16 {vr(V_O+16*T,16)}, {vr(V_F+4*(T%4),4)}, {vr(V_Q+4*(j%16),4)}, {cacc}")
            if T + 4 < 8:
                rd(T + 4)
        if j + 16 < NJ:
            x_issue(j + 16)
    assert not A.vm
    A.stamp(5 if OPT["stamp"] == 2 else 1)
    A.c("---- main loop address setup")
    e(f"v_and_b32 v{Vt0}, 31, v{L}")
    e(f"v_and_b32 v{Vt1}, 15, v{L}")
    e(f"v_lshlrev_b32 v{Vt0}, 9, v{Vt0}")
    for k7 in range(8):
        e(f"v_add_u32 v{V_X1}, {2*k7}, v{Vh}")
        e(f"v_xor_b32 v{V_X1}, v{V_X1}, v{Vt1}")
        e(f"v_lshlrev_b32 v{V_X1}, 4, v{V_X1}")
        e(f"v_add_u32 v{V_AK+k7}, v{Vt0}, v{V_X1}")
    e(f"v_lshlrev_b32 v{Vt0}, 2, v{Vh}")
    e(f"v_add_u32 v{Vt0}, v{Vt0}, v{Vr}")
    e(f"v_lshlrev_b32 v{Vt0}, 9, v{Vt0}")
    e(f"v_lshlrev_b32 v{Vt1}, 5, v{Vu}")
    e(f"v_add_u32 v{Vt0}, v{Vt0}, v{Vt1}")
    e(f"v_lshlrev_b32 v{Vt1}, 3, v{Vcc}")
    e(f"v_add_u32 v{Vt0}, v{Vt0}, v{Vt1}")
    e(f"v_add_u32 v{Vt0}, 16384, v{Vt0}")
    for t2 in range(4):
        e(f"v_xor_b32 v{Vt1}, {t2}, v{Vr}")
        e(f"v_lshlrev_b32 v{Vt1}, 6, v{Vt1}")
        e(f"v_add_u32 v{V_AV+t2}, v{Vt0}, v{Vt1}")
    e("s_nop 7")
    for T in range(8):
        for u in range(2):
            for r in range(4):
                a = V_O + 16 * T + 8 * u + 2 * r
                e(f"v_cvt_pk_bf16_f32 v{V_Q + 4*(2*T+u) + r}, v{a}, v{a+1}")
    for i in range(128):
        e(f"v_mov_b32 v{V_O+i}, 0")
    e(f"v_mov_b32 v{V_MC}, 0xff800000")
    e(f"v_mov_b32 v{V_L}, 0")
    cval = math.log2(math.e) / 16.0
    import struct
    cbits = struct.unpack("<I", struct.pack("<f", cval))[0]
    e(f"s_mov_b32 s{S_C}, 0x{cbits:08x}")
    e(f"s_mov_b32 s{S_CNT}, 0")
    e(f"s_mov_b32 s{S_SLOTI}, 0")
    e(f"s_mov_b32 s74, {SLOT}")
    e(f"s_mov_b32 s75, {(-4*SLOT) & 0xffffffff}")

    A.label("L_loop")
    nb0 = A.nbar
    A.barrier()

    def rdK(ks):
        f = V_F + 4 * (ks % 4)
        A.lds_issue(("k", ks), f"ds_read_b128 {vr(f,4)}, v{V_AK+(ks&7)} offset:{(ks>>3)*256}")

    pv = [(dt, kk) for dt in range(8) for kk in range(2)]

    def rdV(i):
        dt, kk = pv[i]
        f = V_F + 4 * (i % 4)
        base = kk * 8192 + (dt >> 2) * 256
        A.lds_issue(("v", i), f"ds_read_b64_tr_b16 {vr(f,2)}, v{V_AV+(dt&3)} offset:{base}")
        A.lds_issue(("v", i), f"ds_read_b64_tr_b16 {vr(f+2,2)}, v{V_AV+(dt&3)} offset:{base+4096}")

    for ks in range(4):
        rdK(ks)
    for ks in range(16):
        A.lds_wait(("k", ks))
        cacc = "0" if ks == 0 else vr(V_S, 16)
        e(f"v_mfma_f32_32x32x16_bf16 {vr(V_S,16)}, {vr(V_F+4*(ks%4),4)}, {vr(V_Q+4*ks,4)}, {cacc}")
        if ks + 4 < 16:
            rdK(ks + 4)
        else:
            rdV(ks - 12)
    e(f"s_add_u32 s{S_SLOTI}, s{S_SLOTI}, 1")
    e(f"s_cmp_eq_u32 s{S_SLOTI}, 5")
    e(f"s_cselect_b32 s{S_DELTA}, s75, s74")
    e(f"s_cselect_b32 s{S_SLOTI}, 0, s{S_SLOTI}")
    for k7 in range(8):
        e(f"v_add_u32 v{V_AK+k7}, s{S_DELTA}, v{V_AK+k7}")
    e("s_nop 3")
    S = V_S
    t0, t1, t2_, t3, t4, t5 = V_T, V_T + 1, V_T + 2, V_T + 3, V_T + 4, V_T + 5
    e(f"v_max3_f32 v{t0}, v{S}, v{S+1}, v{S+2}")
    e(f"v_max3_f32 v{t1}, v{S+3}, v{S+4}, v{S+5}")
    e(f"v_max3_f32 v{t2_}, v{S+6}, v{S+7}, v{S+8}")
    e(f"v_max3_f32 v{t3}, v{S+9}, v{S+10}, v{S+11}")
    e(f"v_max3_f32 v{t4}, v{S+12}, v{S+13}, v{S+14}")
    e(f"v_max3_f32 v{t0}, v{t0}, v{t1}, v{S+15}")
    e(f"v_max3_f32 v{t2_}, v{t2_}, v{t3}, v{t4}")
    e(f"v_max_f32 v{t0}, v{t0}, v{t2_}")
    e(f"v_mov_b32 v{t1}, v{t0}")
    e("s_nop 1")
    e(f"v_permlane32_swap_b32 v{t0}, v{t1}")
    e("s_nop 1")
    e(f"v_max_f32 v{t0}, v{t0}, v{t1}")
    e(f"v_mul_f32 v{t0}, s{S_C}, v{t0}")
    e(f"v_sub_f32 v{t1}, v{t0}, v{V_MC}")
    e(f"v_cmp_lt_f32 vcc, 0x41000000, v{t1}")
    e("s_nop 1")
    e("s_cbranch_vccnz L_rescale")
    A.label("L_rescale_done")
    for i in range(16):
        e(f"v_fma_f32 v{S+i}, v{S+i}, s{S_C}, -v{V_MC}")
    for i in range(16):
        e(f"v_exp_f32 v{S+i}, v{S+i}")
    e("s_nop 0")
    e(f"v_add_f32 v{t0}, v{S}, v{S+1}")
    e(f"v_add_f32 v{t1}, v{S+2}, v{S+3}")
    e(f"v_add_f32 v{t2_}, v{S+4}, v{S+5}")
    e(f"v_add_f32 v{t3}, v{S+6}, v{S+7}")
    for i in range(8):
        e(f"v_cvt_pk_bf16_f32 v{V_P+i}, v{S+2*i}, v{S+2*i+1}")
    e(f"v_add_f32 v{t0}, v{t0}, v{S+8}")
    e(f"v_add_f32 v{t1}, v{t1}, v{S+9}")
    e(f"v_add_f32 v{t2_}, v{t2_}, v{S+10}")
    e(f"v_add_f32 v{t3}, v{t3}, v{S+11}")
    e(f"v_add_f32 v{t0}, v{t0}, v{S+12}")
    e(f"v_add_f32 v{t1}, v{t1}, v{S+13}")
    e(f"v_add_f32 v{t2_}, v{t2_}, v{S+14}")
    e(f"v_add_f32 v{t3}, v{t3}, v{S+15}")
    for i in range(16):
        dt, kk = pv[i]
        A.lds_wait(("v", i))
        e(f"v_mfma_f32_32x32x16_bf16 {vr(V_O+16*dt,16)}, {vr(V_F+4*(i%4),4)}, {vr(V_P+4*kk,4)}, {vr(V_O+16*dt,16)}")
        if i + 4 < 16:
            rdV(i + 4)
        if i == 0:
            e(f"v_add_f32 v{t0}, v{t0}, v{t1}")
            e(f"v_add_f32 v{t2_}, v{t2_}, v{t3}")
        if i == 1:
            e(f"v_add_f32 v{t0}, v{t0}, v{t2_}")
            e(f"v_add_f32 v{V_L}, v{V_L}, v{t0}")
    assert not A.lds
    for t2 in range(4):
        e(f"v_add_u32 v{V_AV+t2}, s{S_DELTA}, v{V_AV+t2}")
    e(f"s_add_u32 s{S_CNT}, s{S_CNT}, 1")
    e(f"s_cmp_lt_u32 s{S_CNT}, 32")
    e("s_cbranch_scc1 L_loop")
    A.nbar = nb0 + 32

    A.stamp(6 if OPT["stamp"] == 2 else 2)
    A.c("---- finalize: normalise O, write bf16 frags to LDS")
    e(f"v_mov_b32 v{t1}, v{V_L}")
    e("s_nop 1")
    e(f"v_permlane32_swap_b32 v{V_L}, v{t1}")
    e("s_nop 1")
    e(f"v_add_f32 v{t0}, v{V_L}, v{t1}")
    e(f"v_rcp_f32 v{t0}, v{t0}")
    e(f"s_lshl_b32 s{S_T0}, s{S_QB}, 14")
    e(f"s_add_u32 s{S_T1}, s{S_T0}, {4*SLOT}")
    e(f"s_cmp_eq_u32 s{S_HEAD}, 0")
    e(f"s_cselect_b32 s{S_T2}, s{S_T1}, s{S_T0}")
    V_AB = V_AK
    V_AOWN = V_AK + 2
    V_AWO = V_AK + 4
    e(f"v_lshlrev_b32 v{t1}, 4, v{L}")
    e(f"v_add_u32 v{V_AB}, s{S_T1}, v{t1}")
    e(f"v_add_u32 v{V_AB+1}, s{S_T0}, v{t1}")
    e(f"v_add_u32 v{V_AOWN}, s{S_T2}, v{t1}")
    e("s_nop 7")
    for fr in range(16):
        dt, u = fr >> 1, fr & 1
        q = V_Q + 4 * fr
        for r in range(4):
            a = V_O + 16 * dt + 8 * u + 2 * r
            e(f"v_mul_f32 v{a}, v{a}, v{t0}")
            e(f"v_mul_f32 v{a+1}, v{a+1}, v{t0}")
            e(f"v_cvt_pk_bf16_f32 v{q+r}, v{a}, v{a+1}")
        e(f"ds_write_b128 v{V_AOWN}, {vr(q,4)} offset:{fr*1024}")
    e(f"v_lshrrev_b32 v{Vh}, 5, v{L}")
    e(f"v_bfe_u32 v{Vu}, v{L}, 4, 1")
    e(f"v_bfe_u32 v{Vr}, v{L}, 2, 2")
    e(f"v_and_b32 v{Vcc}, 3, v{L}")
    e(f"v_lshlrev_b32 v{Vt0}, 2, v{Vh}")
    e(f"v_add_u32 v{Vt0}, v{Vt0}, v{Vr}")
    e(f"v_mul_u32_u24 v{Vt0}, 896, v{Vt0}")
    e(f"v_lshlrev_b32 v{Vt1}, 5, v{Vu}")
    e(f"v_add_u32 v{Vt0}, v{Vt0}, v{Vt1}")
    e(f"v_lshlrev_b32 v{Vt1}, 3, v{Vcc}")
    e(f"v_add_u32 v{Vt0}, v{Vt0}, v{Vt1}")
    e(f"s_mul_i32 s{S_T0}, s{S_HEAD}, 448")
    e(f"s_add_u32 s{S_T0}, s{S_T0}, {2*SLOT}")
    e(f"v_add_u32 v{Vt0}, s{S_T0}, v{Vt0}")
    e(f"v_lshrrev_b32 v{Vt1}, 1, v{Vr}")
    e(f"v_lshlrev_b32 v{Vt1}, 6, v{Vt1}")
    e(f"v_add_u32 v{V_X1}, v{Vt0}, v{Vt1}")
    e(f"v_sub_u32 v{V_X2}, v{Vt0}, v{Vt1}")
    e(f"s_cmp_eq_u32 s{S_HEAD}, 0")
    e("s_cselect_b64 vcc, -1, 0")
    e("s_nop 1")
    e(f"v_cndmask_b32 v{V_AWO}, v{V_X2}, v{V_X1}, vcc")
    e(f"v_cndmask_b32 v{V_AWO+1}, v{V_X1}, v{V_X2}, vcc")
    e("s_waitcnt lgkmcnt(0)")

    if OPT["stamp"] == 1: A.stamp(3)
    V_ACC = 0
    V_BF = V_S
    ring = [2, 3, 1]
    for k in range(16):
        A.c(f"---- O-proj stage {k}")
        A.barrier()
        head = k >> 3
        for ksl in range(2):
            kq = 2 * k + ksl
            A.lds_issue(("b", ksl), f"ds_read_b128 {vr(V_BF+4*ksl,4)}, v{V_AB+head} offset:{(kq&15)*1024}")
        seq = [(ksl, nt) for ksl in range(2) for nt in range(7)]

        def rdA(i):
            ksl, nt = seq[i]
            f = V_F + 4 * (i % 4)
            base = ksl * 16 * 896 + nt * 64
            A.lds_issue(("a", i), f"ds_read_b64_tr_b16 {vr(f,2)}, v{V_AWO+(nt&1)} offset:{base}")
            A.lds_issue(("a", i), f"ds_read_b64_tr_b16 {vr(f+2,2)}, v{V_AWO+(nt&1)} offset:{base+8*896}")
        for i in range(4):
            rdA(i)
        for i in range(14):
            ksl, nt = seq[i]
            A.lds_wait(("a", i))
            cacc = "0" if (k == 0 and ksl == 0) else vr(V_ACC + 16 * nt, 16)
            e(f"v_mfma_f32_32x32x16_bf16 {vr(V_ACC+16*nt,16)}, {vr(V_F+4*(i%4),4)}, {vr(V_BF+4*ksl,4)}, {cacc}")
            if i + 4 < 14:
                rdA(i + 4)
        assert not A.lds
        if k < 15:
            d = (ring[(k + 1) % 3] - ring[k % 3]) * SLOT
            e(f"v_add_u32 v{V_AWO}, {d & 0xffffffff}, v{V_AWO}")
            e(f"v_add_u32 v{V_AWO+1}, {d & 0xffffffff}, v{V_AWO+1}")
    if OPT["stamp"] == 1: A.stamp(4)
    A.c("---- store partials")
    e(f"v_lshlrev_b32 v{t0}, 4, v{L}")
    e(f"s_mul_i32 s{S_SOFF}, s{S_WID}, 28672")
    e("s_nop 15")
    for nt in range(7):
        for g in range(4):
            e(f"buffer_store_dwordx4 {vr(V_ACC+16*nt+4*g,4)}, v{t0}, {sr(SRD2,4)}, s{S_SOFF} offen offset:{g*1024}")
        if nt < 6:
            e(f"s_add_u32 s{S_SOFF}, s{S_SOFF}, 4096")
    if OPT["stamp"]:
        e("s_waitcnt vmcnt(0)")
    A.stamp(7 if OPT["stamp"] == 2 else 5)
    A.stamp_flush(8)
    e("s_endpgm")
    nbar_cons = A.nbar

    A.label("L_rescale")
    e(f"v_max_f32 v{t0}, v{t0}, v{V_MC}")
    e(f"v_sub_f32 v{t1}, v{V_MC}, v{t0}")
    e(f"v_exp_f32 v{t1}, v{t1}")
    e(f"v_mov_b32 v{V_MC}, v{t0}")
    e("s_nop 0")
    e(f"v_mul_f32 v{V_L}, v{V_L}, v{t1}")
    for i in range(128):
        e(f"v_mul_f32 v{V_O+i}, v{V_O+i}, v{t1}")
    e("s_branch L_rescale_done")

    A.label("L_producer")
    A.nbar = 0
    S_P = 58
    e(f"s_sub_u32 s{S_P}, s{S_WID}, 4")
    e(f"s_lshl_b32 s{S_T0}, s{S_B}, 22")
    e(f"s_lshl_b32 s{S_T1}, s{S_HKV}, 19")
    e(f"s_add_u32 s{S_T0}, s{S_T0}, s{S_T1}")
    e(f"s_add_u32 s{SRD0}, s{S_K}, s{S_T0}")
    e(f"s_addc_u32 s{SRD0+1}, s{S_K+1}, 0")
    e(f"s_mov_b32 s{SRD0+2}, 524288")
    e(f"s_mov_b32 s{SRD0+3}, 0x00020000")
    e(f"s_add_u32 s{SRD1}, s{S_V}, s{S_T0}")
    e(f"s_addc_u32 s{SRD1+1}, s{S_V+1}, 0")
    e(f"s_mov_b32 s{SRD1+2}, 524288")
    e(f"s_mov_b32 s{SRD1+3}, 0x00020000")
    e(f"s_mul_i32 s{S_T0}, s{S_HKV}, 458752")
    e(f"s_add_u32 s{SRD2}, s{S_WO}, s{S_T0}")
    e(f"s_addc_u32 s{SRD2+1}, s{S_WO+1}, 0")
    e(f"s_mov_b32 s{SRD2+2}, 458752")
    e(f"s_mov_b32 s{SRD2+3}, 0x00020000")
    PK, PV_, PW = 10, 14, 16
    a, b2, c2, d2 = 2, 3, 4, 5
    e(f"v_lshrrev_b32 v{a}, 5, v{L}")
    e(f"v_and_b32 v{b2}, 31, v{L}")
    e(f"s_lshl_b32 s{S_T0}, s{S_P}, 3")
    e(f"v_add_u32 v{c2}, s{S_T0}, v{a}")
    e(f"v_lshlrev_b32 v{d2}, 9, v{c2}")
    for j in range(4):
        e(f"v_add_u32 v6, {2*j}, v{c2}")
        e("v_and_b32 v6, 15, v6")
        e(f"v_xor_b32 v6, v6, v{b2}")
        e("v_lshlrev_b32 v6, 4, v6")
        e(f"v_add_u32 v{PK+j}, v{d2}, v6")
    for jp in range(2):
        e(f"v_add_u32 v6, {2*jp}, v{a}")
        e("v_lshlrev_b32 v6, 2, v6")
        e(f"v_xor_b32 v6, v6, v{b2}")
        e("v_lshlrev_b32 v6, 4, v6")
        e(f"v_add_u32 v{PV_+jp}, v{d2}, v6")
    e(f"s_mul_i32 s{S_T0}, s{S_P}, 448")
    e(f"s_mov_b32 s{S_T1}, {(1<<32)//56 + 1}")
    for j in range(7):
        e(f"v_add_u32 v6, {64*j}, v{L}")
        e(f"v_add_u32 v6, s{S_T0}, v6")
        e(f"v_mul_hi_u32 v7, v6, s{S_T1}")
        e("v_mul_u32_u24 v8, 56, v7")
        e("v_sub_u32 v8, v6, v8")
        e("v_bfe_u32 v9, v7, 1, 1")
        e("v_lshlrev_b32 v9, 2, v9")
        e("v_xor_b32 v8, v8, v9")
        e("v_lshlrev_b32 v8, 4, v8")
        e("v_mul_u32_u24 v7, 896, v7")
        e(f"v_add_u32 v{PW+j}, v7, v8")
    e(f"s_lshl_b32 s{S_M0}, s{S_P}, 12")
    e(f"s_mul_i32 s{S_T3}, s{S_P}, 7168")

    def kv_issue_static(stage):
        slot = stage % 5
        e(f"s_mov_b32 s{S_SOFF}, {stage*16384}")
        e(f"s_add_u32 m0, s{S_M0}, {slot*SLOT}")
        e("s_nop 0")
        for j in range(4):
            A.vm_issue(("kv", stage), f"buffer_load_dwordx4 v{PK+j}, {sr(SRD0,4)}, s{S_SOFF} offen offset:{j*1024}{NT} lds")
        e(f"s_add_u32 m0, s{S_M0}, {slot*SLOT+16384}")
        e("s_nop 0")
        for j in range(4):
            A.vm_issue(("kv", stage), f"buffer_load_dwordx4 v{PV_+(j&1)}, {sr(SRD1,4)}, s{S_SOFF} offen offset:{j*1024}{NT} lds")

    def wo_issue(k, slot):
        e(f"s_mov_b32 s{S_SOFF}, {k*28672}")
        for j in range(7):
            e(f"s_add_u32 m0, s{S_T3}, {slot*SLOT + j*1024}")
            e("s_nop 0")
            A.vm_issue(("wo", k), f"buffer_load_dwordx4 v{PW+j}, {sr(SRD2,4)}, s{S_SOFF} offen lds")

    def wo_warm():
        e(f"s_mul_i32 s{S_T0}, s{S_B}, 28672")
        e(f"s_add_u32 s{S_T0}, s{S_T0}, s{S_T3}")
        e(f"v_lshlrev_b32 v6, 4, v{L}")
        for i in range(7):
            A.vm_issue(("warm", 0), f"buffer_load_dwordx4 {vr(32+4*i,4)}, v6, {sr(SRD2,4)}, s{S_T0} offen")
            if i < 6:
                e(f"s_add_u32 s{S_T0}, s{S_T0}, 1024")

    A.vm = []
    if OPT["kvdelay"] == 0:
        for st in range(3):
            kv_issue_static(st)
    A.stamp(1)
    for j in range(28):
        A.barrier()
        if OPT["kvdelay"] and j + 1 == OPT["kvdelay"]:
            for st in range(3):
                kv_issue_static(st)
    A.stamp(2)
    for t in range(32):
        A.vm_wait(("kv", t))
        A.barrier()
        if t == 0:
            kv_issue_static(3)
            kv_issue_static(4)
        elif t + 4 < 32:
            kv_issue_static(t + 4)
        elif t == 28:
            wo_issue(0, 2)
        elif t == 29:
            wo_issue(1, 3)
        if OPT["warm"] and t == OPT["warmt"]:
            wo_warm()
    A.stamp(3)
    for k in range(16):
        A.vm_wait(("wo", k))
        A.barrier()
        if k + 2 < 16:
            wo_issue(k + 2, ring[(k + 2) % 3])
    assert A.nbar == nbar_cons, (A.nbar, nbar_cons)
    A.stamp(4)
    A.stamp(5)
    A.stamp(6)
    A.stamp(7)
    A.stamp_flush(8)
    A.label("L_exit")
    e("s_endpgm")
    return A.lines


def gen_reduce():
    A = Asm()
    e = A.e
    A.label(KRED)
    e("s_cmp_ge_u32 s2, 896")
    e("s_cbranch_scc1 R_exit")
    e("s_load_dwordx2 s[4:5], s[0:1], 80")
    e("s_load_dwordx2 s[6:7], s[0:1], 96")
    e(f"s_mov_b32 s16, {(1<<32)//28 + 1}")
    e("s_mul_hi_u32 s17, s2, s16")
    e("s_mul_i32 s18, s17, 28")
    e("s_sub_u32 s18, s2, s18")
    e(f"s_mov_b32 s16, {(1<<32)//7 + 1}")
    e("s_mul_hi_u32 s19, s18, s16")
    e("s_mul_i32 s20, s19, 7")
    e("s_sub_u32 s20, s18, s20")
    e("s_waitcnt lgkmcnt(0)")
    e("s_mul_i32 s21, s17, 917504")
    e("s_lshl_b32 s22, s18, 12")
    e("s_add_u32 s21, s21, s22")
    e("s_add_u32 s8, s6, s21")
    e("s_addc_u32 s9, s7, 0")
    e(f"s_mov_b32 s10, {7*114688+4096}")
    e("s_mov_b32 s11, 0x00020000")
    e("s_mov_b32 s12, s4")
    e("s_mov_b32 s13, s5")
    e("s_mov_b32 s14, 1835008")
    e("s_mov_b32 s15, 0x00020000")
    e("v_lshlrev_b32 v1, 4, v0")
    for h in range(8):
        e(f"s_mov_b32 s23, {h*114688}")
        e(f"buffer_load_dwordx4 {vr(8+4*h,4)}, v1, s[8:11], s23 offen")
    e("s_and_b32 s24, s17, 15")
    e("s_lshr_b32 s25, s17, 4")
    e("s_lshl_b32 s24, s24, 6")
    e("s_and_b32 s26, s19, 1")
    e("s_lshl_b32 s26, s26, 5")
    e("s_add_u32 s24, s24, s26")
    e("s_mul_i32 s24, s24, 896")
    e("s_mul_i32 s25, s25, 448")
    e("s_add_u32 s24, s24, s25")
    e("s_lshr_b32 s26, s19, 1")
    e("s_mul_i32 s26, s26, 224")
    e("s_add_u32 s24, s24, s26")
    e("s_lshl_b32 s26, s20, 5")
    e("s_add_u32 s24, s24, s26")
    e("s_lshl_b32 s24, s24, 1")
    e("v_and_b32 v2, 31, v0")
    e("v_mul_u32_u24 v2, 1792, v2")
    e("v_lshrrev_b32 v3, 6, v0")
    e("v_lshlrev_b32 v3, 4, v3")
    e("v_add_u32 v2, v2, v3")
    e("v_bfe_u32 v3, v0, 5, 1")
    e("v_lshlrev_b32 v3, 3, v3")
    e("v_add_u32 v2, v2, v3")
    for h in range(1, 8):
        e(f"s_waitcnt vmcnt({7-h})")
        for i in range(4):
            e(f"v_add_f32 v{8+i}, v{8+i}, v{8+4*h+i}")
    e("v_cvt_pk_bf16_f32 v4, v8, v9")
    e("v_cvt_pk_bf16_f32 v5, v10, v11")
    e("buffer_store_dwordx2 v[4:5], v2, s[12:15], s24 offen")
    A.label("R_exit")
    e("s_endpgm")
    return A.lines


def kd(name, vgpr, sgpr):
    acc = (vgpr + 3) // 4 * 4
    return f""".amdhsa_kernel {name}
  .amdhsa_next_free_vgpr {vgpr}
  .amdhsa_next_free_sgpr {sgpr}
  .amdhsa_accum_offset {acc}
  .amdhsa_group_segment_fixed_size 0
  .amdhsa_kernarg_size 104
  .amdhsa_user_sgpr_count 2
  .amdhsa_user_sgpr_kernarg_segment_ptr 1
  .amdhsa_system_sgpr_workgroup_id_x 1
.end_amdhsa_kernel
"""


def main():
    out = []
    out.append(f"; @launch kernel={KMAIN} grid=(256,1,1) block=(512,1,1) lds=163840")
    out.append(f"; @launch kernel={KRED} grid=(896,1,1) block=(256,1,1) lds=0")
    out.append('.amdgcn_target "amdgcn-amd-amdhsa--gfx950"')
    out.append(".text")
    for name, lines in ((KMAIN, gen_main()), (KRED, gen_reduce())):
        out.append(f".globl {name}")
        out.append(".p2align 8")
        out.append(f".type {name},@function")
        out += lines
    out.append('.section .rodata,"a"')
    out.append(".p2align 6")
    out.append(kd(KMAIN, 256, 100))
    out.append(".p2align 6")
    out.append(kd(KRED, 40, 32))
    open(sys.argv[1], "w").write("\n".join(out) + "\n")


main()
```

```python
import sys, math

NAME = "concat_heads__gqa_block_cached__gqa_block_cached__near_ridge"
KMAIN = NAME + "_kernel"
KRED = "reduce_partials_kernel"

OPT = dict(dbg=0, dbgwg=0, kvdelay=0, nt=1, stamp=0, nocompute=0, nodma=0, warm=1, warmt=20)
for a in sys.argv[2:]:
    k, v = a.split("=")
    OPT[k] = int(v)


class Asm:
    def __init__(self):
        self.lines = []
        self.lds = []
        self.nbar = 0
        self.vm = []

    def e(self, s):
        if OPT["nodma"] and s.endswith(" lds"):
            return
        if OPT["nocompute"] and (s.startswith("ds_read") or s.startswith("v_mfma") or s.startswith("v_exp") or s.startswith("v_fma")):
            return
        self.lines.append("    " + s)

    def label(self, s):
        self.lines.append(s + ":")

    def c(self, s):
        self.lines.append("    ; " + s)

    def lds_issue(self, tag, s):
        self.e(s)
        self.lds.append(tag)

    def lds_wait(self, tag):
        idx = max(i for i, t in enumerate(self.lds) if t == tag)
        n = len(self.lds) - 1 - idx
        assert n <= 15
        self.e(f"s_waitcnt lgkmcnt({n})")
        self.lds = self.lds[idx + 1:]

    def lds_wait_all(self):
        self.e("s_waitcnt lgkmcnt(0)")
        self.lds = []

    def vm_issue(self, tag, s):
        self.e(s)
        self.vm.append(tag)

    def vm_wait(self, tag):
        idx = max(i for i, t in enumerate(self.vm) if t == tag)
        n = len(self.vm) - 1 - idx
        assert n <= 63
        self.e(f"s_waitcnt vmcnt({n})")
        self.vm = self.vm[idx + 1:]

    def stamp(self, i):
        if not OPT["stamp"]:
            return
        assert not self.lds
        self.e(f"s_memrealtime s[{76+2*i}:{77+2*i}]")
        self.e("s_waitcnt lgkmcnt(0)")

    def stamp_flush(self, n):
        if not OPT["stamp"]:
            return
        e = self.e
        e("s_lshl_b32 s92, s2, 3")
        e(f"s_add_u32 s92, s92, s{S_WID}")
        e("s_lshl_b32 s92, s92, 7")
        e(f"s_add_u32 s92, s92, {64<<20}")
        e(f"s_add_u32 s92, s{S_WS}, s92")
        e(f"s_addc_u32 s93, s{S_WS+1}, 0")
        e("s_mov_b32 s94, 128")
        e("s_mov_b32 s95, 0x00020000")
        e("v_mov_b32 v2, 0")
        for i in range(n):
            e(f"v_mov_b32 v4, s{76+2*i}")
            e(f"v_mov_b32 v5, s{77+2*i}")
            e(f"buffer_store_dwordx2 v[4:5], v2, s[92:95], 0 offen offset:{8*i}")
            e("s_nop 1")

    def barrier(self):
        self.e("s_barrier")
        self.nbar += 1


def vr(a, n):
    return f"v[{a}:{a+n-1}]"


def sr(a, n):
    return f"s[{a}:{a+n-1}]"


SLOT = 32768
NT = " nt" if OPT["nt"] else ""

S_BLK, S_HKV, S_B, S_WID = 34, 35, 36, 37
S_T0, S_T1, S_T2, S_T3 = 60, 61, 62, 63
SRD0, SRD1, SRD2 = 40, 44, 48
S_SOFF, S_M0, S_CNT, S_DELTA, S_SLOTI, S_C = 52, 53, 54, 55, 56, 57
S_X, S_K, S_V, S_WQ, S_WO = 64, 66, 68, 70, 72
S_OUT, S_DBG, S_WS = 28, 30, 32

V_O = 0
V_Q = 128
V_S = 192
V_P = 208
V_F = 216
V_AK = 232
V_AV = 240
V_MC, V_L = 244, 245
V_T = 246
V_LANE = 252
V_X1, V_X2, V_X3 = 253, 254, 255


def gen_main():
    A = Asm()
    e = A.e
    A.label(KMAIN)
    e("s_cmp_ge_u32 s2, 256")
    e("s_cbranch_scc1 L_exit")
    e("s_load_dwordx16 s[8:23], s[0:1], 0")
    e("s_load_dwordx8 s[24:31], s[0:1], 64")
    e("s_load_dwordx2 s[32:33], s[0:1], 96")
    e(f"s_and_b32 s{S_T0}, s2, 7")
    e(f"s_lshl_b32 s{S_T0}, s{S_T0}, 1")
    e(f"s_lshr_b32 s{S_T1}, s2, 3")
    e(f"s_and_b32 s{S_T1}, s{S_T1}, 1")
    e(f"s_add_u32 s{S_T0}, s{S_T0}, s{S_T1}")
    e(f"s_lshr_b32 s{S_B}, s2, 4")
    e(f"s_lshr_b32 s{S_BLK}, s{S_T0}, 3")
    e(f"s_and_b32 s{S_HKV}, s{S_T0}, 7")
    e("v_lshrrev_b32 v1, 6, v0")
    e(f"v_and_b32 v{V_LANE}, 63, v0")
    e("s_nop 0")
    e(f"v_readfirstlane_b32 s{S_WID}, v1")
    e("s_waitcnt lgkmcnt(0)")
    e(f"s_cmp_eq_u32 s{S_BLK}, 0")
    e(f"s_cselect_b64 {sr(S_X,2)}, s[8:9], s[18:19]")
    e(f"s_cselect_b64 {sr(S_K,2)}, s[10:11], s[20:21]")
    e(f"s_cselect_b64 {sr(S_V,2)}, s[12:13], s[22:23]")
    e(f"s_cselect_b64 {sr(S_WQ,2)}, s[14:15], s[24:25]")
    e(f"s_cselect_b64 {sr(S_WO,2)}, s[16:17], s[26:27]")
    A.stamp(0)
    e(f"s_cmp_ge_u32 s{S_WID}, 4")
    e("s_cbranch_scc1 L_producer")

    L = V_LANE
    e(f"s_lshl_b32 s{S_T0}, s{S_HKV}, 10")
    e(f"s_add_u32 s{SRD0}, s{S_WQ}, s{S_T0}")
    e(f"s_addc_u32 s{SRD0+1}, s{S_WQ+1}, 0")
    e(f"s_sub_u32 s{SRD0+2}, {448*8192}, s{S_T0}")
    e(f"s_mov_b32 s{SRD0+3}, 0x00020000")
    e(f"s_mul_i32 s{S_T0}, s{S_B}, 57344")
    e(f"s_add_u32 s{SRD1}, s{S_X}, s{S_T0}")
    e(f"s_addc_u32 s{SRD1+1}, s{S_X+1}, 0")
    e(f"s_mov_b32 s{SRD1+2}, 57344")
    e(f"s_mov_b32 s{SRD1+3}, 0x00020000")
    e(f"s_lshl_b32 s{S_T0}, s{S_BLK}, 4")
    e(f"s_add_u32 s{S_T0}, s{S_T0}, s{S_B}")
    e(f"s_lshl_b32 s{S_T0}, s{S_T0}, 3")
    e(f"s_add_u32 s{S_T0}, s{S_T0}, s{S_HKV}")
    e(f"s_mul_i32 s{S_T0}, s{S_T0}, 114688")
    e(f"s_add_u32 s{SRD2}, s{S_WS}, s{S_T0}")
    e(f"s_addc_u32 s{SRD2+1}, s{S_WS+1}, 0")
    e(f"s_mov_b32 s{SRD2+2}, 114688")
    e(f"s_mov_b32 s{SRD2+3}, 0x00020000")
    S_HEAD, S_QB = 58, 59
    e(f"s_lshr_b32 s{S_HEAD}, s{S_WID}, 1")
    e(f"s_and_b32 s{S_QB}, s{S_WID}, 1")

    Vh, Vu, Vr, Vcc = V_T, V_T + 1, V_T + 2, V_T + 3
    Vt0, Vt1 = V_T + 4, V_T + 5
    e(f"v_lshrrev_b32 v{Vh}, 5, v{L}")
    e(f"v_bfe_u32 v{Vu}, v{L}, 4, 1")
    e(f"v_bfe_u32 v{Vr}, v{L}, 2, 2")
    e(f"v_and_b32 v{Vcc}, 3, v{L}")

    V_XF = V_S
    V_OFFW = V_P
    V_OFFX = V_P + 4
    V_AW = V_AK
    WBASE = 3 * SLOT
    e(f"s_lshl_b32 s{S_T0}, s{S_WID}, 15")
    for jj in range(4):
        e(f"v_xor_b32 v{Vt0}, {jj<<2}, v{L}")
        e(f"v_lshlrev_b32 v{Vt0}, 4, v{Vt0}")
        e(f"v_add_u32 v{Vt0}, {jj*8192 - jj*1024}, v{Vt0}")
        e(f"v_add_u32 v{V_OFFW+jj}, s{S_T0}, v{Vt0}")
    e(f"v_and_b32 v{Vt0}, 31, v{L}")
    e(f"s_lshl_b32 s{S_T0}, s{S_QB}, 5")
    e(f"v_add_u32 v{Vt0}, s{S_T0}, v{Vt0}")
    e(f"v_mul_u32_u24 v{Vt0}, 896, v{Vt0}")
    e(f"v_lshlrev_b32 v{Vt1}, 4, v{Vh}")
    e(f"v_add_u32 v{V_OFFX}, v{Vt0}, v{Vt1}")
    e(f"v_lshlrev_b32 v{Vt0}, 3, v{Vh}")
    e(f"v_add_u32 v{Vt0}, v{Vt0}, v{Vr}")
    e(f"v_lshlrev_b32 v{Vt0}, 10, v{Vt0}")
    e(f"v_lshlrev_b32 v{Vt1}, 5, v{Vu}")
    e(f"v_add_u32 v{Vt0}, v{Vt0}, v{Vt1}")
    e(f"v_and_b32 v{Vt1}, 1, v{Vcc}")
    e(f"v_lshlrev_b32 v{Vt1}, 4, v{Vt1}")
    e(f"v_add_u32 v{Vt0}, v{Vt0}, v{Vt1}")
    e(f"v_lshrrev_b32 v{Vt1}, 1, v{Vcc}")
    e(f"v_lshlrev_b32 v{Vt1}, 3, v{Vt1}")
    e(f"v_add_u32 v{Vt0}, v{Vt0}, v{Vt1}")
    e(f"s_lshl_b32 s{S_T0}, s{S_HEAD}, 9")
    e(f"s_add_u32 s{S_T0}, s{S_T0}, {WBASE}")
    e(f"v_add_u32 v{Vt0}, s{S_T0}, v{Vt0}")
    for t2 in range(4):
        e(f"v_xor_b32 v{Vt1}, {t2}, v{Vr}")
        e(f"v_lshlrev_b32 v{Vt1}, 6, v{Vt1}")
        e(f"v_add_u32 v{V_AW+t2}, v{Vt0}, v{Vt1}")

    def w_issue(j):
        e(f"s_mov_b32 s{S_SOFF}, {j*131072}")
        e(f"s_add_u32 m0, s{S_M0}, {(j%4)*16384}")
        e("s_nop 0")
        for jj in range(4):
            A.vm_issue(("w", j), f"buffer_load_dwordx4 v{V_OFFW+jj}, {sr(SRD0,4)}, s{S_SOFF} offen offset:{jj*1024} lds")

    def x_issue(j):
        A.vm_issue(("x", j), f"buffer_load_dwordx4 {vr(V_Q+4*(j%16),4)}, v{V_OFFX}, {sr(SRD1,4)}, 0 offen offset:{j*32}")

    e(f"s_lshl_b32 s{S_M0}, s{S_WID}, 12")
    e(f"s_add_u32 s{S_M0}, s{S_M0}, {WBASE}")
    w_issue(0)
    if OPT["warm"]:
        e(f"s_mul_i32 s{S_T0}, s{S_B}, 28")
        e(f"s_mul_i32 s{S_T1}, s{S_WID}, 7")
        e(f"s_add_u32 s{S_T0}, s{S_T0}, s{S_T1}")
        e(f"s_lshl_b32 s{S_T0}, s{S_T0}, 13")
        e(f"v_lshlrev_b32 v{Vt0}, 4, v{L}")
        for i in range(7):
            A.vm_issue(("warm", 0), f"buffer_load_dwordx4 {vr(V_O+4*i,4)}, v{Vt0}, {sr(SRD0,4)}, s{S_T0} offen")
            if i < 6:
                e(f"s_add_u32 s{S_T0}, s{S_T0}, 8192")
    for j in range(16):
        x_issue(j)
    for j in range(1, 3):
        w_issue(j)
    NJ = 28
    for j in range(NJ):
        A.c(f"---- Q-proj step {j}")
        if j == 0:
            A.vm_wait(("x", 15))
        else:
            A.vm_wait(("w", j))
        A.barrier()
        if OPT["stamp"] == 2 and j in (0, 7, 14, 21):
            A.stamp(1 + j // 7)
        if j + 3 < NJ:
            w_issue(j + 3)

        def rd(T):
            f = V_F + 4 * (T % 4)
            base = (j % 4) * 16384 + (T >> 2) * 256
            A.lds_issue(("w", T), f"ds_read_b64_tr_b16 {vr(f,2)}, v{V_AW+(T&3)} offset:{base}")
            A.lds_issue(("w", T), f"ds_read_b64_tr_b16 {vr(f+2,2)}, v{V_AW+(T&3)} offset:{base+4096}")
        for T in range(4):
            rd(T)
        for T in range(8):
            A.lds_wait(("w", T))
            cacc = "0" if j == 0 else vr(V_O + 16 * T, 16)
            e(f"v_mfma_f32_32x32x16_bf16 {vr(V_O+16*T,16)}, {vr(V_F+4*(T%4),4)}, {vr(V_Q+4*(j%16),4)}, {cacc}")
            if T + 4 < 8:
                rd(T + 4)
        if j + 16 < NJ:
            x_issue(j + 16)
    assert not A.vm
    A.stamp(5 if OPT["stamp"] == 2 else 1)
    A.c("---- main loop address setup")
    e(f"v_and_b32 v{Vt0}, 31, v{L}")
    e(f"v_and_b32 v{Vt1}, 15, v{L}")
    e(f"v_lshlrev_b32 v{Vt0}, 9, v{Vt0}")
    for k7 in range(8):
        e(f"v_add_u32 v{V_X1}, {2*k7}, v{Vh}")
        e(f"v_xor_b32 v{V_X1}, v{V_X1}, v{Vt1}")
        e(f"v_lshlrev_b32 v{V_X1}, 4, v{V_X1}")
        e(f"v_add_u32 v{V_AK+k7}, v{Vt0}, v{V_X1}")
    e(f"v_lshlrev_b32 v{Vt0}, 2, v{Vh}")
    e(f"v_add_u32 v{Vt0}, v{Vt0}, v{Vr}")
    e(f"v_lshlrev_b32 v{Vt0}, 9, v{Vt0}")
    e(f"v_lshlrev_b32 v{Vt1}, 5, v{Vu}")
    e(f"v_add_u32 v{Vt0}, v{Vt0}, v{Vt1}")
    e(f"v_lshlrev_b32 v{Vt1}, 3, v{Vcc}")
    e(f"v_add_u32 v{Vt0}, v{Vt0}, v{Vt1}")
    e(f"v_add_u32 v{Vt0}, 16384, v{Vt0}")
    for t2 in range(4):
        e(f"v_xor_b32 v{Vt1}, {t2}, v{Vr}")
        e(f"v_lshlrev_b32 v{Vt1}, 6, v{Vt1}")
        e(f"v_add_u32 v{V_AV+t2}, v{Vt0}, v{Vt1}")
    e("s_nop 7")
    for T in range(8):
        for u in range(2):
            for r in range(4):
                a = V_O + 16 * T + 8 * u + 2 * r
                e(f"v_cvt_pk_bf16_f32 v{V_Q + 4*(2*T+u) + r}, v{a}, v{a+1}")
    for i in range(128):
        e(f"v_mov_b32 v{V_O+i}, 0")
    e(f"v_mov_b32 v{V_MC}, 0xff800000")
    e(f"v_mov_b32 v{V_L}, 0")
    cval = math.log2(math.e) / 16.0
    import struct
    cbits = struct.unpack("<I", struct.pack("<f", cval))[0]
    e(f"s_mov_b32 s{S_C}, 0x{cbits:08x}")
    e(f"s_mov_b32 s{S_CNT}, 0")
    e(f"s_mov_b32 s{S_SLOTI}, 0")
    e(f"s_mov_b32 s74, {SLOT}")
    e(f"s_mov_b32 s75, {(-4*SLOT) & 0xffffffff}")

    A.label("L_loop")
    nb0 = A.nbar
    A.barrier()

    def rdK(ks):
        f = V_F + 4 * (ks % 4)
        A.lds_issue(("k", ks), f"ds_read_b128 {vr(f,4)}, v{V_AK+(ks&7)} offset:{(ks>>3)*256}")

    pv = [(dt, kk) for dt in range(8) for kk in range(2)]

    def rdV(i):
        dt, kk = pv[i]
        f = V_F + 4 * (i % 4)
        base = kk * 8192 + (dt >> 2) * 256
        A.lds_issue(("v", i), f"ds_read_b64_tr_b16 {vr(f,2)}, v{V_AV+(dt&3)} offset:{base}")
        A.lds_issue(("v", i), f"ds_read_b64_tr_b16 {vr(f+2,2)}, v{V_AV+(dt&3)} offset:{base+4096}")

    for ks in range(4):
        rdK(ks)
    for ks in range(16):
        A.lds_wait(("k", ks))
        cacc = "0" if ks == 0 else vr(V_S, 16)
        e(f"v_mfma_f32_32x32x16_bf16 {vr(V_S,16)}, {vr(V_F+4*(ks%4),4)}, {vr(V_Q+4*ks,4)}, {cacc}")
        if ks + 4 < 16:
            rdK(ks + 4)
        else:
            rdV(ks - 12)
    e(f"s_add_u32 s{S_SLOTI}, s{S_SLOTI}, 1")
    e(f"s_cmp_eq_u32 s{S_SLOTI}, 5")
    e(f"s_cselect_b32 s{S_DELTA}, s75, s74")
    e(f"s_cselect_b32 s{S_SLOTI}, 0, s{S_SLOTI}")
    for k7 in range(8):
        e(f"v_add_u32 v{V_AK+k7}, s{S_DELTA}, v{V_AK+k7}")
    e("s_nop 3")
    S = V_S
    t0, t1, t2_, t3, t4, t5 = V_T, V_T + 1, V_T + 2, V_T + 3, V_T + 4, V_T + 5
    e(f"v_max3_f32 v{t0}, v{S}, v{S+1}, v{S+2}")
    e(f"v_max3_f32 v{t1}, v{S+3}, v{S+4}, v{S+5}")
    e(f"v_max3_f32 v{t2_}, v{S+6}, v{S+7}, v{S+8}")
    e(f"v_max3_f32 v{t3}, v{S+9}, v{S+10}, v{S+11}")
    e(f"v_max3_f32 v{t4}, v{S+12}, v{S+13}, v{S+14}")
    e(f"v_max3_f32 v{t0}, v{t0}, v{t1}, v{S+15}")
    e(f"v_max3_f32 v{t2_}, v{t2_}, v{t3}, v{t4}")
    e(f"v_max_f32 v{t0}, v{t0}, v{t2_}")
    e(f"v_mov_b32 v{t1}, v{t0}")
    e("s_nop 1")
    e(f"v_permlane32_swap_b32 v{t0}, v{t1}")
    e("s_nop 1")
    e(f"v_max_f32 v{t0}, v{t0}, v{t1}")
    e(f"v_mul_f32 v{t0}, s{S_C}, v{t0}")
    e(f"v_sub_f32 v{t1}, v{t0}, v{V_MC}")
    e(f"v_cmp_lt_f32 vcc, 0x41000000, v{t1}")
    e("s_nop 1")
    e("s_cbranch_vccnz L_rescale")
    A.label("L_rescale_done")
    for i in range(16):
        e(f"v_fma_f32 v{S+i}, v{S+i}, s{S_C}, -v{V_MC}")
    for i in range(16):
        e(f"v_exp_f32 v{S+i}, v{S+i}")
    e("s_nop 0")
    e(f"v_add_f32 v{t0}, v{S}, v{S+1}")
    e(f"v_add_f32 v{t1}, v{S+2}, v{S+3}")
    e(f"v_add_f32 v{t2_}, v{S+4}, v{S+5}")
    e(f"v_add_f32 v{t3}, v{S+6}, v{S+7}")
    for i in range(8):
        e(f"v_cvt_pk_bf16_f32 v{V_P+i}, v{S+2*i}, v{S+2*i+1}")
    e(f"v_add_f32 v{t0}, v{t0}, v{S+8}")
    e(f"v_add_f32 v{t1}, v{t1}, v{S+9}")
    e(f"v_add_f32 v{t2_}, v{t2_}, v{S+10}")
    e(f"v_add_f32 v{t3}, v{t3}, v{S+11}")
    e(f"v_add_f32 v{t0}, v{t0}, v{S+12}")
    e(f"v_add_f32 v{t1}, v{t1}, v{S+13}")
    e(f"v_add_f32 v{t2_}, v{t2_}, v{S+14}")
    e(f"v_add_f32 v{t3}, v{t3}, v{S+15}")
    for i in range(16):
        dt, kk = pv[i]
        A.lds_wait(("v", i))
        e(f"v_mfma_f32_32x32x16_bf16 {vr(V_O+16*dt,16)}, {vr(V_F+4*(i%4),4)}, {vr(V_P+4*kk,4)}, {vr(V_O+16*dt,16)}")
        if i + 4 < 16:
            rdV(i + 4)
        if i == 0:
            e(f"v_add_f32 v{t0}, v{t0}, v{t1}")
            e(f"v_add_f32 v{t2_}, v{t2_}, v{t3}")
        if i == 1:
            e(f"v_add_f32 v{t0}, v{t0}, v{t2_}")
            e(f"v_add_f32 v{V_L}, v{V_L}, v{t0}")
    assert not A.lds
    for t2 in range(4):
        e(f"v_add_u32 v{V_AV+t2}, s{S_DELTA}, v{V_AV+t2}")
    e(f"s_add_u32 s{S_CNT}, s{S_CNT}, 1")
    e(f"s_cmp_lt_u32 s{S_CNT}, 32")
    e("s_cbranch_scc1 L_loop")
    A.nbar = nb0 + 32

    A.stamp(6 if OPT["stamp"] == 2 else 2)
    A.c("---- finalize: normalise O, write bf16 frags to LDS")
    e(f"v_mov_b32 v{t1}, v{V_L}")
    e("s_nop 1")
    e(f"v_permlane32_swap_b32 v{V_L}, v{t1}")
    e("s_nop 1")
    e(f"v_add_f32 v{t0}, v{V_L}, v{t1}")
    e(f"v_rcp_f32 v{t0}, v{t0}")
    e(f"s_lshl_b32 s{S_T0}, s{S_QB}, 14")
    e(f"s_add_u32 s{S_T1}, s{S_T0}, {4*SLOT}")
    e(f"s_cmp_eq_u32 s{S_HEAD}, 0")
    e(f"s_cselect_b32 s{S_T2}, s{S_T1}, s{S_T0}")
    V_AB = V_AK
    V_AOWN = V_AK + 2
    V_AWO = V_AK + 4
    e(f"v_lshlrev_b32 v{t1}, 4, v{L}")
    e(f"v_add_u32 v{V_AB}, s{S_T1}, v{t1}")
    e(f"v_add_u32 v{V_AB+1}, s{S_T0}, v{t1}")
    e(f"v_add_u32 v{V_AOWN}, s{S_T2}, v{t1}")
    e("s_nop 7")
    for fr in range(16):
        dt, u = fr >> 1, fr & 1
        q = V_Q + 4 * fr
        for r in range(4):
            a = V_O + 16 * dt + 8 * u + 2 * r
            e(f"v_mul_f32 v{a}, v{a}, v{t0}")
            e(f"v_mul_f32 v{a+1}, v{a+1}, v{t0}")
            e(f"v_cvt_pk_bf16_f32 v{q+r}, v{a}, v{a+1}")
        e(f"ds_write_b128 v{V_AOWN}, {vr(q,4)} offset:{fr*1024}")
    e(f"v_lshrrev_b32 v{Vh}, 5, v{L}")
    e(f"v_bfe_u32 v{Vu}, v{L}, 4, 1")
    e(f"v_bfe_u32 v{Vr}, v{L}, 2, 2")
    e(f"v_and_b32 v{Vcc}, 3, v{L}")
    e(f"v_lshlrev_b32 v{Vt0}, 2, v{Vh}")
    e(f"v_add_u32 v{Vt0}, v{Vt0}, v{Vr}")
    e(f"v_mul_u32_u24 v{Vt0}, 896, v{Vt0}")
    e(f"v_lshlrev_b32 v{Vt1}, 5, v{Vu}")
    e(f"v_add_u32 v{Vt0}, v{Vt0}, v{Vt1}")
    e(f"v_lshlrev_b32 v{Vt1}, 3, v{Vcc}")
    e(f"v_add_u32 v{Vt0}, v{Vt0}, v{Vt1}")
    e(f"s_mul_i32 s{S_T0}, s{S_HEAD}, 448")
    e(f"s_add_u32 s{S_T0}, s{S_T0}, {2*SLOT}")
    e(f"v_add_u32 v{Vt0}, s{S_T0}, v{Vt0}")
    e(f"v_lshrrev_b32 v{Vt1}, 1, v{Vr}")
    e(f"v_lshlrev_b32 v{Vt1}, 6, v{Vt1}")
    e(f"v_add_u32 v{V_X1}, v{Vt0}, v{Vt1}")
    e(f"v_sub_u32 v{V_X2}, v{Vt0}, v{Vt1}")
    e(f"s_cmp_eq_u32 s{S_HEAD}, 0")
    e("s_cselect_b64 vcc, -1, 0")
    e("s_nop 1")
    e(f"v_cndmask_b32 v{V_AWO}, v{V_X2}, v{V_X1}, vcc")
    e(f"v_cndmask_b32 v{V_AWO+1}, v{V_X1}, v{V_X2}, vcc")
    e("s_waitcnt lgkmcnt(0)")

    if OPT["stamp"] == 1: A.stamp(3)
    V_ACC = 0
    V_BF = V_S
    ring = [2, 3, 1]
    for k in range(16):
        A.c(f"---- O-proj stage {k}")
        A.barrier()
        head = k >> 3
        for ksl in range(2):
            kq = 2 * k + ksl
            A.lds_issue(("b", ksl), f"ds_read_b128 {vr(V_BF+4*ksl,4)}, v{V_AB+head} offset:{(kq&15)*1024}")
        seq = [(ksl, nt) for ksl in range(2) for nt in range(7)]

        def rdA(i):
            ksl, nt = seq[i]
            f = V_F + 4 * (i % 4)
            base = ksl * 16 * 896 + nt * 64
            A.lds_issue(("a", i), f"ds_read_b64_tr_b16 {vr(f,2)}, v{V_AWO+(nt&1)} offset:{base}")
            A.lds_issue(("a", i), f"ds_read_b64_tr_b16 {vr(f+2,2)}, v{V_AWO+(nt&1)} offset:{base+8*896}")
        for i in range(4):
            rdA(i)
        for i in range(14):
            ksl, nt = seq[i]
            A.lds_wait(("a", i))
            cacc = "0" if (k == 0 and ksl == 0) else vr(V_ACC + 16 * nt, 16)
            e(f"v_mfma_f32_32x32x16_bf16 {vr(V_ACC+16*nt,16)}, {vr(V_F+4*(i%4),4)}, {vr(V_BF+4*ksl,4)}, {cacc}")
            if i + 4 < 14:
                rdA(i + 4)
        assert not A.lds
        if k < 15:
            d = (ring[(k + 1) % 3] - ring[k % 3]) * SLOT
            e(f"v_add_u32 v{V_AWO}, {d & 0xffffffff}, v{V_AWO}")
            e(f"v_add_u32 v{V_AWO+1}, {d & 0xffffffff}, v{V_AWO+1}")
    if OPT["stamp"] == 1: A.stamp(4)
    A.c("---- store partials")
    e(f"v_lshlrev_b32 v{t0}, 4, v{L}")
    e(f"s_mul_i32 s{S_SOFF}, s{S_WID}, 28672")
    e("s_nop 15")
    for nt in range(7):
        for g in range(4):
            e(f"buffer_store_dwordx4 {vr(V_ACC+16*nt+4*g,4)}, v{t0}, {sr(SRD2,4)}, s{S_SOFF} offen offset:{g*1024}")
        if nt < 6:
            e(f"s_add_u32 s{S_SOFF}, s{S_SOFF}, 4096")
    if OPT["stamp"]:
        e("s_waitcnt vmcnt(0)")
    A.stamp(7 if OPT["stamp"] == 2 else 5)
    A.stamp_flush(8)
    e("s_endpgm")
    nbar_cons = A.nbar

    A.label("L_rescale")
    e(f"v_max_f32 v{t0}, v{t0}, v{V_MC}")
    e(f"v_sub_f32 v{t1}, v{V_MC}, v{t0}")
    e(f"v_exp_f32 v{t1}, v{t1}")
    e(f"v_mov_b32 v{V_MC}, v{t0}")
    e("s_nop 0")
    e(f"v_mul_f32 v{V_L}, v{V_L}, v{t1}")
    for i in range(128):
        e(f"v_mul_f32 v{V_O+i}, v{V_O+i}, v{t1}")
    e("s_branch L_rescale_done")

    A.label("L_producer")
    A.nbar = 0
    S_P = 58
    e(f"s_sub_u32 s{S_P}, s{S_WID}, 4")
    e(f"s_lshl_b32 s{S_T0}, s{S_B}, 22")
    e(f"s_lshl_b32 s{S_T1}, s{S_HKV}, 19")
    e(f"s_add_u32 s{S_T0}, s{S_T0}, s{S_T1}")
    e(f"s_add_u32 s{SRD0}, s{S_K}, s{S_T0}")
    e(f"s_addc_u32 s{SRD0+1}, s{S_K+1}, 0")
    e(f"s_mov_b32 s{SRD0+2}, 524288")
    e(f"s_mov_b32 s{SRD0+3}, 0x00020000")
    e(f"s_add_u32 s{SRD1}, s{S_V}, s{S_T0}")
    e(f"s_addc_u32 s{SRD1+1}, s{S_V+1}, 0")
    e(f"s_mov_b32 s{SRD1+2}, 524288")
    e(f"s_mov_b32 s{SRD1+3}, 0x00020000")
    e(f"s_mul_i32 s{S_T0}, s{S_HKV}, 458752")
    e(f"s_add_u32 s{SRD2}, s{S_WO}, s{S_T0}")
    e(f"s_addc_u32 s{SRD2+1}, s{S_WO+1}, 0")
    e(f"s_mov_b32 s{SRD2+2}, 458752")
    e(f"s_mov_b32 s{SRD2+3}, 0x00020000")
    PK, PV_, PW = 10, 14, 16
    a, b2, c2, d2 = 2, 3, 4, 5
    e(f"v_lshrrev_b32 v{a}, 5, v{L}")
    e(f"v_and_b32 v{b2}, 31, v{L}")
    e(f"s_lshl_b32 s{S_T0}, s{S_P}, 3")
    e(f"v_add_u32 v{c2}, s{S_T0}, v{a}")
    e(f"v_lshlrev_b32 v{d2}, 9, v{c2}")
    for j in range(4):
        e(f"v_add_u32 v6, {2*j}, v{c2}")
        e("v_and_b32 v6, 15, v6")
        e(f"v_xor_b32 v6, v6, v{b2}")
        e("v_lshlrev_b32 v6, 4, v6")
        e(f"v_add_u32 v{PK+j}, v{d2}, v6")
    for jp in range(2):
        e(f"v_add_u32 v6, {2*jp}, v{a}")
        e("v_lshlrev_b32 v6, 2, v6")
        e(f"v_xor_b32 v6, v6, v{b2}")
        e("v_lshlrev_b32 v6, 4, v6")
        e(f"v_add_u32 v{PV_+jp}, v{d2}, v6")
    e(f"s_mul_i32 s{S_T0}, s{S_P}, 448")
    e(f"s_mov_b32 s{S_T1}, {(1<<32)//56 + 1}")
    for j in range(7):
        e(f"v_add_u32 v6, {64*j}, v{L}")
        e(f"v_add_u32 v6, s{S_T0}, v6")
        e(f"v_mul_hi_u32 v7, v6, s{S_T1}")
        e("v_mul_u32_u24 v8, 56, v7")
        e("v_sub_u32 v8, v6, v8")
        e("v_bfe_u32 v9, v7, 1, 1")
        e("v_lshlrev_b32 v9, 2, v9")
        e("v_xor_b32 v8, v8, v9")
        e("v_lshlrev_b32 v8, 4, v8")
        e("v_mul_u32_u24 v7, 896, v7")
        e(f"v_add_u32 v{PW+j}, v7, v8")
    e(f"s_lshl_b32 s{S_M0}, s{S_P}, 12")
    e(f"s_mul_i32 s{S_T3}, s{S_P}, 7168")

    def kv_issue_static(stage):
        slot = stage % 5
        e(f"s_mov_b32 s{S_SOFF}, {stage*16384}")
        e(f"s_add_u32 m0, s{S_M0}, {slot*SLOT}")
        e("s_nop 0")
        for j in range(4):
            A.vm_issue(("kv", stage), f"buffer_load_dwordx4 v{PK+j}, {sr(SRD0,4)}, s{S_SOFF} offen offset:{j*1024}{NT} lds")
        e(f"s_add_u32 m0, s{S_M0}, {slot*SLOT+16384}")
        e("s_nop 0")
        for j in range(4):
            A.vm_issue(("kv", stage), f"buffer_load_dwordx4 v{PV_+(j&1)}, {sr(SRD1,4)}, s{S_SOFF} offen offset:{j*1024}{NT} lds")

    def wo_issue(k, slot):
        e(f"s_mov_b32 s{S_SOFF}, {k*28672}")
        for j in range(7):
            e(f"s_add_u32 m0, s{S_T3}, {slot*SLOT + j*1024}")
            e("s_nop 0")
            A.vm_issue(("wo", k), f"buffer_load_dwordx4 v{PW+j}, {sr(SRD2,4)}, s{S_SOFF} offen lds")

    def wo_warm():
        e(f"s_mul_i32 s{S_T0}, s{S_B}, 28672")
        e(f"s_add_u32 s{S_T0}, s{S_T0}, s{S_T3}")
        e(f"v_lshlrev_b32 v6, 4, v{L}")
        for i in range(7):
            A.vm_issue(("warm", 0), f"buffer_load_dwordx4 {vr(32+4*i,4)}, v6, {sr(SRD2,4)}, s{S_T0} offen")
            if i < 6:
                e(f"s_add_u32 s{S_T0}, s{S_T0}, 1024")

    A.vm = []
    if OPT["kvdelay"] == 0:
        for st in range(3):
            kv_issue_static(st)
    A.stamp(1)
    for j in range(28):
        A.barrier()
        if OPT["kvdelay"] and j + 1 == OPT["kvdelay"]:
            for st in range(3):
                kv_issue_static(st)
    A.stamp(2)
    for t in range(32):
        A.vm_wait(("kv", t))
        A.barrier()
        if t == 0:
            kv_issue_static(3)
            kv_issue_static(4)
        elif t + 4 < 32:
            kv_issue_static(t + 4)
        elif t == 28:
            wo_issue(0, 2)
        elif t == 29:
            wo_issue(1, 3)
        if OPT["warm"] and t == OPT["warmt"]:
            wo_warm()
    A.stamp(3)
    for k in range(16):
        A.vm_wait(("wo", k))
        A.barrier()
        if k + 2 < 16:
            wo_issue(k + 2, ring[(k + 2) % 3])
    assert A.nbar == nbar_cons, (A.nbar, nbar_cons)
    A.stamp(4)
    A.stamp(5)
    A.stamp(6)
    A.stamp(7)
    A.stamp_flush(8)
    A.label("L_exit")
    e("s_endpgm")
    return A.lines


def gen_reduce():
    A = Asm()
    e = A.e
    A.label(KRED)
    e("s_cmp_ge_u32 s2, 896")
    e("s_cbranch_scc1 R_exit")
    e("s_load_dwordx2 s[4:5], s[0:1], 80")
    e("s_load_dwordx2 s[6:7], s[0:1], 96")
    e(f"s_mov_b32 s16, {(1<<32)//28 + 1}")
    e("s_mul_hi_u32 s17, s2, s16")
    e("s_mul_i32 s18, s17, 28")
    e("s_sub_u32 s18, s2, s18")
    e(f"s_mov_b32 s16, {(1<<32)//7 + 1}")
    e("s_mul_hi_u32 s19, s18, s16")
    e("s_mul_i32 s20, s19, 7")
    e("s_sub_u32 s20, s18, s20")
    e("s_waitcnt lgkmcnt(0)")
    e("s_mul_i32 s21, s17, 917504")
    e("s_lshl_b32 s22, s18, 12")
    e("s_add_u32 s21, s21, s22")
    e("s_add_u32 s8, s6, s21")
    e("s_addc_u32 s9, s7, 0")
    e(f"s_mov_b32 s10, {7*114688+4096}")
    e("s_mov_b32 s11, 0x00020000")
    e("s_mov_b32 s12, s4")
    e("s_mov_b32 s13, s5")
    e("s_mov_b32 s14, 1835008")
    e("s_mov_b32 s15, 0x00020000")
    e("v_lshlrev_b32 v1, 4, v0")
    for h in range(8):
        e(f"s_mov_b32 s23, {h*114688}")
        e(f"buffer_load_dwordx4 {vr(8+4*h,4)}, v1, s[8:11], s23 offen")
    e("s_and_b32 s24, s17, 15")
    e("s_lshr_b32 s25, s17, 4")
    e("s_lshl_b32 s24, s24, 6")
    e("s_and_b32 s26, s19, 1")
    e("s_lshl_b32 s26, s26, 5")
    e("s_add_u32 s24, s24, s26")
    e("s_mul_i32 s24, s24, 896")
    e("s_mul_i32 s25, s25, 448")
    e("s_add_u32 s24, s24, s25")
    e("s_lshr_b32 s26, s19, 1")
    e("s_mul_i32 s26, s26, 224")
    e("s_add_u32 s24, s24, s26")
    e("s_lshl_b32 s26, s20, 5")
    e("s_add_u32 s24, s24, s26")
    e("s_lshl_b32 s24, s24, 1")
    e("v_and_b32 v2, 31, v0")
    e("v_mul_u32_u24 v2, 1792, v2")
    e("v_lshrrev_b32 v3, 6, v0")
    e("v_lshlrev_b32 v3, 4, v3")
    e("v_add_u32 v2, v2, v3")
    e("v_bfe_u32 v3, v0, 5, 1")
    e("v_lshlrev_b32 v3, 3, v3")
    e("v_add_u32 v2, v2, v3")
    for h in range(1, 8):
        e(f"s_waitcnt vmcnt({7-h})")
        for i in range(4):
            e(f"v_add_f32 v{8+i}, v{8+i}, v{8+4*h+i}")
    e("v_cvt_pk_bf16_f32 v4, v8, v9")
    e("v_cvt_pk_bf16_f32 v5, v10, v11")
    e("buffer_store_dwordx2 v[4:5], v2, s[12:15], s24 offen")
    if OPT["dbg"]:
        e("s_cmp_lg_u32 s2, 0")
        e("s_cbranch_scc1 R_exit")
        e("s_load_dwordx2 s[4:5], s[0:1], 88")
        e(f"s_add_u32 s8, s6, {(64<<20) + OPT['dbgwg']*1024}")
        e("s_addc_u32 s9, s7, 0")
        e("s_mov_b32 s10, 1024")
        e("s_waitcnt lgkmcnt(0)")
        e("s_mov_b32 s12, s4")
        e("s_mov_b32 s13, s5")
        e("s_mov_b32 s14, 64")
        e("v_lshrrev_b32 v1, 3, v0")
        e("v_lshlrev_b32 v1, 9, v1")
        e("v_and_b32 v2, 7, v0")
        e("v_lshlrev_b32 v2, 3, v2")
        e("v_add_u32 v2, v1, v2")
        e("buffer_load_dword v3, v2, s[8:11], 0 offen")
        e("v_mov_b32 v1, 0")
        e("buffer_load_dword v4, v1, s[8:11], 0 offen")
        e("s_waitcnt vmcnt(0)")
        e("v_sub_u32 v3, v3, v4")
        e("v_lshlrev_b32 v1, 2, v0")
        e("buffer_store_dword v3, v1, s[12:15], 0 offen")
    A.label("R_exit")
    e("s_endpgm")
    return A.lines


def kd(name, vgpr, sgpr):
    acc = (vgpr + 3) // 4 * 4
    return f""".amdhsa_kernel {name}
  .amdhsa_next_free_vgpr {vgpr}
  .amdhsa_next_free_sgpr {sgpr}
  .amdhsa_accum_offset {acc}
  .amdhsa_group_segment_fixed_size 0
  .amdhsa_kernarg_size 104
  .amdhsa_user_sgpr_count 2
  .amdhsa_user_sgpr_kernarg_segment_ptr 1
  .amdhsa_system_sgpr_workgroup_id_x 1
.end_amdhsa_kernel
"""


def main():
    out = []
    out.append(f"; @launch kernel={KMAIN} grid=(256,1,1) block=(512,1,1) lds=163840")
    out.append(f"; @launch kernel={KRED} grid=(896,1,1) block=(256,1,1) lds=0")
    out.append('.amdgcn_target "amdgcn-amd-amdhsa--gfx950"')
    out.append(".text")
    for name, lines in ((KMAIN, gen_main()), (KRED, gen_reduce())):
        out.append(f".globl {name}")
        out.append(".p2align 8")
        out.append(f".type {name},@function")
        out += lines
    out.append('.section .rodata,"a"')
    out.append(".p2align 6")
    out.append(kd(KMAIN, 256, 100))
    out.append(".p2align 6")
    out.append(kd(KRED, 40, 32))
    open(sys.argv[1], "w").write("\n".join(out) + "\n")


main()
```

```python
import sys, math

NAME = "concat_heads__gqa_block_cached__gqa_block_cached__near_ridge"
KMAIN = NAME + "_kernel"
KRED = "reduce_partials_kernel"

OPT = dict(clk=0, wnt=0, xnt=0, wont=0, dbg=0, dbgwg=0, kvdelay=0, nt=1, stamp=0, nocompute=0, nodma=0, warm=1, warmt=20)
for a in sys.argv[2:]:
    k, v = a.split("=")
    OPT[k] = int(v)


class Asm:
    def __init__(self):
        self.lines = []
        self.lds = []
        self.nbar = 0
        self.vm = []

    def e(self, s):
        if OPT["nodma"] and s.endswith(" lds"):
            return
        if OPT["nocompute"] and (s.startswith("ds_read") or s.startswith("v_mfma") or s.startswith("v_exp") or s.startswith("v_fma")):
            return
        self.lines.append("    " + s)

    def label(self, s):
        self.lines.append(s + ":")

    def c(self, s):
        self.lines.append("    ; " + s)

    def lds_issue(self, tag, s):
        self.e(s)
        self.lds.append(tag)

    def lds_wait(self, tag):
        idx = max(i for i, t in enumerate(self.lds) if t == tag)
        n = len(self.lds) - 1 - idx
        assert n <= 15
        self.e(f"s_waitcnt lgkmcnt({n})")
        self.lds = self.lds[idx + 1:]

    def lds_wait_all(self):
        self.e("s_waitcnt lgkmcnt(0)")
        self.lds = []

    def vm_issue(self, tag, s):
        self.e(s)
        self.vm.append(tag)

    def vm_wait(self, tag):
        idx = max(i for i, t in enumerate(self.vm) if t == tag)
        n = len(self.vm) - 1 - idx
        assert n <= 63
        self.e(f"s_waitcnt vmcnt({n})")
        self.vm = self.vm[idx + 1:]

    def stamp(self, i):
        if not OPT["stamp"]:
            return
        assert not self.lds
        self.e(f"s_memrealtime s[{76+2*i}:{77+2*i}]")
        if OPT.get("clk") and i in (5, 6):
            self.e(f"s_memtime s[{76+2*(i-3)}:{77+2*(i-3)}]")
        self.e("s_waitcnt lgkmcnt(0)")

    def stamp_flush(self, n):
        if not OPT["stamp"]:
            return
        e = self.e
        e("s_lshl_b32 s92, s2, 3")
        e(f"s_add_u32 s92, s92, s{S_WID}")
        e("s_lshl_b32 s92, s92, 7")
        e(f"s_add_u32 s92, s92, {64<<20}")
        e(f"s_add_u32 s92, s{S_WS}, s92")
        e(f"s_addc_u32 s93, s{S_WS+1}, 0")
        e("s_mov_b32 s94, 128")
        e("s_mov_b32 s95, 0x00020000")
        e("v_mov_b32 v2, 0")
        for i in range(n):
            e(f"v_mov_b32 v4, s{76+2*i}")
            e(f"v_mov_b32 v5, s{77+2*i}")
            e(f"buffer_store_dwordx2 v[4:5], v2, s[92:95], 0 offen offset:{8*i}")
            e("s_nop 1")

    def barrier(self):
        self.e("s_barrier")
        self.nbar += 1


def vr(a, n):
    return f"v[{a}:{a+n-1}]"


def sr(a, n):
    return f"s[{a}:{a+n-1}]"


SLOT = 32768
NT = " nt" if OPT["nt"] else ""
WNT = " nt" if OPT["wnt"] else ""
XNT = " nt" if OPT["xnt"] else ""
WONT = " nt" if OPT["wont"] else ""

S_BLK, S_HKV, S_B, S_WID = 34, 35, 36, 37
S_T0, S_T1, S_T2, S_T3 = 60, 61, 62, 63
SRD0, SRD1, SRD2 = 40, 44, 48
S_SOFF, S_M0, S_CNT, S_DELTA, S_SLOTI, S_C = 52, 53, 54, 55, 56, 57
S_X, S_K, S_V, S_WQ, S_WO = 64, 66, 68, 70, 72
S_OUT, S_DBG, S_WS = 28, 30, 32

V_O = 0
V_Q = 128
V_S = 192
V_P = 208
V_F = 216
V_AK = 232
V_AV = 240
V_MC, V_L = 244, 245
V_T = 246
V_LANE = 252
V_X1, V_X2, V_X3 = 253, 254, 255


def gen_main():
    A = Asm()
    e = A.e
    A.label(KMAIN)
    e("s_cmp_ge_u32 s2, 256")
    e("s_cbranch_scc1 L_exit")
    e("s_load_dwordx16 s[8:23], s[0:1], 0")
    e("s_load_dwordx8 s[24:31], s[0:1], 64")
    e("s_load_dwordx2 s[32:33], s[0:1], 96")
    e(f"s_and_b32 s{S_T0}, s2, 7")
    e(f"s_lshl_b32 s{S_T0}, s{S_T0}, 1")
    e(f"s_lshr_b32 s{S_T1}, s2, 3")
    e(f"s_and_b32 s{S_T1}, s{S_T1}, 1")
    e(f"s_add_u32 s{S_T0}, s{S_T0}, s{S_T1}")
    e(f"s_lshr_b32 s{S_B}, s2, 4")
    e(f"s_lshr_b32 s{S_BLK}, s{S_T0}, 3")
    e(f"s_and_b32 s{S_HKV}, s{S_T0}, 7")
    e("v_lshrrev_b32 v1, 6, v0")
    e(f"v_and_b32 v{V_LANE}, 63, v0")
    e("s_nop 0")
    e(f"v_readfirstlane_b32 s{S_WID}, v1")
    e("s_waitcnt lgkmcnt(0)")
    e(f"s_cmp_eq_u32 s{S_BLK}, 0")
    e(f"s_cselect_b64 {sr(S_X,2)}, s[8:9], s[18:19]")
    e(f"s_cselect_b64 {sr(S_K,2)}, s[10:11], s[20:21]")
    e(f"s_cselect_b64 {sr(S_V,2)}, s[12:13], s[22:23]")
    e(f"s_cselect_b64 {sr(S_WQ,2)}, s[14:15], s[24:25]")
    e(f"s_cselect_b64 {sr(S_WO,2)}, s[16:17], s[26:27]")
    A.stamp(0)
    e(f"s_cmp_ge_u32 s{S_WID}, 4")
    e("s_cbranch_scc1 L_producer")

    L = V_LANE
    e(f"s_lshl_b32 s{S_T0}, s{S_HKV}, 10")
    e(f"s_add_u32 s{SRD0}, s{S_WQ}, s{S_T0}")
    e(f"s_addc_u32 s{SRD0+1}, s{S_WQ+1}, 0")
    e(f"s_sub_u32 s{SRD0+2}, {448*8192}, s{S_T0}")
    e(f"s_mov_b32 s{SRD0+3}, 0x00020000")
    e(f"s_mul_i32 s{S_T0}, s{S_B}, 57344")
    e(f"s_add_u32 s{SRD1}, s{S_X}, s{S_T0}")
    e(f"s_addc_u32 s{SRD1+1}, s{S_X+1}, 0")
    e(f"s_mov_b32 s{SRD1+2}, 57344")
    e(f"s_mov_b32 s{SRD1+3}, 0x00020000")
    e(f"s_lshl_b32 s{S_T0}, s{S_BLK}, 4")
    e(f"s_add_u32 s{S_T0}, s{S_T0}, s{S_B}")
    e(f"s_lshl_b32 s{S_T0}, s{S_T0}, 3")
    e(f"s_add_u32 s{S_T0}, s{S_T0}, s{S_HKV}")
    e(f"s_mul_i32 s{S_T0}, s{S_T0}, 114688")
    e(f"s_add_u32 s{SRD2}, s{S_WS}, s{S_T0}")
    e(f"s_addc_u32 s{SRD2+1}, s{S_WS+1}, 0")
    e(f"s_mov_b32 s{SRD2+2}, 114688")
    e(f"s_mov_b32 s{SRD2+3}, 0x00020000")
    S_HEAD, S_QB = 58, 59
    e(f"s_lshr_b32 s{S_HEAD}, s{S_WID}, 1")
    e(f"s_and_b32 s{S_QB}, s{S_WID}, 1")

    Vh, Vu, Vr, Vcc = V_T, V_T + 1, V_T + 2, V_T + 3
    Vt0, Vt1 = V_T + 4, V_T + 5
    e(f"v_lshrrev_b32 v{Vh}, 5, v{L}")
    e(f"v_bfe_u32 v{Vu}, v{L}, 4, 1")
    e(f"v_bfe_u32 v{Vr}, v{L}, 2, 2")
    e(f"v_and_b32 v{Vcc}, 3, v{L}")

    V_XF = V_S
    V_OFFW = V_P
    V_OFFX = V_P + 4
    V_AW = V_AK
    WBASE = 3 * SLOT
    e(f"s_lshl_b32 s{S_T0}, s{S_WID}, 15")
    for jj in range(4):
        e(f"v_xor_b32 v{Vt0}, {jj<<2}, v{L}")
        e(f"v_lshlrev_b32 v{Vt0}, 4, v{Vt0}")
        e(f"v_add_u32 v{Vt0}, {jj*8192 - jj*1024}, v{Vt0}")
        e(f"v_add_u32 v{V_OFFW+jj}, s{S_T0}, v{Vt0}")
    e(f"v_and_b32 v{Vt0}, 31, v{L}")
    e(f"s_lshl_b32 s{S_T0}, s{S_QB}, 5")
    e(f"v_add_u32 v{Vt0}, s{S_T0}, v{Vt0}")
    e(f"v_mul_u32_u24 v{Vt0}, 896, v{Vt0}")
    e(f"v_lshlrev_b32 v{Vt1}, 4, v{Vh}")
    e(f"v_add_u32 v{V_OFFX}, v{Vt0}, v{Vt1}")
    e(f"v_lshlrev_b32 v{Vt0}, 3, v{Vh}")
    e(f"v_add_u32 v{Vt0}, v{Vt0}, v{Vr}")
    e(f"v_lshlrev_b32 v{Vt0}, 10, v{Vt0}")
    e(f"v_lshlrev_b32 v{Vt1}, 5, v{Vu}")
    e(f"v_add_u32 v{Vt0}, v{Vt0}, v{Vt1}")
    e(f"v_and_b32 v{Vt1}, 1, v{Vcc}")
    e(f"v_lshlrev_b32 v{Vt1}, 4, v{Vt1}")
    e(f"v_add_u32 v{Vt0}, v{Vt0}, v{Vt1}")
    e(f"v_lshrrev_b32 v{Vt1}, 1, v{Vcc}")
    e(f"v_lshlrev_b32 v{Vt1}, 3, v{Vt1}")
    e(f"v_add_u32 v{Vt0}, v{Vt0}, v{Vt1}")
    e(f"s_lshl_b32 s{S_T0}, s{S_HEAD}, 9")
    e(f"s_add_u32 s{S_T0}, s{S_T0}, {WBASE}")
    e(f"v_add_u32 v{Vt0}, s{S_T0}, v{Vt0}")
    for t2 in range(4):
        e(f"v_xor_b32 v{Vt1}, {t2}, v{Vr}")
        e(f"v_lshlrev_b32 v{Vt1}, 6, v{Vt1}")
        e(f"v_add_u32 v{V_AW+t2}, v{Vt0}, v{Vt1}")

    def w_issue(j):
        e(f"s_mov_b32 s{S_SOFF}, {j*131072}")
        e(f"s_add_u32 m0, s{S_M0}, {(j%4)*16384}")
        e("s_nop 0")
        for jj in range(4):
            A.vm_issue(("w", j), f"buffer_load_dwordx4 v{V_OFFW+jj}, {sr(SRD0,4)}, s{S_SOFF} offen offset:{jj*1024}{WNT} lds")

    def x_issue(j):
        A.vm_issue(("x", j), f"buffer_load_dwordx4 {vr(V_Q+4*(j%16),4)}, v{V_OFFX}, {sr(SRD1,4)}, 0 offen offset:{j*32}{XNT}")

    e(f"s_lshl_b32 s{S_M0}, s{S_WID}, 12")
    e(f"s_add_u32 s{S_M0}, s{S_M0}, {WBASE}")
    w_issue(0)
    if OPT["warm"]:
        e(f"s_mul_i32 s{S_T0}, s{S_B}, 28")
        e(f"s_mul_i32 s{S_T1}, s{S_WID}, 7")
        e(f"s_add_u32 s{S_T0}, s{S_T0}, s{S_T1}")
        e(f"s_lshl_b32 s{S_T0}, s{S_T0}, 13")
        e(f"v_lshlrev_b32 v{Vt0}, 4, v{L}")
        for i in range(7):
            A.vm_issue(("warm", 0), f"buffer_load_dwordx4 {vr(V_O+4*i,4)}, v{Vt0}, {sr(SRD0,4)}, s{S_T0} offen{WNT}")
            if i < 6:
                e(f"s_add_u32 s{S_T0}, s{S_T0}, 8192")
    for j in range(16):
        x_issue(j)
    for j in range(1, 3):
        w_issue(j)
    NJ = 28
    for j in range(NJ):
        A.c(f"---- Q-proj step {j}")
        if j == 0:
            A.vm_wait(("x", 15))
        else:
            A.vm_wait(("w", j))
        A.barrier()
        if OPT["stamp"] == 2 and j in (0, 7, 14, 21):
            A.stamp(1 + j // 7)
        if j + 3 < NJ:
            w_issue(j + 3)

        def rd(T):
            f = V_F + 4 * (T % 4)
            base = (j % 4) * 16384 + (T >> 2) * 256
            A.lds_issue(("w", T), f"ds_read_b64_tr_b16 {vr(f,2)}, v{V_AW+(T&3)} offset:{base}")
            A.lds_issue(("w", T), f"ds_read_b64_tr_b16 {vr(f+2,2)}, v{V_AW+(T&3)} offset:{base+4096}")
        for T in range(4):
            rd(T)
        for T in range(8):
            A.lds_wait(("w", T))
            cacc = "0" if j == 0 else vr(V_O + 16 * T, 16)
            e(f"v_mfma_f32_32x32x16_bf16 {vr(V_O+16*T,16)}, {vr(V_F+4*(T%4),4)}, {vr(V_Q+4*(j%16),4)}, {cacc}")
            if T + 4 < 8:
                rd(T + 4)
        if j + 16 < NJ:
            x_issue(j + 16)
    assert not A.vm
    A.stamp(5 if OPT["stamp"] == 2 else 1)
    A.c("---- main loop address setup")
    e(f"v_and_b32 v{Vt0}, 31, v{L}")
    e(f"v_and_b32 v{Vt1}, 15, v{L}")
    e(f"v_lshlrev_b32 v{Vt0}, 9, v{Vt0}")
    for k7 in range(8):
        e(f"v_add_u32 v{V_X1}, {2*k7}, v{Vh}")
        e(f"v_xor_b32 v{V_X1}, v{V_X1}, v{Vt1}")
        e(f"v_lshlrev_b32 v{V_X1}, 4, v{V_X1}")
        e(f"v_add_u32 v{V_AK+k7}, v{Vt0}, v{V_X1}")
    e(f"v_lshlrev_b32 v{Vt0}, 2, v{Vh}")
    e(f"v_add_u32 v{Vt0}, v{Vt0}, v{Vr}")
    e(f"v_lshlrev_b32 v{Vt0}, 9, v{Vt0}")
    e(f"v_lshlrev_b32 v{Vt1}, 5, v{Vu}")
    e(f"v_add_u32 v{Vt0}, v{Vt0}, v{Vt1}")
    e(f"v_lshlrev_b32 v{Vt1}, 3, v{Vcc}")
    e(f"v_add_u32 v{Vt0}, v{Vt0}, v{Vt1}")
    e(f"v_add_u32 v{Vt0}, 16384, v{Vt0}")
    for t2 in range(4):
        e(f"v_xor_b32 v{Vt1}, {t2}, v{Vr}")
        e(f"v_lshlrev_b32 v{Vt1}, 6, v{Vt1}")
        e(f"v_add_u32 v{V_AV+t2}, v{Vt0}, v{Vt1}")
    e("s_nop 7")
    for T in range(8):
        for u in range(2):
            for r in range(4):
                a = V_O + 16 * T + 8 * u + 2 * r
                e(f"v_cvt_pk_bf16_f32 v{V_Q + 4*(2*T+u) + r}, v{a}, v{a+1}")
    for i in range(128):
        e(f"v_mov_b32 v{V_O+i}, 0")
    e(f"v_mov_b32 v{V_MC}, 0xff800000")
    e(f"v_mov_b32 v{V_L}, 0")
    cval = math.log2(math.e) / 16.0
    import struct
    cbits = struct.unpack("<I", struct.pack("<f", cval))[0]
    e(f"s_mov_b32 s{S_C}, 0x{cbits:08x}")
    e(f"s_mov_b32 s{S_CNT}, 0")
    e(f"s_mov_b32 s{S_SLOTI}, 0")
    e(f"s_mov_b32 s74, {SLOT}")
    e(f"s_mov_b32 s75, {(-4*SLOT) & 0xffffffff}")

    A.label("L_loop")
    nb0 = A.nbar
    A.barrier()

    def rdK(ks):
        f = V_F + 4 * (ks % 4)
        A.lds_issue(("k", ks), f"ds_read_b128 {vr(f,4)}, v{V_AK+(ks&7)} offset:{(ks>>3)*256}")

    pv = [(dt, kk) for dt in range(8) for kk in range(2)]

    def rdV(i):
        dt, kk = pv[i]
        f = V_F + 4 * (i % 4)
        base = kk * 8192 + (dt >> 2) * 256
        A.lds_issue(("v", i), f"ds_read_b64_tr_b16 {vr(f,2)}, v{V_AV+(dt&3)} offset:{base}")
        A.lds_issue(("v", i), f"ds_read_b64_tr_b16 {vr(f+2,2)}, v{V_AV+(dt&3)} offset:{base+4096}")

    for ks in range(4):
        rdK(ks)
    for ks in range(16):
        A.lds_wait(("k", ks))
        cacc = "0" if ks == 0 else vr(V_S, 16)
        e(f"v_mfma_f32_32x32x16_bf16 {vr(V_S,16)}, {vr(V_F+4*(ks%4),4)}, {vr(V_Q+4*ks,4)}, {cacc}")
        if ks + 4 < 16:
            rdK(ks + 4)
        else:
            rdV(ks - 12)
    e(f"s_add_u32 s{S_SLOTI}, s{S_SLOTI}, 1")
    e(f"s_cmp_eq_u32 s{S_SLOTI}, 5")
    e(f"s_cselect_b32 s{S_DELTA}, s75, s74")
    e(f"s_cselect_b32 s{S_SLOTI}, 0, s{S_SLOTI}")
    for k7 in range(8):
        e(f"v_add_u32 v{V_AK+k7}, s{S_DELTA}, v{V_AK+k7}")
    e("s_nop 3")
    S = V_S
    t0, t1, t2_, t3, t4, t5 = V_T, V_T + 1, V_T + 2, V_T + 3, V_T + 4, V_T + 5
    e(f"v_max3_f32 v{t0}, v{S}, v{S+1}, v{S+2}")
    e(f"v_max3_f32 v{t1}, v{S+3}, v{S+4}, v{S+5}")
    e(f"v_max3_f32 v{t2_}, v{S+6}, v{S+7}, v{S+8}")
    e(f"v_max3_f32 v{t3}, v{S+9}, v{S+10}, v{S+11}")
    e(f"v_max3_f32 v{t4}, v{S+12}, v{S+13}, v{S+14}")
    e(f"v_max3_f32 v{t0}, v{t0}, v{t1}, v{S+15}")
    e(f"v_max3_f32 v{t2_}, v{t2_}, v{t3}, v{t4}")
    e(f"v_max_f32 v{t0}, v{t0}, v{t2_}")
    e(f"v_mov_b32 v{t1}, v{t0}")
    e("s_nop 1")
    e(f"v_permlane32_swap_b32 v{t0}, v{t1}")
    e("s_nop 1")
    e(f"v_max_f32 v{t0}, v{t0}, v{t1}")
    e(f"v_mul_f32 v{t0}, s{S_C}, v{t0}")
    e(f"v_sub_f32 v{t1}, v{t0}, v{V_MC}")
    e(f"v_cmp_lt_f32 vcc, 0x41000000, v{t1}")
    e("s_nop 1")
    e("s_cbranch_vccnz L_rescale")
    A.label("L_rescale_done")
    for i in range(16):
        e(f"v_fma_f32 v{S+i}, v{S+i}, s{S_C}, -v{V_MC}")
    for i in range(16):
        e(f"v_exp_f32 v{S+i}, v{S+i}")
    e("s_nop 0")
    e(f"v_add_f32 v{t0}, v{S}, v{S+1}")
    e(f"v_add_f32 v{t1}, v{S+2}, v{S+3}")
    e(f"v_add_f32 v{t2_}, v{S+4}, v{S+5}")
    e(f"v_add_f32 v{t3}, v{S+6}, v{S+7}")
    for i in range(8):
        e(f"v_cvt_pk_bf16_f32 v{V_P+i}, v{S+2*i}, v{S+2*i+1}")
    e(f"v_add_f32 v{t0}, v{t0}, v{S+8}")
    e(f"v_add_f32 v{t1}, v{t1}, v{S+9}")
    e(f"v_add_f32 v{t2_}, v{t2_}, v{S+10}")
    e(f"v_add_f32 v{t3}, v{t3}, v{S+11}")
    e(f"v_add_f32 v{t0}, v{t0}, v{S+12}")
    e(f"v_add_f32 v{t1}, v{t1}, v{S+13}")
    e(f"v_add_f32 v{t2_}, v{t2_}, v{S+14}")
    e(f"v_add_f32 v{t3}, v{t3}, v{S+15}")
    for i in range(16):
        dt, kk = pv[i]
        A.lds_wait(("v", i))
        e(f"v_mfma_f32_32x32x16_bf16 {vr(V_O+16*dt,16)}, {vr(V_F+4*(i%4),4)}, {vr(V_P+4*kk,4)}, {vr(V_O+16*dt,16)}")
        if i + 4 < 16:
            rdV(i + 4)
        if i == 0:
            e(f"v_add_f32 v{t0}, v{t0}, v{t1}")
            e(f"v_add_f32 v{t2_}, v{t2_}, v{t3}")
        if i == 1:
            e(f"v_add_f32 v{t0}, v{t0}, v{t2_}")
            e(f"v_add_f32 v{V_L}, v{V_L}, v{t0}")
    assert not A.lds
    for t2 in range(4):
        e(f"v_add_u32 v{V_AV+t2}, s{S_DELTA}, v{V_AV+t2}")
    e(f"s_add_u32 s{S_CNT}, s{S_CNT}, 1")
    e(f"s_cmp_lt_u32 s{S_CNT}, 32")
    e("s_cbranch_scc1 L_loop")
    A.nbar = nb0 + 32

    A.stamp(6 if OPT["stamp"] == 2 else 2)
    A.c("---- finalize: normalise O, write bf16 frags to LDS")
    e(f"v_mov_b32 v{t1}, v{V_L}")
    e("s_nop 1")
    e(f"v_permlane32_swap_b32 v{V_L}, v{t1}")
    e("s_nop 1")
    e(f"v_add_f32 v{t0}, v{V_L}, v{t1}")
    e(f"v_rcp_f32 v{t0}, v{t0}")
    e(f"s_lshl_b32 s{S_T0}, s{S_QB}, 14")
    e(f"s_add_u32 s{S_T1}, s{S_T0}, {4*SLOT}")
    e(f"s_cmp_eq_u32 s{S_HEAD}, 0")
    e(f"s_cselect_b32 s{S_T2}, s{S_T1}, s{S_T0}")
    V_AB = V_AK
    V_AOWN = V_AK + 2
    V_AWO = V_AK + 4
    e(f"v_lshlrev_b32 v{t1}, 4, v{L}")
    e(f"v_add_u32 v{V_AB}, s{S_T1}, v{t1}")
    e(f"v_add_u32 v{V_AB+1}, s{S_T0}, v{t1}")
    e(f"v_add_u32 v{V_AOWN}, s{S_T2}, v{t1}")
    e("s_nop 7")
    for fr in range(16):
        dt, u = fr >> 1, fr & 1
        q = V_Q + 4 * fr
        for r in range(4):
            a = V_O + 16 * dt + 8 * u + 2 * r
            e(f"v_mul_f32 v{a}, v{a}, v{t0}")
            e(f"v_mul_f32 v{a+1}, v{a+1}, v{t0}")
            e(f"v_cvt_pk_bf16_f32 v{q+r}, v{a}, v{a+1}")
        e(f"ds_write_b128 v{V_AOWN}, {vr(q,4)} offset:{fr*1024}")
    e(f"v_lshrrev_b32 v{Vh}, 5, v{L}")
    e(f"v_bfe_u32 v{Vu}, v{L}, 4, 1")
    e(f"v_bfe_u32 v{Vr}, v{L}, 2, 2")
    e(f"v_and_b32 v{Vcc}, 3, v{L}")
    e(f"v_lshlrev_b32 v{Vt0}, 2, v{Vh}")
    e(f"v_add_u32 v{Vt0}, v{Vt0}, v{Vr}")
    e(f"v_mul_u32_u24 v{Vt0}, 896, v{Vt0}")
    e(f"v_lshlrev_b32 v{Vt1}, 5, v{Vu}")
    e(f"v_add_u32 v{Vt0}, v{Vt0}, v{Vt1}")
    e(f"v_lshlrev_b32 v{Vt1}, 3, v{Vcc}")
    e(f"v_add_u32 v{Vt0}, v{Vt0}, v{Vt1}")
    e(f"s_mul_i32 s{S_T0}, s{S_HEAD}, 448")
    e(f"s_add_u32 s{S_T0}, s{S_T0}, {2*SLOT}")
    e(f"v_add_u32 v{Vt0}, s{S_T0}, v{Vt0}")
    e(f"v_lshrrev_b32 v{Vt1}, 1, v{Vr}")
    e(f"v_lshlrev_b32 v{Vt1}, 6, v{Vt1}")
    e(f"v_add_u32 v{V_X1}, v{Vt0}, v{Vt1}")
    e(f"v_sub_u32 v{V_X2}, v{Vt0}, v{Vt1}")
    e(f"s_cmp_eq_u32 s{S_HEAD}, 0")
    e("s_cselect_b64 vcc, -1, 0")
    e("s_nop 1")
    e(f"v_cndmask_b32 v{V_AWO}, v{V_X2}, v{V_X1}, vcc")
    e(f"v_cndmask_b32 v{V_AWO+1}, v{V_X1}, v{V_X2}, vcc")
    e("s_waitcnt lgkmcnt(0)")

    if OPT["stamp"] == 1: A.stamp(3)
    V_ACC = 0
    V_BF = V_S
    ring = [2, 3, 1]
    for k in range(16):
        A.c(f"---- O-proj stage {k}")
        A.barrier()
        head = k >> 3
        for ksl in range(2):
            kq = 2 * k + ksl
            A.lds_issue(("b", ksl), f"ds_read_b128 {vr(V_BF+4*ksl,4)}, v{V_AB+head} offset:{(kq&15)*1024}")
        seq = [(ksl, nt) for ksl in range(2) for nt in range(7)]

        def rdA(i):
            ksl, nt = seq[i]
            f = V_F + 4 * (i % 4)
            base = ksl * 16 * 896 + nt * 64
            A.lds_issue(("a", i), f"ds_read_b64_tr_b16 {vr(f,2)}, v{V_AWO+(nt&1)} offset:{base}")
            A.lds_issue(("a", i), f"ds_read_b64_tr_b16 {vr(f+2,2)}, v{V_AWO+(nt&1)} offset:{base+8*896}")
        for i in range(4):
            rdA(i)
        for i in range(14):
            ksl, nt = seq[i]
            A.lds_wait(("a", i))
            cacc = "0" if (k == 0 and ksl == 0) else vr(V_ACC + 16 * nt, 16)
            e(f"v_mfma_f32_32x32x16_bf16 {vr(V_ACC+16*nt,16)}, {vr(V_F+4*(i%4),4)}, {vr(V_BF+4*ksl,4)}, {cacc}")
            if i + 4 < 14:
                rdA(i + 4)
        assert not A.lds
        if k < 15:
            d = (ring[(k + 1) % 3] - ring[k % 3]) * SLOT
            e(f"v_add_u32 v{V_AWO}, {d & 0xffffffff}, v{V_AWO}")
            e(f"v_add_u32 v{V_AWO+1}, {d & 0xffffffff}, v{V_AWO+1}")
    if OPT["stamp"] == 1: A.stamp(4)
    A.c("---- store partials")
    e(f"v_lshlrev_b32 v{t0}, 4, v{L}")
    e(f"s_mul_i32 s{S_SOFF}, s{S_WID}, 28672")
    e("s_nop 15")
    for nt in range(7):
        for g in range(4):
            e(f"buffer_store_dwordx4 {vr(V_ACC+16*nt+4*g,4)}, v{t0}, {sr(SRD2,4)}, s{S_SOFF} offen offset:{g*1024}")
        if nt < 6:
            e(f"s_add_u32 s{S_SOFF}, s{S_SOFF}, 4096")
    if OPT["stamp"]:
        e("s_waitcnt vmcnt(0)")
    A.stamp(7 if OPT["stamp"] == 2 else 5)
    A.stamp_flush(8)
    e("s_endpgm")
    nbar_cons = A.nbar

    A.label("L_rescale")
    e(f"v_max_f32 v{t0}, v{t0}, v{V_MC}")
    e(f"v_sub_f32 v{t1}, v{V_MC}, v{t0}")
    e(f"v_exp_f32 v{t1}, v{t1}")
    e(f"v_mov_b32 v{V_MC}, v{t0}")
    e("s_nop 0")
    e(f"v_mul_f32 v{V_L}, v{V_L}, v{t1}")
    for i in range(128):
        e(f"v_mul_f32 v{V_O+i}, v{V_O+i}, v{t1}")
    e("s_branch L_rescale_done")

    A.label("L_producer")
    A.nbar = 0
    S_P = 58
    e(f"s_sub_u32 s{S_P}, s{S_WID}, 4")
    e(f"s_lshl_b32 s{S_T0}, s{S_B}, 22")
    e(f"s_lshl_b32 s{S_T1}, s{S_HKV}, 19")
    e(f"s_add_u32 s{S_T0}, s{S_T0}, s{S_T1}")
    e(f"s_add_u32 s{SRD0}, s{S_K}, s{S_T0}")
    e(f"s_addc_u32 s{SRD0+1}, s{S_K+1}, 0")
    e(f"s_mov_b32 s{SRD0+2}, 524288")
    e(f"s_mov_b32 s{SRD0+3}, 0x00020000")
    e(f"s_add_u32 s{SRD1}, s{S_V}, s{S_T0}")
    e(f"s_addc_u32 s{SRD1+1}, s{S_V+1}, 0")
    e(f"s_mov_b32 s{SRD1+2}, 524288")
    e(f"s_mov_b32 s{SRD1+3}, 0x00020000")
    e(f"s_mul_i32 s{S_T0}, s{S_HKV}, 458752")
    e(f"s_add_u32 s{SRD2}, s{S_WO}, s{S_T0}")
    e(f"s_addc_u32 s{SRD2+1}, s{S_WO+1}, 0")
    e(f"s_mov_b32 s{SRD2+2}, 458752")
    e(f"s_mov_b32 s{SRD2+3}, 0x00020000")
    PK, PV_, PW = 10, 14, 16
    a, b2, c2, d2 = 2, 3, 4, 5
    e(f"v_lshrrev_b32 v{a}, 5, v{L}")
    e(f"v_and_b32 v{b2}, 31, v{L}")
    e(f"s_lshl_b32 s{S_T0}, s{S_P}, 3")
    e(f"v_add_u32 v{c2}, s{S_T0}, v{a}")
    e(f"v_lshlrev_b32 v{d2}, 9, v{c2}")
    for j in range(4):
        e(f"v_add_u32 v6, {2*j}, v{c2}")
        e("v_and_b32 v6, 15, v6")
        e(f"v_xor_b32 v6, v6, v{b2}")
        e("v_lshlrev_b32 v6, 4, v6")
        e(f"v_add_u32 v{PK+j}, v{d2}, v6")
    for jp in range(2):
        e(f"v_add_u32 v6, {2*jp}, v{a}")
        e("v_lshlrev_b32 v6, 2, v6")
        e(f"v_xor_b32 v6, v6, v{b2}")
        e("v_lshlrev_b32 v6, 4, v6")
        e(f"v_add_u32 v{PV_+jp}, v{d2}, v6")
    e(f"s_mul_i32 s{S_T0}, s{S_P}, 448")
    e(f"s_mov_b32 s{S_T1}, {(1<<32)//56 + 1}")
    for j in range(7):
        e(f"v_add_u32 v6, {64*j}, v{L}")
        e(f"v_add_u32 v6, s{S_T0}, v6")
        e(f"v_mul_hi_u32 v7, v6, s{S_T1}")
        e("v_mul_u32_u24 v8, 56, v7")
        e("v_sub_u32 v8, v6, v8")
        e("v_bfe_u32 v9, v7, 1, 1")
        e("v_lshlrev_b32 v9, 2, v9")
        e("v_xor_b32 v8, v8, v9")
        e("v_lshlrev_b32 v8, 4, v8")
        e("v_mul_u32_u24 v7, 896, v7")
        e(f"v_add_u32 v{PW+j}, v7, v8")
    e(f"s_lshl_b32 s{S_M0}, s{S_P}, 12")
    e(f"s_mul_i32 s{S_T3}, s{S_P}, 7168")

    def kv_issue_static(stage):
        slot = stage % 5
        e(f"s_mov_b32 s{S_SOFF}, {stage*16384}")
        e(f"s_add_u32 m0, s{S_M0}, {slot*SLOT}")
        e("s_nop 0")
        for j in range(4):
            A.vm_issue(("kv", stage), f"buffer_load_dwordx4 v{PK+j}, {sr(SRD0,4)}, s{S_SOFF} offen offset:{j*1024}{NT} lds")
        e(f"s_add_u32 m0, s{S_M0}, {slot*SLOT+16384}")
        e("s_nop 0")
        for j in range(4):
            A.vm_issue(("kv", stage), f"buffer_load_dwordx4 v{PV_+(j&1)}, {sr(SRD1,4)}, s{S_SOFF} offen offset:{j*1024}{NT} lds")

    def wo_issue(k, slot):
        e(f"s_mov_b32 s{S_SOFF}, {k*28672}")
        for j in range(7):
            e(f"s_add_u32 m0, s{S_T3}, {slot*SLOT + j*1024}")
            e("s_nop 0")
            A.vm_issue(("wo", k), f"buffer_load_dwordx4 v{PW+j}, {sr(SRD2,4)}, s{S_SOFF} offen{WONT} lds")

    def wo_warm():
        e(f"s_mul_i32 s{S_T0}, s{S_B}, 28672")
        e(f"s_add_u32 s{S_T0}, s{S_T0}, s{S_T3}")
        e(f"v_lshlrev_b32 v6, 4, v{L}")
        for i in range(7):
            A.vm_issue(("warm", 0), f"buffer_load_dwordx4 {vr(32+4*i,4)}, v6, {sr(SRD2,4)}, s{S_T0} offen{WONT}")
            if i < 6:
                e(f"s_add_u32 s{S_T0}, s{S_T0}, 1024")

    A.vm = []
    if OPT["kvdelay"] == 0:
        for st in range(3):
            kv_issue_static(st)
    A.stamp(1)
    for j in range(28):
        A.barrier()
        if OPT["kvdelay"] and j + 1 == OPT["kvdelay"]:
            for st in range(3):
                kv_issue_static(st)
    A.stamp(2)
    for t in range(32):
        A.vm_wait(("kv", t))
        A.barrier()
        if t == 0:
            kv_issue_static(3)
            kv_issue_static(4)
        elif t + 4 < 32:
            kv_issue_static(t + 4)
        elif t == 28:
            wo_issue(0, 2)
        elif t == 29:
            wo_issue(1, 3)
        if OPT["warm"] and t == OPT["warmt"]:
            wo_warm()
    A.stamp(3)
    for k in range(16):
        A.vm_wait(("wo", k))
        A.barrier()
        if k + 2 < 16:
            wo_issue(k + 2, ring[(k + 2) % 3])
    assert A.nbar == nbar_cons, (A.nbar, nbar_cons)
    A.stamp(4)
    A.stamp(5)
    A.stamp(6)
    A.stamp(7)
    A.stamp_flush(8)
    A.label("L_exit")
    e("s_endpgm")
    return A.lines


def gen_reduce():
    A = Asm()
    e = A.e
    A.label(KRED)
    e("s_cmp_ge_u32 s2, 896")
    e("s_cbranch_scc1 R_exit")
    e("s_load_dwordx2 s[4:5], s[0:1], 80")
    e("s_load_dwordx2 s[6:7], s[0:1], 96")
    e(f"s_mov_b32 s16, {(1<<32)//28 + 1}")
    e("s_mul_hi_u32 s17, s2, s16")
    e("s_mul_i32 s18, s17, 28")
    e("s_sub_u32 s18, s2, s18")
    e(f"s_mov_b32 s16, {(1<<32)//7 + 1}")
    e("s_mul_hi_u32 s19, s18, s16")
    e("s_mul_i32 s20, s19, 7")
    e("s_sub_u32 s20, s18, s20")
    e("s_waitcnt lgkmcnt(0)")
    e("s_mul_i32 s21, s17, 917504")
    e("s_lshl_b32 s22, s18, 12")
    e("s_add_u32 s21, s21, s22")
    e("s_add_u32 s8, s6, s21")
    e("s_addc_u32 s9, s7, 0")
    e(f"s_mov_b32 s10, {7*114688+4096}")
    e("s_mov_b32 s11, 0x00020000")
    e("s_mov_b32 s12, s4")
    e("s_mov_b32 s13, s5")
    e("s_mov_b32 s14, 1835008")
    e("s_mov_b32 s15, 0x00020000")
    e("v_lshlrev_b32 v1, 4, v0")
    for h in range(8):
        e(f"s_mov_b32 s23, {h*114688}")
        e(f"buffer_load_dwordx4 {vr(8+4*h,4)}, v1, s[8:11], s23 offen")
    e("s_and_b32 s24, s17, 15")
    e("s_lshr_b32 s25, s17, 4")
    e("s_lshl_b32 s24, s24, 6")
    e("s_and_b32 s26, s19, 1")
    e("s_lshl_b32 s26, s26, 5")
    e("s_add_u32 s24, s24, s26")
    e("s_mul_i32 s24, s24, 896")
    e("s_mul_i32 s25, s25, 448")
    e("s_add_u32 s24, s24, s25")
    e("s_lshr_b32 s26, s19, 1")
    e("s_mul_i32 s26, s26, 224")
    e("s_add_u32 s24, s24, s26")
    e("s_lshl_b32 s26, s20, 5")
    e("s_add_u32 s24, s24, s26")
    e("s_lshl_b32 s24, s24, 1")
    e("v_and_b32 v2, 31, v0")
    e("v_mul_u32_u24 v2, 1792, v2")
    e("v_lshrrev_b32 v3, 6, v0")
    e("v_lshlrev_b32 v3, 4, v3")
    e("v_add_u32 v2, v2, v3")
    e("v_bfe_u32 v3, v0, 5, 1")
    e("v_lshlrev_b32 v3, 3, v3")
    e("v_add_u32 v2, v2, v3")
    for h in range(1, 8):
        e(f"s_waitcnt vmcnt({7-h})")
        for i in range(4):
            e(f"v_add_f32 v{8+i}, v{8+i}, v{8+4*h+i}")
    e("v_cvt_pk_bf16_f32 v4, v8, v9")
    e("v_cvt_pk_bf16_f32 v5, v10, v11")
    e("buffer_store_dwordx2 v[4:5], v2, s[12:15], s24 offen")
    if OPT["dbg"]:
        e("s_cmp_lg_u32 s2, 0")
        e("s_cbranch_scc1 R_exit")
        e("s_load_dwordx2 s[4:5], s[0:1], 88")
        e(f"s_add_u32 s8, s6, {(64<<20) + OPT['dbgwg']*1024}")
        e("s_addc_u32 s9, s7, 0")
        e("s_mov_b32 s10, 1024")
        e("s_waitcnt lgkmcnt(0)")
        e("s_mov_b32 s12, s4")
        e("s_mov_b32 s13, s5")
        e("s_mov_b32 s14, 64")
        e("v_lshrrev_b32 v1, 3, v0")
        e("v_lshlrev_b32 v1, 9, v1")
        e("v_and_b32 v2, 7, v0")
        e("v_lshlrev_b32 v2, 3, v2")
        e("v_add_u32 v2, v1, v2")
        e("buffer_load_dword v3, v2, s[8:11], 0 offen")
        e("v_mov_b32 v1, 0")
        e("buffer_load_dword v4, v1, s[8:11], 0 offen")
        e("s_waitcnt vmcnt(0)")
        e("v_sub_u32 v3, v3, v4")
        e("v_lshlrev_b32 v1, 2, v0")
        e("buffer_store_dword v3, v1, s[12:15], 0 offen")
    A.label("R_exit")
    e("s_endpgm")
    return A.lines


def kd(name, vgpr, sgpr):
    acc = (vgpr + 3) // 4 * 4
    return f""".amdhsa_kernel {name}
  .amdhsa_next_free_vgpr {vgpr}
  .amdhsa_next_free_sgpr {sgpr}
  .amdhsa_accum_offset {acc}
  .amdhsa_group_segment_fixed_size 0
  .amdhsa_kernarg_size 104
  .amdhsa_user_sgpr_count 2
  .amdhsa_user_sgpr_kernarg_segment_ptr 1
  .amdhsa_system_sgpr_workgroup_id_x 1
.end_amdhsa_kernel
"""


def main():
    out = []
    out.append(f"; @launch kernel={KMAIN} grid=(256,1,1) block=(512,1,1) lds=163840")
    out.append(f"; @launch kernel={KRED} grid=(896,1,1) block=(256,1,1) lds=0")
    out.append('.amdgcn_target "amdgcn-amd-amdhsa--gfx950"')
    out.append(".text")
    for name, lines in ((KMAIN, gen_main()), (KRED, gen_reduce())):
        out.append(f".globl {name}")
        out.append(".p2align 8")
        out.append(f".type {name},@function")
        out += lines
    out.append('.section .rodata,"a"')
    out.append(".p2align 6")
    out.append(kd(KMAIN, 256, 100))
    out.append(".p2align 6")
    out.append(kd(KRED, 40, 32))
    open(sys.argv[1], "w").write("\n".join(out) + "\n")


main()
```

```python
import sys, math, struct

NAME = "concat_heads__gqa_block_cached__gqa_block_cached__near_ridge"
KMAIN = NAME + "_kernel"
KRED = "reduce_partials_kernel"

OPT = dict(ilv=1, ilvm=1, clk=0, pprio=0, kd=4, kdm=0, pre=1, rot=1, nt=1, stamp=0, dbg=0, dbgwg=0, nocompute=0, kvlate=0)
for a in sys.argv[2:]:
    k, v = a.split("=")
    OPT[k] = int(v)

SLOT = 32768
NT = " nt" if OPT["nt"] else ""

S_BLK, S_HKV, S_B, S_WID = 34, 35, 36, 37
SRD0, SRD1, SRD2 = 40, 44, 48
S_SOFF, S_M0, S_CNT, S_C, S_FLAG = 52, 53, 54, 57, 55
S_HEAD, S_QB = 58, 59
S_T0, S_T1, S_T2, S_T3 = 60, 61, 62, 63
S_X, S_K, S_V, S_WQ, S_WO = 64, 66, 68, 70, 72
S_OUT, S_DBG, S_WS = 28, 30, 32
S_R0, S_R1 = 96, 97


class Asm:
    def __init__(self):
        self.lines = []
        self.lds = []
        self.vm = []
        self.nbar = 0

    def e(self, s):
        if OPT["nocompute"] and (s.startswith("ds_read") or s.startswith("v_mfma") or s.startswith("v_exp")):
            return
        self.lines.append("    " + s)

    def label(self, s):
        self.lines.append(s + ":")

    def c(self, s):
        self.lines.append("    ; " + s)

    def lds_issue(self, tag, s):
        self.e(s)
        self.lds.append(tag)

    def lds_wait(self, tag):
        if tag not in self.lds:
            return
        idx = max(i for i, t in enumerate(self.lds) if t == tag)
        n = len(self.lds) - 1 - idx
        assert n <= 15, n
        self.e(f"s_waitcnt lgkmcnt({n})")
        self.lds = self.lds[idx + 1:]

    def lds_wait_all(self):
        self.e("s_waitcnt lgkmcnt(0)")
        self.lds = []

    def vm_issue(self, tag, s):
        self.e(s)
        self.vm.append(tag)

    def vm_wait(self, tag):
        if tag not in self.vm:
            return
        idx = max(i for i, t in enumerate(self.vm) if t == tag)
        n = len(self.vm) - 1 - idx
        assert n <= 63
        self.e(f"s_waitcnt vmcnt({n})")
        self.vm = self.vm[idx + 1:]

    def stamp(self, i):
        if not OPT["stamp"]:
            return
        self.e(f"s_memrealtime s[{76+2*i}:{77+2*i}]")
        if OPT.get("clk") and i in (5, 6):
            self.e(f"s_memtime s[{76+2*(i-3)}:{77+2*(i-3)}]")
        self.e("s_waitcnt lgkmcnt(0)")
        self.lds = []

    def stamp_flush(self, n):
        if not OPT["stamp"]:
            return
        e = self.e
        e("s_lshl_b32 s92, s2, 3")
        e(f"s_add_u32 s92, s92, s{S_WID}")
        e("s_lshl_b32 s92, s92, 7")
        e(f"s_add_u32 s92, s92, {64<<20}")
        e(f"s_add_u32 s92, s{S_WS}, s92")
        e(f"s_addc_u32 s93, s{S_WS+1}, 0")
        e("s_mov_b32 s94, 128")
        e("s_mov_b32 s95, 0x00020000")
        e("v_mov_b32 v2, 0")
        for i in range(n):
            e(f"v_mov_b32 v4, s{76+2*i}")
            e(f"v_mov_b32 v5, s{77+2*i}")
            e(f"buffer_store_dwordx2 v[4:5], v2, s[92:95], 0 offen offset:{8*i}")
            e("s_nop 1")

    def barrier(self):
        self.e("s_barrier")
        self.nbar += 1


def vr(a, n):
    return f"v[{a}:{a+n-1}]"


def sr(a, n):
    return f"s[{a}:{a+n-1}]"


def mfma(d, a, b, c):
    cs = "0" if c is None else vr(c, 16)
    return f"v_mfma_f32_32x32x16_bf16 {vr(d,16)}, {vr(a,4)}, {vr(b,4)}, {cs}"


V_O = 0
V_Q = 128
V_S = 192
V_F = 224
V_AK = 240
V_AKT = 241
V_AV = 242
V_MC, V_L = 246, 247
V_T = 248
V_LANE = 254
V_X = 255

WBASE = 2 * SLOT
RING = [3, 4, 2]
NWS = 6
WREG = NWS * 4096


def lane_fields(e, L, Vh, Vu, Vr, Vcc):
    e(f"v_lshrrev_b32 v{Vh}, 5, v{L}")
    e(f"v_bfe_u32 v{Vu}, v{L}, 4, 1")
    e(f"v_bfe_u32 v{Vr}, v{L}, 2, 2")
    e(f"v_and_b32 v{Vcc}, 3, v{L}")


def gen_main():
    A = Asm()
    e = A.e
    A.label(KMAIN)
    e("s_cmp_ge_u32 s2, 256")
    e("s_cbranch_scc1 L_exit")
    e("s_load_dwordx16 s[8:23], s[0:1], 0")
    e("s_load_dwordx8 s[24:31], s[0:1], 64")
    e("s_load_dwordx2 s[32:33], s[0:1], 96")
    e(f"s_and_b32 s{S_T0}, s2, 7")
    e(f"s_lshl_b32 s{S_T0}, s{S_T0}, 1")
    e(f"s_lshr_b32 s{S_T1}, s2, 3")
    e(f"s_and_b32 s{S_T1}, s{S_T1}, 1")
    e(f"s_add_u32 s{S_T0}, s{S_T0}, s{S_T1}")
    e(f"s_lshr_b32 s{S_B}, s2, 4")
    e(f"s_lshr_b32 s{S_BLK}, s{S_T0}, 3")
    e(f"s_and_b32 s{S_HKV}, s{S_T0}, 7")
    e("v_lshrrev_b32 v1, 6, v0")
    e(f"v_and_b32 v{V_LANE}, 63, v0")
    e("s_nop 0")
    e(f"v_readfirstlane_b32 s{S_WID}, v1")
    e("s_waitcnt lgkmcnt(0)")
    e(f"s_cmp_eq_u32 s{S_BLK}, 0")
    e(f"s_cselect_b64 {sr(S_X,2)}, s[8:9], s[18:19]")
    e(f"s_cselect_b64 {sr(S_K,2)}, s[10:11], s[20:21]")
    e(f"s_cselect_b64 {sr(S_V,2)}, s[12:13], s[22:23]")
    e(f"s_cselect_b64 {sr(S_WQ,2)}, s[14:15], s[24:25]")
    e(f"s_cselect_b64 {sr(S_WO,2)}, s[16:17], s[26:27]")
    A.stamp(0)
    e(f"s_cmp_ge_u32 s{S_WID}, 4")
    e("s_cbranch_scc1 L_producer")

    def bump(sreg, n):
        e(f"s_add_u32 s{sreg}, s{sreg}, 1")
        e(f"s_cmp_ge_u32 s{sreg}, {n}")
        e(f"s_cselect_b32 s{sreg}, 0, s{sreg}")

    L = V_LANE
    e(f"s_lshl_b32 s{S_T0}, s{S_HKV}, 10")
    e(f"s_add_u32 s{SRD0}, s{S_WQ}, s{S_T0}")
    e(f"s_addc_u32 s{SRD0+1}, s{S_WQ+1}, 0")
    e(f"s_sub_u32 s{SRD0+2}, {448*8192}, s{S_T0}")
    e(f"s_mov_b32 s{SRD0+3}, 0x00020000")
    e(f"s_mul_i32 s{S_T0}, s{S_B}, 57344")
    e(f"s_add_u32 s{SRD1}, s{S_X}, s{S_T0}")
    e(f"s_addc_u32 s{SRD1+1}, s{S_X+1}, 0")
    e(f"s_mov_b32 s{SRD1+2}, 57344")
    e(f"s_mov_b32 s{SRD1+3}, 0x00020000")
    e(f"s_lshl_b32 s{S_T0}, s{S_BLK}, 4")
    e(f"s_add_u32 s{S_T0}, s{S_T0}, s{S_B}")
    e(f"s_lshl_b32 s{S_T0}, s{S_T0}, 3")
    e(f"s_add_u32 s{S_T0}, s{S_T0}, s{S_HKV}")
    e(f"s_mul_i32 s{S_T0}, s{S_T0}, 114688")
    e(f"s_add_u32 s{SRD2}, s{S_WS}, s{S_T0}")
    e(f"s_addc_u32 s{SRD2+1}, s{S_WS+1}, 0")
    e(f"s_mov_b32 s{SRD2+2}, 114688")
    e(f"s_mov_b32 s{SRD2+3}, 0x00020000")
    e(f"s_lshr_b32 s{S_HEAD}, s{S_WID}, 1")
    e(f"s_and_b32 s{S_QB}, s{S_WID}, 1")

    Vh, Vu, Vr, Vcc = V_T, V_T + 1, V_T + 2, V_T + 3
    Vt0, Vt1 = V_T + 4, V_T + 5
    lane_fields(e, L, Vh, Vu, Vr, Vcc)

    QR = V_Q
    V_OFFW, V_XB, V_XF7, V_XA = QR, QR + 1, QR + 2, QR + 3
    V_AW = QR + 4
    V_XR = QR + 8
    V_WF = QR + 24
    e(f"s_mul_i32 s{S_T0}, s{S_WID}, 896")
    e(f"s_mov_b32 s{S_T1}, {(1<<32)//56 + 1}")
    e(f"s_mul_i32 s{S_T2}, s{S_WID}, 14336")
    for i in range(14):
        r0 = V_O + 4 * i
        e(f"v_add_u32 v{r0}, {64*i}, v{L}")
        e(f"v_add_u32 v{r0}, s{S_T0}, v{r0}")
        e(f"v_mul_hi_u32 v{r0+1}, v{r0}, s{S_T1}")
        e(f"v_mul_u32_u24 v{r0+2}, 56, v{r0+1}")
        e(f"v_sub_u32 v{r0+2}, v{r0}, v{r0+2}")
        e(f"v_bfe_u32 v{r0+3}, v{r0+1}, 1, 3")
        e(f"v_xor_b32 v{r0+2}, v{r0+2}, v{r0+3}")
        e(f"v_lshlrev_b32 v{r0+2}, 4, v{r0+2}")
        e(f"v_mul_u32_u24 v{r0+1}, 896, v{r0+1}")
        e(f"v_add_u32 v{r0}, v{r0+1}, v{r0+2}")
        e(f"s_add_u32 m0, s{S_T2}, {i*1024}")
        e("s_nop 0")
        A.vm_issue(("xd", 0), f"buffer_load_dwordx4 v{r0}, {sr(SRD1,4)}, 0 offen lds")
    e(f"v_lshrrev_b32 v{Vt0}, 4, v{L}")
    e(f"v_lshlrev_b32 v{Vt1}, 2, v{Vt0}")
    e(f"v_and_b32 v{V_X}, 15, v{L}")
    e(f"v_xor_b32 v{V_X}, v{V_X}, v{Vt1}")
    e(f"v_lshlrev_b32 v{V_X}, 4, v{V_X}")
    e(f"v_lshlrev_b32 v{Vt0}, 13, v{Vt0}")
    e(f"v_add_u32 v{Vt0}, v{Vt0}, v{V_X}")
    e(f"s_lshl_b32 s{S_T0}, s{S_WID}, 8")
    e(f"v_add_u32 v{V_OFFW}, s{S_T0}, v{Vt0}")
    e(f"s_mul_i32 s{S_M0}, s{S_WID}, {WREG}")
    e(f"s_add_u32 s{S_M0}, s{S_M0}, {WBASE}")
    S_WK, S_XK = S_R0, S_R1
    e(f"s_mul_i32 s{S_WK}, s{S_B}, 7")
    e(f"s_lshr_b32 s{S_WK}, s{S_WK}, 2")
    if not OPT["rot"]:
        e(f"s_mov_b32 s{S_WK}, 0")
    e(f"s_mov_b32 s{S_XK}, s{S_WK}")

    def w_issue(j):
        e(f"s_lshl_b32 s{S_SOFF}, s{S_WK}, 17")
        e(f"s_add_u32 m0, s{S_M0}, {(j%NWS)*4096}")
        bump(S_WK, 28)
        for i in range(4):
            A.vm_issue(("w", j), f"buffer_load_dwordx4 v{V_OFFW}, {sr(SRD0,4)}, s{S_SOFF} offen offset:{i*1024} lds")
            if i < 3:
                e(f"s_add_u32 s{S_SOFF}, s{S_SOFF}, {32768-1024}")

    for j in range(NWS - 1):
        w_issue(j)
    e(f"v_and_b32 v{Vt0}, 31, v{L}")
    e(f"v_mul_u32_u24 v{V_XB}, 896, v{Vt0}")
    e(f"v_bfe_u32 v{V_XF7}, v{L}, 1, 3")
    e(f"v_lshlrev_b32 v{Vt0}, 3, v{Vh}")
    e(f"v_add_u32 v{Vt0}, v{Vt0}, v{Vr}")
    e(f"v_lshlrev_b32 v{Vt0}, 8, v{Vt0}")
    e(f"v_lshlrev_b32 v{Vt1}, 5, v{Vu}")
    e(f"v_add_u32 v{Vt0}, v{Vt0}, v{Vt1}")
    e(f"v_and_b32 v{Vt1}, 1, v{Vcc}")
    e(f"v_lshlrev_b32 v{Vt1}, 4, v{Vt1}")
    e(f"v_add_u32 v{Vt0}, v{Vt0}, v{Vt1}")
    e(f"v_lshrrev_b32 v{Vt1}, 1, v{Vcc}")
    e(f"v_lshlrev_b32 v{Vt1}, 3, v{Vt1}")
    e(f"v_add_u32 v{Vt0}, v{Vt0}, v{Vt1}")
    e(f"v_add_u32 v{Vt0}, s{S_M0}, v{Vt0}")
    for t2 in range(4):
        e(f"v_xor_b32 v{Vt1}, {t2}, v{Vr}")
        e(f"v_lshlrev_b32 v{Vt1}, 6, v{Vt1}")
        e(f"v_add_u32 v{V_AW+t2}, v{Vt0}, v{Vt1}")
    e(f"v_and_b32 v{Vt0}, 31, v{L}")
    e(f"v_and_b32 v{Vt1}, 15, v{L}")
    e(f"v_xor_b32 v{Vt1}, v{Vt1}, v{Vh}")
    e(f"v_lshlrev_b32 v{Vt1}, 4, v{Vt1}")
    e(f"v_lshlrev_b32 v{Vt0}, 9, v{Vt0}")
    e(f"v_add_u32 v{V_AK}, v{Vt0}, v{Vt1}")
    e(f"v_lshlrev_b32 v{Vt0}, 2, v{Vh}")
    e(f"v_add_u32 v{Vt0}, v{Vt0}, v{Vr}")
    e(f"v_lshlrev_b32 v{Vt0}, 9, v{Vt0}")
    e(f"v_lshlrev_b32 v{Vt1}, 5, v{Vu}")
    e(f"v_add_u32 v{Vt0}, v{Vt0}, v{Vt1}")
    e(f"v_lshlrev_b32 v{Vt1}, 3, v{Vcc}")
    e(f"v_add_u32 v{Vt0}, v{Vt0}, v{Vt1}")
    e(f"v_add_u32 v{Vt0}, 16384, v{Vt0}")
    for t2 in range(4):
        e(f"v_xor_b32 v{Vt1}, {t2}, v{Vr}")
        e(f"v_lshlrev_b32 v{Vt1}, 6, v{Vt1}")
        e(f"v_add_u32 v{V_AV+t2}, v{Vt0}, v{Vt1}")
    A.vm_wait(("xd", 0))
    A.barrier()
    NJ = 28

    def q_reads(j):
        e(f"s_lshl_b32 s{S_T0}, s{S_XK}, 1")
        bump(S_XK, 28)
        e(f"v_add_u32 v{V_XA}, s{S_T0}, v{Vh}")
        e(f"v_xor_b32 v{V_XA}, v{V_XA}, v{V_XF7}")
        e(f"v_lshlrev_b32 v{V_XA}, 4, v{V_XA}")
        e(f"v_add_u32 v{V_XA}, v{V_XA}, v{V_XB}")
        xr = V_XR + 8 * (j % 2)
        for qb in range(2):
            A.lds_issue(("x", j), f"ds_read_b128 {vr(xr+4*qb,4)}, v{V_XA} offset:{qb*28672}")
        A.vm_wait(("w", j))
        base = (j % NWS) * 4096
        for T in range(4):
            f = V_WF + 16 * (j % 2) + 4 * T
            A.lds_issue(("w", j, T), f"ds_read_b64_tr_b16 {vr(f,2)}, v{V_AW+T} offset:{base}")
            A.lds_issue(("w", j, T), f"ds_read_b64_tr_b16 {vr(f+2,2)}, v{V_AW+T} offset:{base+1024}")

    q_reads(0)
    for j in range(NJ):
        A.c(f"---- Q-proj step {j}")
        xr = V_XR + 8 * (j % 2)
        for T in range(4):
            A.lds_wait(("w", j, T))
            for qb in range(2):
                acc = V_O + 32 * T + 16 * qb
                e(mfma(acc, V_WF + 16 * (j % 2) + 4 * T, xr + 4 * qb, None if j == 0 else acc))
            if T == 3:
                pass
            if T == 1:
                A.lds_wait(("w", j, 3))
                if j + NWS - 1 < NJ:
                    w_issue(j + NWS - 1)
                if j + 1 < NJ:
                    q_reads(j + 1)
        if OPT["stamp"] == 2 and j in (0, 7, 14, 21):
            A.stamp(1 + j // 7)
    assert not A.vm
    A.stamp(5 if OPT["stamp"] == 2 else 1)
    e(f"v_lshlrev_b32 v{Vt0}, 4, v{L}")
    e(f"v_add_u32 v{Vt1}, s{S_M0}, v{Vt0}")
    e(f"s_mul_i32 s{S_T0}, s{S_HEAD}, {2*WREG}")
    e(f"s_lshl_b32 s{S_T1}, s{S_QB}, 13")
    e(f"s_add_u32 s{S_T0}, s{S_T0}, s{S_T1}")
    e(f"s_add_u32 s{S_T0}, s{S_T0}, {WBASE}")
    e(f"v_add_u32 v{V_X}, s{S_T0}, v{Vt0}")
    e("s_nop 15")
    for qb in range(2):
        for T in range(4):
            for u in range(2):
                f = 2 * T + u
                q = V_Q + 4 * (8 * qb + f)
                for r in range(4):
                    a_ = V_O + 32 * T + 16 * qb + 8 * u + 2 * r
                    e(f"v_cvt_pk_bf16_f32 v{q + r}, v{a_}, v{a_+1}")
                e(f"ds_write_b128 v{Vt1}, {vr(q,4)} offset:{qb*8192 + f*1024}")
    e("s_waitcnt lgkmcnt(0)")
    A.barrier()
    for ks in range(16):
        e(f"ds_read_b128 {vr(V_Q+4*ks,4)}, v{V_X} offset:{(ks>>3)*WREG + (ks&7)*1024}")
    for i in range(128):
        e(f"v_mov_b32 v{V_O+i}, 0")
    e(f"v_mov_b32 v{V_MC}, 0xff800000")
    e(f"v_mov_b32 v{V_L}, 0")
    cbits = struct.unpack("<I", struct.pack("<f", math.log2(math.e) / 16.0))[0]
    e(f"s_mov_b32 s{S_C}, 0x{cbits:08x}")
    e(f"s_mov_b32 s{S_CNT}, 0")
    e("s_mov_b32 s56, 0")
    e(f"s_mov_b32 s74, {SLOT}")
    e(f"s_mov_b32 s75, {(-4*SLOT) & 0xffffffff}")
    e("s_mov_b32 s38, 1")
    e(f"v_add_u32 v{V_AK}, {SLOT}, v{V_AK}")
    for t2 in range(4):
        e(f"v_add_u32 v{V_AV+t2}, {SLOT}, v{V_AV+t2}")
    e("s_waitcnt lgkmcnt(0)")
    A.barrier()

    t0, t1, t2_, t3, t4, t5 = (V_T + i for i in range(6))
    pv = [(dt, kk) for dt in range(8) for kk in range(2)]
    nresc = [0]

    def interval():
        S = V_S
        P = V_S + 16
        A.barrier()

        def rdK(ks):
            f = V_F + 4 * (ks % 4)
            k7 = ks & 7
            if k7:
                e(f"v_xor_b32 v{V_AKT}, {k7<<5}, v{V_AK}")
                ar = V_AKT
            else:
                ar = V_AK
            A.lds_issue(("k", ks), f"ds_read_b128 {vr(f,4)}, v{ar} offset:{(ks>>3)*256}")

        def rdV(i):
            dt, kk = pv[i]
            f = V_F + 4 * (i % 4)
            base = kk * 8192 + (dt >> 2) * 256
            A.lds_issue(("v", i), f"ds_read_b64_tr_b16 {vr(f,2)}, v{V_AV+(dt&3)} offset:{base}")
            A.lds_issue(("v", i), f"ds_read_b64_tr_b16 {vr(f+2,2)}, v{V_AV+(dt&3)} offset:{base+4096}")

        for ks in range(4):
            rdK(ks)
        for ks in range(16):
            A.lds_wait(("k", ks))
            e(mfma(S, V_F + 4 * (ks % 4), V_Q + 4 * ks, None if ks == 0 else S))
            if ks + 4 < 16:
                rdK(ks + 4)
            else:
                rdV(ks - 12)
        e("s_add_u32 s38, s38, 1")
        e("s_cmp_eq_u32 s38, 5")
        e("s_cselect_b32 s39, s75, s74")
        e("s_cselect_b32 s38, 0, s38")
        e(f"v_add_u32 v{V_AK}, s39, v{V_AK}")
        e("s_nop 8")
        for ins in [f"v_max3_f32 v{t0}, v{S}, v{S+1}, v{S+2}",
                    f"v_max3_f32 v{t1}, v{S+3}, v{S+4}, v{S+5}",
                    f"v_max3_f32 v{t2_}, v{S+6}, v{S+7}, v{S+8}",
                    f"v_max3_f32 v{t3}, v{S+9}, v{S+10}, v{S+11}",
                    f"v_max3_f32 v{t4}, v{S+12}, v{S+13}, v{S+14}",
                    f"v_max3_f32 v{t0}, v{t0}, v{t1}, v{S+15}",
                    f"v_max3_f32 v{t2_}, v{t2_}, v{t3}, v{t4}",
                    f"v_max_f32 v{t0}, v{t0}, v{t2_}",
                    f"v_mov_b32 v{t1}, v{t0}",
                    "s_nop 1",
                    f"v_permlane32_swap_b32 v{t0}, v{t1}",
                    "s_nop 1",
                    f"v_max_f32 v{t0}, v{t0}, v{t1}",
                    f"v_mul_f32 v{t5}, s{S_C}, v{t0}",
                    f"v_sub_f32 v{t1}, v{t5}, v{V_MC}",
                    f"v_cmp_lt_f32 vcc, 0x41000000, v{t1}",
                    "s_nop 1"]:
            e(ins)
        nresc[0] += 1
        e(f"s_cbranch_vccnz L_rescale{nresc[0]}")
        A.label(f"L_rescale_done{nresc[0]}")
        for i in range(16):
            e(f"v_fma_f32 v{S+i}, v{S+i}, s{S_C}, -v{V_MC}")
        for i in range(16):
            e(f"v_exp_f32 v{S+i}, v{S+i}")
        e("s_nop 0")
        for i in range(8):
            e(f"v_cvt_pk_bf16_f32 v{P+i}, v{S+2*i}, v{S+2*i+1}")
        sums = [f"v_add_f32 v{t0}, v{S}, v{S+1}", f"v_add_f32 v{t1}, v{S+2}, v{S+3}"]
        for i in range(4, 16, 2):
            sums.append(f"v_add_f32 v{t0}, v{t0}, v{S+i}")
            sums.append(f"v_add_f32 v{t1}, v{t1}, v{S+i+1}")
        sums.append(f"v_add_f32 v{t0}, v{t0}, v{t1}")
        sums.append(f"v_add_f32 v{V_L}, v{V_L}, v{t0}")
        if not OPT["ilvm"]:
            while sums:
                e(sums.pop(0))
        else:
            e("s_nop 1")
        for i in range(16):
            dt, kk = pv[i]
            A.lds_wait(("v", i))
            e(mfma(V_O + 16 * dt, V_F + 4 * (i % 4), P + 4 * kk, V_O + 16 * dt))
            if i + 4 < 16:
                rdV(i + 4)
            if sums:
                e(sums.pop(0))
        assert not A.lds and not sums
        for t2 in range(4):
            e(f"v_add_u32 v{V_AV+t2}, s39, v{V_AV+t2}")

    nb0 = A.nbar
    A.label("L_loop")
    interval()
    e(f"s_add_u32 s{S_CNT}, s{S_CNT}, 1")
    e(f"s_cmp_lt_u32 s{S_CNT}, 32")
    e("s_cbranch_scc1 L_loop")
    A.nbar = nb0 + 32

    A.stamp(6 if OPT["stamp"] == 2 else 2)
    e(f"v_mov_b32 v{t1}, v{V_L}")
    e("s_nop 1")
    e(f"v_permlane32_swap_b32 v{V_L}, v{t1}")
    e("s_nop 1")
    e(f"v_add_f32 v{t0}, v{V_L}, v{t1}")
    e(f"v_rcp_f32 v{t5}, v{t0}")
    e(f"s_lshl_b32 s{S_T1}, s{S_QB}, 14")
    e(f"s_add_u32 s{S_T0}, s{S_T1}, 32768")
    e(f"s_cmp_eq_u32 s{S_HEAD}, 0")
    e(f"s_cselect_b32 s{S_T2}, s{S_T1}, s{S_T0}")
    V_AB, V_ABC, V_AOWN, V_AWO = V_AK, V_AK + 1, V_AK + 2, V_AK + 4
    e(f"v_lshlrev_b32 v{t1}, 4, v{L}")
    e(f"v_add_u32 v{V_AB}, s{S_T1}, v{t1}")
    e(f"v_add_u32 v{V_AOWN}, s{S_T2}, v{t1}")
    e("s_nop 7")
    for fr in range(16):
        dt, u = fr >> 1, fr & 1
        q = V_Q + 4 * fr
        for r in range(4):
            a = V_O + 16 * dt + 8 * u + 2 * r
            e(f"v_mul_f32 v{a}, v{a}, v{t5}")
            e(f"v_mul_f32 v{a+1}, v{a+1}, v{t5}")
            e(f"v_cvt_pk_bf16_f32 v{q+r}, v{a}, v{a+1}")
        e(f"ds_write_b128 v{V_AOWN}, {vr(q,4)} offset:{fr*1024}")
    lane_fields(e, L, Vh, Vu, Vr, Vcc)
    e(f"v_lshlrev_b32 v{Vt0}, 2, v{Vh}")
    e(f"v_add_u32 v{Vt0}, v{Vt0}, v{Vr}")
    e(f"v_mul_u32_u24 v{Vt0}, 896, v{Vt0}")
    e(f"v_lshlrev_b32 v{Vt1}, 5, v{Vu}")
    e(f"v_add_u32 v{Vt0}, v{Vt0}, v{Vt1}")
    e(f"v_lshlrev_b32 v{Vt1}, 3, v{Vcc}")
    e(f"v_add_u32 v{Vt0}, v{Vt0}, v{Vt1}")
    e(f"s_mul_i32 s{S_T0}, s{S_HEAD}, 448")
    e(f"s_add_u32 s{S_T0}, s{S_T0}, {3*SLOT}")
    e(f"v_add_u32 v{Vt0}, s{S_T0}, v{Vt0}")
    e(f"v_lshrrev_b32 v{Vt1}, 1, v{Vr}")
    e(f"v_lshlrev_b32 v{Vt1}, 6, v{Vt1}")
    e(f"v_add_u32 v{V_S}, v{Vt0}, v{Vt1}")
    e(f"v_sub_u32 v{V_S+1}, v{Vt0}, v{Vt1}")
    e(f"s_cmp_eq_u32 s{S_HEAD}, 0")
    e("s_cselect_b64 vcc, -1, 0")
    e("s_nop 1")
    e(f"v_cndmask_b32 v{V_AWO}, v{V_S+1}, v{V_S}, vcc")
    e(f"v_cndmask_b32 v{V_AWO+1}, v{V_S}, v{V_S+1}, vcc")
    e("s_waitcnt lgkmcnt(0)")
    if OPT["stamp"] == 1:
        A.stamp(3)

    V_ACC = 0
    V_BF = V_S + 8
    V_AF = V_Q
    NAF = 7
    S_OK = S_R0
    e(f"s_mov_b32 s{S_OK}, " + (f"s{S_B}" if OPT["rot"] else "0"))
    for k in range(16):
        A.c(f"---- O-proj stage {k}")
        e(f"s_lshr_b32 s{S_T0}, s{S_OK}, 3")
        e(f"s_lshl_b32 s{S_T0}, s{S_T0}, 15")
        e(f"s_and_b32 s{S_T1}, s{S_OK}, 7")
        e(f"s_lshl_b32 s{S_T1}, s{S_T1}, 11")
        e(f"s_add_u32 s{S_T0}, s{S_T0}, s{S_T1}")
        e(f"v_add_u32 v{V_ABC}, s{S_T0}, v{V_AB}")
        e(f"s_add_u32 s{S_OK}, s{S_OK}, 1")
        e(f"s_and_b32 s{S_OK}, s{S_OK}, 15")
        A.barrier()
        A.lds_issue(("b", 0), f"ds_read_b128 {vr(V_BF,4)}, v{V_ABC}")
        seq = [(ksl, nt) for ksl in range(2) for nt in range(7)]
        sl = 0

        def rdA(i):
            ksl, nt = seq[i]
            f = V_AF + 4 * (i % 8)
            base = ksl * 16 * 896 + nt * 64 + sl
            A.lds_issue(("a", i), f"ds_read_b64_tr_b16 {vr(f,2)}, v{V_AWO+(nt&1)} offset:{base}")
            A.lds_issue(("a", i), f"ds_read_b64_tr_b16 {vr(f+2,2)}, v{V_AWO+(nt&1)} offset:{base+8*896}")
        for i in range(NAF):
            rdA(i)
        for i in range(14):
            ksl, nt = seq[i]
            A.lds_wait(("a", i))
            if i == 7:
                A.lds_wait(("b", 1))
            e(mfma(V_ACC + 16 * nt, V_AF + 4 * (i % 8), V_BF + 4 * ksl, None if (k == 0 and ksl == 0) else V_ACC + 16 * nt))
            if i == 0:
                A.lds_issue(("b", 1), f"ds_read_b128 {vr(V_BF+4,4)}, v{V_ABC} offset:1024")
            if i + NAF < 14:
                rdA(i + NAF)
        assert not A.lds
        if k < 15:
            d_ = (RING[(k + 1) % 3] - RING[k % 3]) * SLOT
            e(f"v_add_u32 v{V_AWO}, {d_ & 0xffffffff}, v{V_AWO}")
            e(f"v_add_u32 v{V_AWO+1}, {d_ & 0xffffffff}, v{V_AWO+1}")
    if OPT["stamp"] == 1:
        A.stamp(4)
    A.c("---- store partials")
    e(f"v_lshlrev_b32 v{t0}, 4, v{L}")
    e(f"s_mul_i32 s{S_SOFF}, s{S_WID}, 28672")
    e("s_nop 15")
    for nt in range(7):
        for g in range(4):
            e(f"buffer_store_dwordx4 {vr(V_ACC+16*nt+4*g,4)}, v{t0}, {sr(SRD2,4)}, s{S_SOFF} offen offset:{g*1024}")
        if nt < 6:
            e(f"s_add_u32 s{S_SOFF}, s{S_SOFF}, 4096")
    if OPT["stamp"]:
        e("s_waitcnt vmcnt(0)")
    A.stamp(7 if OPT["stamp"] == 2 else 5)
    if OPT["stamp"] == 2:
        e("s_add_u32 s84, s76, s56")
        e("s_addc_u32 s85, s77, 0")
    A.stamp_flush(8)
    e("s_endpgm")
    nbar_cons = A.nbar

    for n in range(1, nresc[0] + 1):
        A.label(f"L_rescale{n}")
        if OPT["stamp"]:
            e("s_add_u32 s56, s56, 1000")
        e("s_nop 15")
        e(f"v_max_f32 v{t0}, v{t5}, v{V_MC}")
        e(f"v_sub_f32 v{t1}, v{V_MC}, v{t0}")
        e(f"v_exp_f32 v{t1}, v{t1}")
        e(f"v_mov_b32 v{V_MC}, v{t0}")
        e("s_nop 0")
        e(f"v_mul_f32 v{V_L}, v{V_L}, v{t1}")
        for i in range(128):
            e(f"v_mul_f32 v{V_O+i}, v{V_O+i}, v{t1}")
        e(f"s_branch L_rescale_done{n}")

    A.label("L_producer")
    if OPT["pprio"]:
        e(f"s_setprio {OPT['pprio']}")
    A.nbar = 0
    A.vm = []
    A.lds = []
    S_P = 58
    e(f"s_sub_u32 s{S_P}, s{S_WID}, 4")
    e(f"s_lshl_b32 s{S_T0}, s{S_B}, 22")
    e(f"s_lshl_b32 s{S_T1}, s{S_HKV}, 19")
    e(f"s_add_u32 s{S_T0}, s{S_T0}, s{S_T1}")
    e(f"s_add_u32 s{SRD0}, s{S_K}, s{S_T0}")
    e(f"s_addc_u32 s{SRD0+1}, s{S_K+1}, 0")
    e(f"s_mov_b32 s{SRD0+2}, 524288")
    e(f"s_mov_b32 s{SRD0+3}, 0x00020000")
    e(f"s_add_u32 s{SRD1}, s{S_V}, s{S_T0}")
    e(f"s_addc_u32 s{SRD1+1}, s{S_V+1}, 0")
    e(f"s_mov_b32 s{SRD1+2}, 524288")
    e(f"s_mov_b32 s{SRD1+3}, 0x00020000")
    e(f"s_mul_i32 s{S_T0}, s{S_HKV}, 458752")
    e(f"s_add_u32 s{SRD2}, s{S_WO}, s{S_T0}")
    e(f"s_addc_u32 s{SRD2+1}, s{S_WO+1}, 0")
    e(f"s_mov_b32 s{SRD2+2}, 458752")
    e(f"s_mov_b32 s{SRD2+3}, 0x00020000")
    PK, PV_, PW, PAK, PAW = 10, 14, 16, 23, 24
    a, b2, c2, d2 = 2, 3, 4, 5
    e(f"v_lshrrev_b32 v{a}, 5, v{L}")
    e(f"v_and_b32 v{b2}, 31, v{L}")
    e(f"s_lshl_b32 s{S_T0}, s{S_P}, 3")
    e(f"v_add_u32 v{c2}, s{S_T0}, v{a}")
    e(f"v_lshlrev_b32 v{d2}, 9, v{c2}")
    for j in range(4):
        e(f"v_add_u32 v6, {2*j}, v{c2}")
        e("v_and_b32 v6, 15, v6")
        e(f"v_xor_b32 v6, v6, v{b2}")
        e("v_lshlrev_b32 v6, 4, v6")
        e(f"v_add_u32 v{PK+j}, v{d2}, v6")
    for jp in range(2):
        e(f"v_add_u32 v6, {2*jp}, v{a}")
        e("v_lshlrev_b32 v6, 2, v6")
        e(f"v_xor_b32 v6, v6, v{b2}")
        e("v_lshlrev_b32 v6, 4, v6")
        e(f"v_add_u32 v{PV_+jp}, v{d2}, v6")
    e(f"s_mul_i32 s{S_T0}, s{S_P}, 448")
    e(f"s_mov_b32 s{S_T1}, {(1<<32)//56 + 1}")
    for j in range(7):
        e(f"v_add_u32 v6, {64*j}, v{L}")
        e(f"v_add_u32 v6, s{S_T0}, v6")
        e(f"v_mul_hi_u32 v7, v6, s{S_T1}")
        e("v_mul_u32_u24 v8, 56, v7")
        e("v_sub_u32 v8, v6, v8")
        e("v_bfe_u32 v9, v7, 1, 1")
        e("v_lshlrev_b32 v9, 2, v9")
        e("v_xor_b32 v8, v8, v9")
        e("v_lshlrev_b32 v8, 4, v8")
        e("v_mul_u32_u24 v7, 896, v7")
        e(f"v_add_u32 v{PW+j}, v7, v8")
    e(f"s_lshl_b32 s{S_M0}, s{S_P}, 12")
    e(f"s_mul_i32 s{S_T3}, s{S_P}, 7168")
    e(f"s_mov_b32 s{S_R0}, " + (f"s{S_B}" if OPT["rot"] else "0"))

    def iv_issue(i):
        if i <= 31:
            sl = ((i + 1) % 5) * SLOT
            e(f"s_mov_b32 s{S_SOFF}, {i*16384}")
            e(f"s_add_u32 m0, s{S_M0}, {sl}")
            e("s_nop 0")
            for j in range(4):
                A.vm_issue(("iv", i), f"buffer_load_dwordx4 v{PK+j}, {sr(SRD0,4)}, s{S_SOFF} offen offset:{j*1024}{NT} lds")
            e(f"s_add_u32 m0, s{S_M0}, {sl+16384}")
            e("s_nop 0")
            for j in range(4):
                A.vm_issue(("iv", i), f"buffer_load_dwordx4 v{PV_+(j&1)}, {sr(SRD1,4)}, s{S_SOFF} offen offset:{j*1024}{NT} lds")
        else:
            k = i - 32
            sl = RING[k % 3] * SLOT
            e(f"s_mul_i32 s{S_SOFF}, s{S_R0}, 28672")
            e(f"s_add_u32 s{S_R0}, s{S_R0}, 1")
            e(f"s_and_b32 s{S_R0}, s{S_R0}, 15")
            for j in range(7):
                e(f"s_add_u32 m0, s{S_T3}, {sl + j*1024}")
                e("s_nop 0")
                A.vm_issue(("iv", i), f"buffer_load_dwordx4 v{PW+j}, {sr(SRD2,4)}, s{S_SOFF} offen lds")

    A.barrier()
    A.stamp(1)
    A.barrier()
    iv_issue(0)
    A.barrier()
    for i in (1, 2, 3, 4):
        iv_issue(i)
    A.stamp(2)
    for i in range(48):
        A.vm_wait(("iv", i))
        A.barrier()
        if i == 32:
            A.stamp(3)
        if 1 <= i and i + 4 <= 31:
            iv_issue(i + 4)
        elif i == 28:
            iv_issue(32)
        elif i == 29:
            iv_issue(33)
        elif i >= 32 and i + 2 < 48:
            iv_issue(i + 2)
    assert not A.vm
    assert A.nbar == nbar_cons, (A.nbar, nbar_cons)
    for i in range(4, 8):
        A.stamp(i)
    A.stamp_flush(8)
    A.label("L_exit")
    e("s_endpgm")
    return A.lines


def gen_reduce():
    A = Asm()
    e = A.e
    A.label(KRED)
    e("s_cmp_ge_u32 s2, 896")
    e("s_cbranch_scc1 R_exit")
    e("s_load_dwordx2 s[4:5], s[0:1], 80")
    e("s_load_dwordx2 s[6:7], s[0:1], 96")
    e(f"s_mov_b32 s16, {(1<<32)//28 + 1}")
    e("s_mul_hi_u32 s17, s2, s16")
    e("s_mul_i32 s18, s17, 28")
    e("s_sub_u32 s18, s2, s18")
    e(f"s_mov_b32 s16, {(1<<32)//7 + 1}")
    e("s_mul_hi_u32 s19, s18, s16")
    e("s_mul_i32 s20, s19, 7")
    e("s_sub_u32 s20, s18, s20")
    e("s_waitcnt lgkmcnt(0)")
    e("s_mul_i32 s21, s17, 917504")
    e("s_lshl_b32 s22, s18, 12")
    e("s_add_u32 s21, s21, s22")
    e("s_add_u32 s8, s6, s21")
    e("s_addc_u32 s9, s7, 0")
    e(f"s_mov_b32 s10, {7*114688+4096}")
    e("s_mov_b32 s11, 0x00020000")
    e("s_mov_b32 s12, s4")
    e("s_mov_b32 s13, s5")
    e("s_mov_b32 s14, 1835008")
    e("s_mov_b32 s15, 0x00020000")
    e("v_lshlrev_b32 v1, 4, v0")
    for h in range(8):
        e(f"s_mov_b32 s23, {h*114688}")
        e(f"buffer_load_dwordx4 {vr(8+4*h,4)}, v1, s[8:11], s23 offen")
    e("s_and_b32 s24, s17, 15")
    e("s_lshr_b32 s25, s17, 4")
    e("s_lshl_b32 s24, s24, 6")
    e("s_and_b32 s26, s19, 1")
    e("s_lshl_b32 s26, s26, 5")
    e("s_add_u32 s24, s24, s26")
    e("s_mul_i32 s24, s24, 896")
    e("s_mul_i32 s25, s25, 448")
    e("s_add_u32 s24, s24, s25")
    e("s_lshr_b32 s26, s19, 1")
    e("s_mul_i32 s26, s26, 224")
    e("s_add_u32 s24, s24, s26")
    e("s_lshl_b32 s26, s20, 5")
    e("s_add_u32 s24, s24, s26")
    e("s_lshl_b32 s24, s24, 1")
    e("v_and_b32 v2, 31, v0")
    e("v_mul_u32_u24 v2, 1792, v2")
    e("v_lshrrev_b32 v3, 6, v0")
    e("v_lshlrev_b32 v3, 4, v3")
    e("v_add_u32 v2, v2, v3")
    e("v_bfe_u32 v3, v0, 5, 1")
    e("v_lshlrev_b32 v3, 3, v3")
    e("v_add_u32 v2, v2, v3")
    for h in range(1, 8):
        e(f"s_waitcnt vmcnt({7-h})")
        for i in range(4):
            e(f"v_add_f32 v{8+i}, v{8+i}, v{8+4*h+i}")
    e("v_cvt_pk_bf16_f32 v4, v8, v9")
    e("v_cvt_pk_bf16_f32 v5, v10, v11")
    e("buffer_store_dwordx2 v[4:5], v2, s[12:15], s24 offen")
    if OPT["dbg"]:
        e("s_cmp_lg_u32 s2, 0")
        e("s_cbranch_scc1 R_exit")
        e("s_load_dwordx2 s[4:5], s[0:1], 88")
        e(f"s_add_u32 s8, s6, {(64<<20) + OPT['dbgwg']*1024}")
        e("s_addc_u32 s9, s7, 0")
        e("s_mov_b32 s10, 1024")
        e("s_waitcnt lgkmcnt(0)")
        e("s_mov_b32 s12, s4")
        e("s_mov_b32 s13, s5")
        e("s_mov_b32 s14, 64")
        e("v_lshrrev_b32 v1, 3, v0")
        e("v_lshlrev_b32 v1, 9, v1")
        e("v_and_b32 v2, 7, v0")
        e("v_lshlrev_b32 v2, 3, v2")
        e("v_add_u32 v2, v1, v2")
        e("buffer_load_dword v3, v2, s[8:11], 0 offen")
        e("v_mov_b32 v1, 0")
        e("buffer_load_dword v4, v1, s[8:11], 0 offen")
        e("s_waitcnt vmcnt(0)")
        e("v_sub_u32 v3, v3, v4")
        e("v_lshlrev_b32 v1, 2, v0")
        e("buffer_store_dword v3, v1, s[12:15], 0 offen")
    A.label("R_exit")
    e("s_endpgm")
    return A.lines


def kd(name, vgpr, sgpr):
    acc = (vgpr + 3) // 4 * 4
    return f""".amdhsa_kernel {name}
  .amdhsa_next_free_vgpr {vgpr}
  .amdhsa_next_free_sgpr {sgpr}
  .amdhsa_accum_offset {acc}
  .amdhsa_group_segment_fixed_size 0
  .amdhsa_kernarg_size 104
  .amdhsa_user_sgpr_count 2
  .amdhsa_user_sgpr_kernarg_segment_ptr 1
  .amdhsa_system_sgpr_workgroup_id_x 1
.end_amdhsa_kernel
"""


def main():
    out = []
    out.append(f"; @launch kernel={KMAIN} grid=(256,1,1) block=(512,1,1) lds=163840")
    out.append(f"; @launch kernel={KRED} grid=(896,1,1) block=(256,1,1) lds=0")
    out.append('.amdgcn_target "amdgcn-amd-amdhsa--gfx950"')
    out.append(".text")
    for name, lines in ((KMAIN, gen_main()), (KRED, gen_reduce())):
        out.append(f".globl {name}")
        out.append(".p2align 8")
        out.append(f".type {name},@function")
        out += lines
    out.append('.section .rodata,"a"')
    out.append(".p2align 6")
    out.append(kd(KMAIN, 256, 102))
    out.append(".p2align 6")
    out.append(kd(KRED, 40, 32))
    open(sys.argv[1], "w").write("\n".join(out) + "\n")


main()
```

```python
import sys, math, struct

NAME = "concat_heads__gqa_block_cached__gqa_block_cached__near_ridge"
KMAIN = NAME + "_kernel"
KRED = "reduce_partials_kernel"

OPT = dict(krot=0, ilv=1, ilvm=1, clk=0, pprio=0, kd=4, kdm=0, pre=1, rot=1, nt=1, stamp=0, dbg=0, dbgwg=0, nocompute=0, kvlate=0)
for a in sys.argv[2:]:
    k, v = a.split("=")
    OPT[k] = int(v)

SLOT = 32768
NT = " nt" if OPT["nt"] else ""

S_BLK, S_HKV, S_B, S_WID = 34, 35, 36, 37
SRD0, SRD1, SRD2 = 40, 44, 48
S_SOFF, S_M0, S_CNT, S_C, S_FLAG = 52, 53, 54, 57, 55
S_HEAD, S_QB = 58, 59
S_T0, S_T1, S_T2, S_T3 = 60, 61, 62, 63
S_X, S_K, S_V, S_WQ, S_WO = 64, 66, 68, 70, 72
S_OUT, S_DBG, S_WS = 28, 30, 32
S_R0, S_R1 = 96, 97


class Asm:
    def __init__(self):
        self.lines = []
        self.lds = []
        self.vm = []
        self.nbar = 0

    def e(self, s):
        if OPT["nocompute"] and (s.startswith("ds_read") or s.startswith("v_mfma") or s.startswith("v_exp")):
            return
        self.lines.append("    " + s)

    def label(self, s):
        self.lines.append(s + ":")

    def c(self, s):
        self.lines.append("    ; " + s)

    def lds_issue(self, tag, s):
        self.e(s)
        self.lds.append(tag)

    def lds_wait(self, tag):
        if tag not in self.lds:
            return
        idx = max(i for i, t in enumerate(self.lds) if t == tag)
        n = len(self.lds) - 1 - idx
        assert n <= 15, n
        self.e(f"s_waitcnt lgkmcnt({n})")
        self.lds = self.lds[idx + 1:]

    def lds_wait_all(self):
        self.e("s_waitcnt lgkmcnt(0)")
        self.lds = []

    def vm_issue(self, tag, s):
        self.e(s)
        self.vm.append(tag)

    def vm_wait(self, tag):
        if tag not in self.vm:
            return
        idx = max(i for i, t in enumerate(self.vm) if t == tag)
        n = len(self.vm) - 1 - idx
        assert n <= 63
        self.e(f"s_waitcnt vmcnt({n})")
        self.vm = self.vm[idx + 1:]

    def stamp(self, i):
        if not OPT["stamp"]:
            return
        self.e(f"s_memrealtime s[{76+2*i}:{77+2*i}]")
        if OPT.get("clk") and i in (5, 6):
            self.e(f"s_memtime s[{76+2*(i-3)}:{77+2*(i-3)}]")
        self.e("s_waitcnt lgkmcnt(0)")
        self.lds = []

    def stamp_flush(self, n):
        if not OPT["stamp"]:
            return
        e = self.e
        e("s_lshl_b32 s92, s2, 3")
        e(f"s_add_u32 s92, s92, s{S_WID}")
        e("s_lshl_b32 s92, s92, 7")
        e(f"s_add_u32 s92, s92, {64<<20}")
        e(f"s_add_u32 s92, s{S_WS}, s92")
        e(f"s_addc_u32 s93, s{S_WS+1}, 0")
        e("s_mov_b32 s94, 128")
        e("s_mov_b32 s95, 0x00020000")
        e("v_mov_b32 v2, 0")
        for i in range(n):
            e(f"v_mov_b32 v4, s{76+2*i}")
            e(f"v_mov_b32 v5, s{77+2*i}")
            e(f"buffer_store_dwordx2 v[4:5], v2, s[92:95], 0 offen offset:{8*i}")
            e("s_nop 1")

    def barrier(self):
        self.e("s_barrier")
        self.nbar += 1


def vr(a, n):
    return f"v[{a}:{a+n-1}]"


def sr(a, n):
    return f"s[{a}:{a+n-1}]"


def mfma(d, a, b, c):
    cs = "0" if c is None else vr(c, 16)
    return f"v_mfma_f32_32x32x16_bf16 {vr(d,16)}, {vr(a,4)}, {vr(b,4)}, {cs}"


V_O = 0
V_Q = 128
V_S = 192
V_F = 224
V_AK = 240
V_AKT = 241
V_AV = 242
V_MC, V_L = 246, 247
V_T = 248
V_LANE = 254
V_X = 255

WBASE = 2 * SLOT
RING = [3, 4, 2]
NWS = 6
WREG = NWS * 4096


def lane_fields(e, L, Vh, Vu, Vr, Vcc):
    e(f"v_lshrrev_b32 v{Vh}, 5, v{L}")
    e(f"v_bfe_u32 v{Vu}, v{L}, 4, 1")
    e(f"v_bfe_u32 v{Vr}, v{L}, 2, 2")
    e(f"v_and_b32 v{Vcc}, 3, v{L}")


def gen_main():
    A = Asm()
    e = A.e
    A.label(KMAIN)
    e("s_cmp_ge_u32 s2, 256")
    e("s_cbranch_scc1 L_exit")
    e("s_load_dwordx16 s[8:23], s[0:1], 0")
    e("s_load_dwordx8 s[24:31], s[0:1], 64")
    e("s_load_dwordx2 s[32:33], s[0:1], 96")
    e(f"s_and_b32 s{S_T0}, s2, 7")
    e(f"s_lshl_b32 s{S_T0}, s{S_T0}, 1")
    e(f"s_lshr_b32 s{S_T1}, s2, 3")
    e(f"s_and_b32 s{S_T1}, s{S_T1}, 1")
    e(f"s_add_u32 s{S_T0}, s{S_T0}, s{S_T1}")
    e(f"s_lshr_b32 s{S_B}, s2, 4")
    e(f"s_lshr_b32 s{S_BLK}, s{S_T0}, 3")
    e(f"s_and_b32 s{S_HKV}, s{S_T0}, 7")
    e("v_lshrrev_b32 v1, 6, v0")
    e(f"v_and_b32 v{V_LANE}, 63, v0")
    e("s_nop 0")
    e(f"v_readfirstlane_b32 s{S_WID}, v1")
    e("s_waitcnt lgkmcnt(0)")
    e(f"s_cmp_eq_u32 s{S_BLK}, 0")
    e(f"s_cselect_b64 {sr(S_X,2)}, s[8:9], s[18:19]")
    e(f"s_cselect_b64 {sr(S_K,2)}, s[10:11], s[20:21]")
    e(f"s_cselect_b64 {sr(S_V,2)}, s[12:13], s[22:23]")
    e(f"s_cselect_b64 {sr(S_WQ,2)}, s[14:15], s[24:25]")
    e(f"s_cselect_b64 {sr(S_WO,2)}, s[16:17], s[26:27]")
    A.stamp(0)
    e(f"s_cmp_ge_u32 s{S_WID}, 4")
    e("s_cbranch_scc1 L_producer")

    def bump(sreg, n):
        e(f"s_add_u32 s{sreg}, s{sreg}, 1")
        e(f"s_cmp_ge_u32 s{sreg}, {n}")
        e(f"s_cselect_b32 s{sreg}, 0, s{sreg}")

    L = V_LANE
    e(f"s_lshl_b32 s{S_T0}, s{S_HKV}, 10")
    e(f"s_add_u32 s{SRD0}, s{S_WQ}, s{S_T0}")
    e(f"s_addc_u32 s{SRD0+1}, s{S_WQ+1}, 0")
    e(f"s_sub_u32 s{SRD0+2}, {448*8192}, s{S_T0}")
    e(f"s_mov_b32 s{SRD0+3}, 0x00020000")
    e(f"s_mul_i32 s{S_T0}, s{S_B}, 57344")
    e(f"s_add_u32 s{SRD1}, s{S_X}, s{S_T0}")
    e(f"s_addc_u32 s{SRD1+1}, s{S_X+1}, 0")
    e(f"s_mov_b32 s{SRD1+2}, 57344")
    e(f"s_mov_b32 s{SRD1+3}, 0x00020000")
    e(f"s_lshl_b32 s{S_T0}, s{S_BLK}, 4")
    e(f"s_add_u32 s{S_T0}, s{S_T0}, s{S_B}")
    e(f"s_lshl_b32 s{S_T0}, s{S_T0}, 3")
    e(f"s_add_u32 s{S_T0}, s{S_T0}, s{S_HKV}")
    e(f"s_mul_i32 s{S_T0}, s{S_T0}, 114688")
    e(f"s_add_u32 s{SRD2}, s{S_WS}, s{S_T0}")
    e(f"s_addc_u32 s{SRD2+1}, s{S_WS+1}, 0")
    e(f"s_mov_b32 s{SRD2+2}, 114688")
    e(f"s_mov_b32 s{SRD2+3}, 0x00020000")
    e(f"s_lshr_b32 s{S_HEAD}, s{S_WID}, 1")
    e(f"s_and_b32 s{S_QB}, s{S_WID}, 1")

    Vh, Vu, Vr, Vcc = V_T, V_T + 1, V_T + 2, V_T + 3
    Vt0, Vt1 = V_T + 4, V_T + 5
    lane_fields(e, L, Vh, Vu, Vr, Vcc)

    QR = V_Q
    V_OFFW, V_XB, V_XF7, V_XA = QR, QR + 1, QR + 2, QR + 3
    V_AW = QR + 4
    V_XR = QR + 8
    V_WF = QR + 24
    e(f"s_mul_i32 s{S_T0}, s{S_WID}, 896")
    e(f"s_mov_b32 s{S_T1}, {(1<<32)//56 + 1}")
    e(f"s_mul_i32 s{S_T2}, s{S_WID}, 14336")
    for i in range(14):
        r0 = V_O + 4 * i
        e(f"v_add_u32 v{r0}, {64*i}, v{L}")
        e(f"v_add_u32 v{r0}, s{S_T0}, v{r0}")
        e(f"v_mul_hi_u32 v{r0+1}, v{r0}, s{S_T1}")
        e(f"v_mul_u32_u24 v{r0+2}, 56, v{r0+1}")
        e(f"v_sub_u32 v{r0+2}, v{r0}, v{r0+2}")
        e(f"v_bfe_u32 v{r0+3}, v{r0+1}, 1, 3")
        e(f"v_xor_b32 v{r0+2}, v{r0+2}, v{r0+3}")
        e(f"v_lshlrev_b32 v{r0+2}, 4, v{r0+2}")
        e(f"v_mul_u32_u24 v{r0+1}, 896, v{r0+1}")
        e(f"v_add_u32 v{r0}, v{r0+1}, v{r0+2}")
        e(f"s_add_u32 m0, s{S_T2}, {i*1024}")
        e("s_nop 0")
        A.vm_issue(("xd", 0), f"buffer_load_dwordx4 v{r0}, {sr(SRD1,4)}, 0 offen lds")
    e(f"v_lshrrev_b32 v{Vt0}, 4, v{L}")
    e(f"v_lshlrev_b32 v{Vt1}, 2, v{Vt0}")
    e(f"v_and_b32 v{V_X}, 15, v{L}")
    e(f"v_xor_b32 v{V_X}, v{V_X}, v{Vt1}")
    e(f"v_lshlrev_b32 v{V_X}, 4, v{V_X}")
    e(f"v_lshlrev_b32 v{Vt0}, 13, v{Vt0}")
    e(f"v_add_u32 v{Vt0}, v{Vt0}, v{V_X}")
    e(f"s_lshl_b32 s{S_T0}, s{S_WID}, 8")
    e(f"v_add_u32 v{V_OFFW}, s{S_T0}, v{Vt0}")
    e(f"s_mul_i32 s{S_M0}, s{S_WID}, {WREG}")
    e(f"s_add_u32 s{S_M0}, s{S_M0}, {WBASE}")
    S_WK, S_XK = S_R0, S_R1
    e(f"s_mul_i32 s{S_WK}, s{S_B}, 7")
    e(f"s_lshr_b32 s{S_WK}, s{S_WK}, 2")
    if not OPT["rot"]:
        e(f"s_mov_b32 s{S_WK}, 0")
    e(f"s_mov_b32 s{S_XK}, s{S_WK}")

    def w_issue(j):
        e(f"s_lshl_b32 s{S_SOFF}, s{S_WK}, 17")
        e(f"s_add_u32 m0, s{S_M0}, {(j%NWS)*4096}")
        bump(S_WK, 28)
        for i in range(4):
            A.vm_issue(("w", j), f"buffer_load_dwordx4 v{V_OFFW}, {sr(SRD0,4)}, s{S_SOFF} offen offset:{i*1024} lds")
            if i < 3:
                e(f"s_add_u32 s{S_SOFF}, s{S_SOFF}, {32768-1024}")

    for j in range(NWS - 1):
        w_issue(j)
    e(f"v_and_b32 v{Vt0}, 31, v{L}")
    e(f"v_mul_u32_u24 v{V_XB}, 896, v{Vt0}")
    e(f"v_bfe_u32 v{V_XF7}, v{L}, 1, 3")
    e(f"v_lshlrev_b32 v{Vt0}, 3, v{Vh}")
    e(f"v_add_u32 v{Vt0}, v{Vt0}, v{Vr}")
    e(f"v_lshlrev_b32 v{Vt0}, 8, v{Vt0}")
    e(f"v_lshlrev_b32 v{Vt1}, 5, v{Vu}")
    e(f"v_add_u32 v{Vt0}, v{Vt0}, v{Vt1}")
    e(f"v_and_b32 v{Vt1}, 1, v{Vcc}")
    e(f"v_lshlrev_b32 v{Vt1}, 4, v{Vt1}")
    e(f"v_add_u32 v{Vt0}, v{Vt0}, v{Vt1}")
    e(f"v_lshrrev_b32 v{Vt1}, 1, v{Vcc}")
    e(f"v_lshlrev_b32 v{Vt1}, 3, v{Vt1}")
    e(f"v_add_u32 v{Vt0}, v{Vt0}, v{Vt1}")
    e(f"v_add_u32 v{Vt0}, s{S_M0}, v{Vt0}")
    for t2 in range(4):
        e(f"v_xor_b32 v{Vt1}, {t2}, v{Vr}")
        e(f"v_lshlrev_b32 v{Vt1}, 6, v{Vt1}")
        e(f"v_add_u32 v{V_AW+t2}, v{Vt0}, v{Vt1}")
    e(f"v_and_b32 v{Vt0}, 31, v{L}")
    e(f"v_and_b32 v{Vt1}, 15, v{L}")
    e(f"v_xor_b32 v{Vt1}, v{Vt1}, v{Vh}")
    e(f"v_lshlrev_b32 v{Vt1}, 4, v{Vt1}")
    e(f"v_lshlrev_b32 v{Vt0}, 9, v{Vt0}")
    e(f"v_add_u32 v{V_AK}, v{Vt0}, v{Vt1}")
    e(f"v_lshlrev_b32 v{Vt0}, 2, v{Vh}")
    e(f"v_add_u32 v{Vt0}, v{Vt0}, v{Vr}")
    e(f"v_lshlrev_b32 v{Vt0}, 9, v{Vt0}")
    e(f"v_lshlrev_b32 v{Vt1}, 5, v{Vu}")
    e(f"v_add_u32 v{Vt0}, v{Vt0}, v{Vt1}")
    e(f"v_lshlrev_b32 v{Vt1}, 3, v{Vcc}")
    e(f"v_add_u32 v{Vt0}, v{Vt0}, v{Vt1}")
    e(f"v_add_u32 v{Vt0}, 16384, v{Vt0}")
    for t2 in range(4):
        e(f"v_xor_b32 v{Vt1}, {t2}, v{Vr}")
        e(f"v_lshlrev_b32 v{Vt1}, 6, v{Vt1}")
        e(f"v_add_u32 v{V_AV+t2}, v{Vt0}, v{Vt1}")
    A.vm_wait(("xd", 0))
    A.barrier()
    NJ = 28

    def q_reads(j):
        e(f"s_lshl_b32 s{S_T0}, s{S_XK}, 1")
        bump(S_XK, 28)
        e(f"v_add_u32 v{V_XA}, s{S_T0}, v{Vh}")
        e(f"v_xor_b32 v{V_XA}, v{V_XA}, v{V_XF7}")
        e(f"v_lshlrev_b32 v{V_XA}, 4, v{V_XA}")
        e(f"v_add_u32 v{V_XA}, v{V_XA}, v{V_XB}")
        xr = V_XR + 8 * (j % 2)
        for qb in range(2):
            A.lds_issue(("x", j), f"ds_read_b128 {vr(xr+4*qb,4)}, v{V_XA} offset:{qb*28672}")
        A.vm_wait(("w", j))
        base = (j % NWS) * 4096
        for T in range(4):
            f = V_WF + 16 * (j % 2) + 4 * T
            A.lds_issue(("w", j, T), f"ds_read_b64_tr_b16 {vr(f,2)}, v{V_AW+T} offset:{base}")
            A.lds_issue(("w", j, T), f"ds_read_b64_tr_b16 {vr(f+2,2)}, v{V_AW+T} offset:{base+1024}")

    q_reads(0)
    for j in range(NJ):
        A.c(f"---- Q-proj step {j}")
        xr = V_XR + 8 * (j % 2)
        for T in range(4):
            A.lds_wait(("w", j, T))
            for qb in range(2):
                acc = V_O + 32 * T + 16 * qb
                e(mfma(acc, V_WF + 16 * (j % 2) + 4 * T, xr + 4 * qb, None if j == 0 else acc))
            if T == 3:
                pass
            if T == 1:
                A.lds_wait(("w", j, 3))
                if j + NWS - 1 < NJ:
                    w_issue(j + NWS - 1)
                if j + 1 < NJ:
                    q_reads(j + 1)
        if OPT["stamp"] == 2 and j in (0, 7, 14, 21):
            A.stamp(1 + j // 7)
    assert not A.vm
    A.stamp(5 if OPT["stamp"] == 2 else 1)
    e(f"v_lshlrev_b32 v{Vt0}, 4, v{L}")
    e(f"v_add_u32 v{Vt1}, s{S_M0}, v{Vt0}")
    e(f"s_mul_i32 s{S_T0}, s{S_HEAD}, {2*WREG}")
    e(f"s_lshl_b32 s{S_T1}, s{S_QB}, 13")
    e(f"s_add_u32 s{S_T0}, s{S_T0}, s{S_T1}")
    e(f"s_add_u32 s{S_T0}, s{S_T0}, {WBASE}")
    e(f"v_add_u32 v{V_X}, s{S_T0}, v{Vt0}")
    e("s_nop 15")
    for qb in range(2):
        for T in range(4):
            for u in range(2):
                f = 2 * T + u
                q = V_Q + 4 * (8 * qb + f)
                for r in range(4):
                    a_ = V_O + 32 * T + 16 * qb + 8 * u + 2 * r
                    e(f"v_cvt_pk_bf16_f32 v{q + r}, v{a_}, v{a_+1}")
                e(f"ds_write_b128 v{Vt1}, {vr(q,4)} offset:{qb*8192 + f*1024}")
    e("s_waitcnt lgkmcnt(0)")
    A.barrier()
    for ks in range(16):
        e(f"ds_read_b128 {vr(V_Q+4*ks,4)}, v{V_X} offset:{(ks>>3)*WREG + (ks&7)*1024}")
    for i in range(128):
        e(f"v_mov_b32 v{V_O+i}, 0")
    e(f"v_mov_b32 v{V_MC}, 0xff800000")
    e(f"v_mov_b32 v{V_L}, 0")
    cbits = struct.unpack("<I", struct.pack("<f", math.log2(math.e) / 16.0))[0]
    e(f"s_mov_b32 s{S_C}, 0x{cbits:08x}")
    e(f"s_mov_b32 s{S_CNT}, 0")
    e("s_mov_b32 s56, 0")
    e(f"s_mov_b32 s74, {SLOT}")
    e(f"s_mov_b32 s75, {(-4*SLOT) & 0xffffffff}")
    e("s_mov_b32 s38, 1")
    e(f"v_add_u32 v{V_AK}, {SLOT}, v{V_AK}")
    for t2 in range(4):
        e(f"v_add_u32 v{V_AV+t2}, {SLOT}, v{V_AV+t2}")
    e("s_waitcnt lgkmcnt(0)")
    A.barrier()

    t0, t1, t2_, t3, t4, t5 = (V_T + i for i in range(6))
    pv = [(dt, kk) for dt in range(8) for kk in range(2)]
    nresc = [0]

    def interval():
        S = V_S
        P = V_S + 16
        A.barrier()

        def rdK(ks):
            f = V_F + 4 * (ks % 4)
            k7 = ks & 7
            if k7:
                e(f"v_xor_b32 v{V_AKT}, {k7<<5}, v{V_AK}")
                ar = V_AKT
            else:
                ar = V_AK
            A.lds_issue(("k", ks), f"ds_read_b128 {vr(f,4)}, v{ar} offset:{(ks>>3)*256}")

        def rdV(i):
            dt, kk = pv[i]
            f = V_F + 4 * (i % 4)
            base = kk * 8192 + (dt >> 2) * 256
            A.lds_issue(("v", i), f"ds_read_b64_tr_b16 {vr(f,2)}, v{V_AV+(dt&3)} offset:{base}")
            A.lds_issue(("v", i), f"ds_read_b64_tr_b16 {vr(f+2,2)}, v{V_AV+(dt&3)} offset:{base+4096}")

        for ks in range(4):
            rdK(ks)
        for ks in range(16):
            A.lds_wait(("k", ks))
            e(mfma(S, V_F + 4 * (ks % 4), V_Q + 4 * ks, None if ks == 0 else S))
            if ks + 4 < 16:
                rdK(ks + 4)
            else:
                rdV(ks - 12)
        e("s_add_u32 s38, s38, 1")
        e("s_cmp_eq_u32 s38, 5")
        e("s_cselect_b32 s39, s75, s74")
        e("s_cselect_b32 s38, 0, s38")
        e(f"v_add_u32 v{V_AK}, s39, v{V_AK}")
        e("s_nop 8")
        for ins in [f"v_max3_f32 v{t0}, v{S}, v{S+1}, v{S+2}",
                    f"v_max3_f32 v{t1}, v{S+3}, v{S+4}, v{S+5}",
                    f"v_max3_f32 v{t2_}, v{S+6}, v{S+7}, v{S+8}",
                    f"v_max3_f32 v{t3}, v{S+9}, v{S+10}, v{S+11}",
                    f"v_max3_f32 v{t4}, v{S+12}, v{S+13}, v{S+14}",
                    f"v_max3_f32 v{t0}, v{t0}, v{t1}, v{S+15}",
                    f"v_max3_f32 v{t2_}, v{t2_}, v{t3}, v{t4}",
                    f"v_max_f32 v{t0}, v{t0}, v{t2_}",
                    f"v_mov_b32 v{t1}, v{t0}",
                    "s_nop 1",
                    f"v_permlane32_swap_b32 v{t0}, v{t1}",
                    "s_nop 1",
                    f"v_max_f32 v{t0}, v{t0}, v{t1}",
                    f"v_mul_f32 v{t5}, s{S_C}, v{t0}",
                    f"v_sub_f32 v{t1}, v{t5}, v{V_MC}",
                    f"v_cmp_lt_f32 vcc, 0x41000000, v{t1}",
                    "s_nop 1"]:
            e(ins)
        nresc[0] += 1
        e(f"s_cbranch_vccnz L_rescale{nresc[0]}")
        A.label(f"L_rescale_done{nresc[0]}")
        for i in range(16):
            e(f"v_fma_f32 v{S+i}, v{S+i}, s{S_C}, -v{V_MC}")
        for i in range(16):
            e(f"v_exp_f32 v{S+i}, v{S+i}")
        e("s_nop 0")
        for i in range(8):
            e(f"v_cvt_pk_bf16_f32 v{P+i}, v{S+2*i}, v{S+2*i+1}")
        sums = [f"v_add_f32 v{t0}, v{S}, v{S+1}", f"v_add_f32 v{t1}, v{S+2}, v{S+3}"]
        for i in range(4, 16, 2):
            sums.append(f"v_add_f32 v{t0}, v{t0}, v{S+i}")
            sums.append(f"v_add_f32 v{t1}, v{t1}, v{S+i+1}")
        sums.append(f"v_add_f32 v{t0}, v{t0}, v{t1}")
        sums.append(f"v_add_f32 v{V_L}, v{V_L}, v{t0}")
        if not OPT["ilvm"]:
            while sums:
                e(sums.pop(0))
        else:
            e("s_nop 1")
        for i in range(16):
            dt, kk = pv[i]
            A.lds_wait(("v", i))
            e(mfma(V_O + 16 * dt, V_F + 4 * (i % 4), P + 4 * kk, V_O + 16 * dt))
            if i + 4 < 16:
                rdV(i + 4)
            if sums:
                e(sums.pop(0))
        assert not A.lds and not sums
        for t2 in range(4):
            e(f"v_add_u32 v{V_AV+t2}, s39, v{V_AV+t2}")

    nb0 = A.nbar
    A.label("L_loop")
    interval()
    e(f"s_add_u32 s{S_CNT}, s{S_CNT}, 1")
    e(f"s_cmp_lt_u32 s{S_CNT}, 32")
    e("s_cbranch_scc1 L_loop")
    A.nbar = nb0 + 32

    A.stamp(6 if OPT["stamp"] == 2 else 2)
    e(f"v_mov_b32 v{t1}, v{V_L}")
    e("s_nop 1")
    e(f"v_permlane32_swap_b32 v{V_L}, v{t1}")
    e("s_nop 1")
    e(f"v_add_f32 v{t0}, v{V_L}, v{t1}")
    e(f"v_rcp_f32 v{t5}, v{t0}")
    e(f"s_lshl_b32 s{S_T1}, s{S_QB}, 14")
    e(f"s_add_u32 s{S_T0}, s{S_T1}, 32768")
    e(f"s_cmp_eq_u32 s{S_HEAD}, 0")
    e(f"s_cselect_b32 s{S_T2}, s{S_T1}, s{S_T0}")
    V_AB, V_ABC, V_AOWN, V_AWO = V_AK, V_AK + 1, V_AK + 2, V_AK + 4
    e(f"v_lshlrev_b32 v{t1}, 4, v{L}")
    e(f"v_add_u32 v{V_AB}, s{S_T1}, v{t1}")
    e(f"v_add_u32 v{V_AOWN}, s{S_T2}, v{t1}")
    e("s_nop 7")
    for fr in range(16):
        dt, u = fr >> 1, fr & 1
        q = V_Q + 4 * fr
        for r in range(4):
            a = V_O + 16 * dt + 8 * u + 2 * r
            e(f"v_mul_f32 v{a}, v{a}, v{t5}")
            e(f"v_mul_f32 v{a+1}, v{a+1}, v{t5}")
            e(f"v_cvt_pk_bf16_f32 v{q+r}, v{a}, v{a+1}")
        e(f"ds_write_b128 v{V_AOWN}, {vr(q,4)} offset:{fr*1024}")
    lane_fields(e, L, Vh, Vu, Vr, Vcc)
    e(f"v_lshlrev_b32 v{Vt0}, 2, v{Vh}")
    e(f"v_add_u32 v{Vt0}, v{Vt0}, v{Vr}")
    e(f"v_mul_u32_u24 v{Vt0}, 896, v{Vt0}")
    e(f"v_lshlrev_b32 v{Vt1}, 5, v{Vu}")
    e(f"v_add_u32 v{Vt0}, v{Vt0}, v{Vt1}")
    e(f"v_lshlrev_b32 v{Vt1}, 3, v{Vcc}")
    e(f"v_add_u32 v{Vt0}, v{Vt0}, v{Vt1}")
    e(f"s_mul_i32 s{S_T0}, s{S_HEAD}, 448")
    e(f"s_add_u32 s{S_T0}, s{S_T0}, {3*SLOT}")
    e(f"v_add_u32 v{Vt0}, s{S_T0}, v{Vt0}")
    e(f"v_lshrrev_b32 v{Vt1}, 1, v{Vr}")
    e(f"v_lshlrev_b32 v{Vt1}, 6, v{Vt1}")
    e(f"v_add_u32 v{V_S}, v{Vt0}, v{Vt1}")
    e(f"v_sub_u32 v{V_S+1}, v{Vt0}, v{Vt1}")
    e(f"s_cmp_eq_u32 s{S_HEAD}, 0")
    e("s_cselect_b64 vcc, -1, 0")
    e("s_nop 1")
    e(f"v_cndmask_b32 v{V_AWO}, v{V_S+1}, v{V_S}, vcc")
    e(f"v_cndmask_b32 v{V_AWO+1}, v{V_S}, v{V_S+1}, vcc")
    e("s_waitcnt lgkmcnt(0)")
    if OPT["stamp"] == 1:
        A.stamp(3)

    V_ACC = 0
    V_BF = V_S + 8
    V_AF = V_Q
    NAF = 7
    S_OK = S_R0
    e(f"s_mov_b32 s{S_OK}, " + (f"s{S_B}" if OPT["rot"] else "0"))
    for k in range(16):
        A.c(f"---- O-proj stage {k}")
        e(f"s_lshr_b32 s{S_T0}, s{S_OK}, 3")
        e(f"s_lshl_b32 s{S_T0}, s{S_T0}, 15")
        e(f"s_and_b32 s{S_T1}, s{S_OK}, 7")
        e(f"s_lshl_b32 s{S_T1}, s{S_T1}, 11")
        e(f"s_add_u32 s{S_T0}, s{S_T0}, s{S_T1}")
        e(f"v_add_u32 v{V_ABC}, s{S_T0}, v{V_AB}")
        e(f"s_add_u32 s{S_OK}, s{S_OK}, 1")
        e(f"s_and_b32 s{S_OK}, s{S_OK}, 15")
        A.barrier()
        A.lds_issue(("b", 0), f"ds_read_b128 {vr(V_BF,4)}, v{V_ABC}")
        seq = [(ksl, nt) for ksl in range(2) for nt in range(7)]
        sl = 0

        def rdA(i):
            ksl, nt = seq[i]
            f = V_AF + 4 * (i % 8)
            base = ksl * 16 * 896 + nt * 64 + sl
            A.lds_issue(("a", i), f"ds_read_b64_tr_b16 {vr(f,2)}, v{V_AWO+(nt&1)} offset:{base}")
            A.lds_issue(("a", i), f"ds_read_b64_tr_b16 {vr(f+2,2)}, v{V_AWO+(nt&1)} offset:{base+8*896}")
        for i in range(NAF):
            rdA(i)
        for i in range(14):
            ksl, nt = seq[i]
            A.lds_wait(("a", i))
            if i == 7:
                A.lds_wait(("b", 1))
            e(mfma(V_ACC + 16 * nt, V_AF + 4 * (i % 8), V_BF + 4 * ksl, None if (k == 0 and ksl == 0) else V_ACC + 16 * nt))
            if i == 0:
                A.lds_issue(("b", 1), f"ds_read_b128 {vr(V_BF+4,4)}, v{V_ABC} offset:1024")
            if i + NAF < 14:
                rdA(i + NAF)
        assert not A.lds
        if k < 15:
            d_ = (RING[(k + 1) % 3] - RING[k % 3]) * SLOT
            e(f"v_add_u32 v{V_AWO}, {d_ & 0xffffffff}, v{V_AWO}")
            e(f"v_add_u32 v{V_AWO+1}, {d_ & 0xffffffff}, v{V_AWO+1}")
    if OPT["stamp"] == 1:
        A.stamp(4)
    A.c("---- store partials")
    e(f"v_lshlrev_b32 v{t0}, 4, v{L}")
    e(f"s_mul_i32 s{S_SOFF}, s{S_WID}, 28672")
    e("s_nop 15")
    for nt in range(7):
        for g in range(4):
            e(f"buffer_store_dwordx4 {vr(V_ACC+16*nt+4*g,4)}, v{t0}, {sr(SRD2,4)}, s{S_SOFF} offen offset:{g*1024}")
        if nt < 6:
            e(f"s_add_u32 s{S_SOFF}, s{S_SOFF}, 4096")
    if OPT["stamp"]:
        e("s_waitcnt vmcnt(0)")
    A.stamp(7 if OPT["stamp"] == 2 else 5)
    if OPT["stamp"] == 2:
        e("s_add_u32 s84, s76, s56")
        e("s_addc_u32 s85, s77, 0")
    A.stamp_flush(8)
    e("s_endpgm")
    nbar_cons = A.nbar

    for n in range(1, nresc[0] + 1):
        A.label(f"L_rescale{n}")
        if OPT["stamp"]:
            e("s_add_u32 s56, s56, 1000")
        e("s_nop 15")
        e(f"v_max_f32 v{t0}, v{t5}, v{V_MC}")
        e(f"v_sub_f32 v{t1}, v{V_MC}, v{t0}")
        e(f"v_exp_f32 v{t1}, v{t1}")
        e(f"v_mov_b32 v{V_MC}, v{t0}")
        e("s_nop 0")
        e(f"v_mul_f32 v{V_L}, v{V_L}, v{t1}")
        for i in range(128):
            e(f"v_mul_f32 v{V_O+i}, v{V_O+i}, v{t1}")
        e(f"s_branch L_rescale_done{n}")

    A.label("L_producer")
    if OPT["pprio"]:
        e(f"s_setprio {OPT['pprio']}")
    A.nbar = 0
    A.vm = []
    A.lds = []
    S_P = 58
    e(f"s_sub_u32 s{S_P}, s{S_WID}, 4")
    e(f"s_lshl_b32 s{S_T0}, s{S_B}, 22")
    e(f"s_lshl_b32 s{S_T1}, s{S_HKV}, 19")
    e(f"s_add_u32 s{S_T0}, s{S_T0}, s{S_T1}")
    e(f"s_add_u32 s{SRD0}, s{S_K}, s{S_T0}")
    e(f"s_addc_u32 s{SRD0+1}, s{S_K+1}, 0")
    e(f"s_mov_b32 s{SRD0+2}, 524288")
    e(f"s_mov_b32 s{SRD0+3}, 0x00020000")
    e(f"s_add_u32 s{SRD1}, s{S_V}, s{S_T0}")
    e(f"s_addc_u32 s{SRD1+1}, s{S_V+1}, 0")
    e(f"s_mov_b32 s{SRD1+2}, 524288")
    e(f"s_mov_b32 s{SRD1+3}, 0x00020000")
    e(f"s_mul_i32 s{S_T0}, s{S_HKV}, 458752")
    e(f"s_add_u32 s{SRD2}, s{S_WO}, s{S_T0}")
    e(f"s_addc_u32 s{SRD2+1}, s{S_WO+1}, 0")
    e(f"s_mov_b32 s{SRD2+2}, 458752")
    e(f"s_mov_b32 s{SRD2+3}, 0x00020000")
    PK, PV_, PW, PAK, PAW = 10, 14, 16, 23, 24
    a, b2, c2, d2 = 2, 3, 4, 5
    e(f"v_lshrrev_b32 v{a}, 5, v{L}")
    e(f"v_and_b32 v{b2}, 31, v{L}")
    e(f"s_lshl_b32 s{S_T0}, s{S_P}, 3")
    e(f"v_add_u32 v{c2}, s{S_T0}, v{a}")
    e(f"v_lshlrev_b32 v{d2}, 9, v{c2}")
    for j in range(4):
        e(f"v_add_u32 v6, {2*j}, v{c2}")
        e("v_and_b32 v6, 15, v6")
        e(f"v_xor_b32 v6, v6, v{b2}")
        e("v_lshlrev_b32 v6, 4, v6")
        e(f"v_add_u32 v{PK+j}, v{d2}, v6")
    for jp in range(2):
        e(f"v_add_u32 v6, {2*jp}, v{a}")
        e("v_lshlrev_b32 v6, 2, v6")
        e(f"v_xor_b32 v6, v6, v{b2}")
        e("v_lshlrev_b32 v6, 4, v6")
        e(f"v_add_u32 v{PV_+jp}, v{d2}, v6")
    e(f"s_mul_i32 s{S_T0}, s{S_P}, 448")
    e(f"s_mov_b32 s{S_T1}, {(1<<32)//56 + 1}")
    for j in range(7):
        e(f"v_add_u32 v6, {64*j}, v{L}")
        e(f"v_add_u32 v6, s{S_T0}, v6")
        e(f"v_mul_hi_u32 v7, v6, s{S_T1}")
        e("v_mul_u32_u24 v8, 56, v7")
        e("v_sub_u32 v8, v6, v8")
        e("v_bfe_u32 v9, v7, 1, 1")
        e("v_lshlrev_b32 v9, 2, v9")
        e("v_xor_b32 v8, v8, v9")
        e("v_lshlrev_b32 v8, 4, v8")
        e("v_mul_u32_u24 v7, 896, v7")
        e(f"v_add_u32 v{PW+j}, v7, v8")
    e(f"s_lshl_b32 s{S_M0}, s{S_P}, 12")
    e(f"s_mul_i32 s{S_T3}, s{S_P}, 7168")
    e(f"s_mov_b32 s{S_R0}, " + (f"s{S_B}" if OPT["rot"] else "0"))

    def iv_issue(i):
        if i <= 31:
            sl = ((i + 1) % 5) * SLOT
            if OPT["krot"]:
                e(f"s_lshl_b32 s{S_SOFF}, s{S_R1}, 14")
                e(f"s_add_u32 s{S_R1}, s{S_R1}, 1")
                e(f"s_and_b32 s{S_R1}, s{S_R1}, 31")
            else:
                e(f"s_mov_b32 s{S_SOFF}, {i*16384}")
            e(f"s_add_u32 m0, s{S_M0}, {sl}")
            e("s_nop 0")
            for j in range(4):
                A.vm_issue(("iv", i), f"buffer_load_dwordx4 v{PK+j}, {sr(SRD0,4)}, s{S_SOFF} offen offset:{j*1024}{NT} lds")
            e(f"s_add_u32 m0, s{S_M0}, {sl+16384}")
            e("s_nop 0")
            for j in range(4):
                A.vm_issue(("iv", i), f"buffer_load_dwordx4 v{PV_+(j&1)}, {sr(SRD1,4)}, s{S_SOFF} offen offset:{j*1024}{NT} lds")
        else:
            k = i - 32
            sl = RING[k % 3] * SLOT
            e(f"s_mul_i32 s{S_SOFF}, s{S_R0}, 28672")
            e(f"s_add_u32 s{S_R0}, s{S_R0}, 1")
            e(f"s_and_b32 s{S_R0}, s{S_R0}, 15")
            for j in range(7):
                e(f"s_add_u32 m0, s{S_T3}, {sl + j*1024}")
                e("s_nop 0")
                A.vm_issue(("iv", i), f"buffer_load_dwordx4 v{PW+j}, {sr(SRD2,4)}, s{S_SOFF} offen lds")

    if OPT["krot"] == 1:
        e(f"s_mul_i32 s{S_R1}, s2, 5")
        e(f"s_and_b32 s{S_R1}, s{S_R1}, 31")
    elif OPT["krot"] == 2:
        e(f"s_lshr_b32 s{S_R1}, s2, 3")
    elif OPT["krot"] == 3:
        e(f"s_and_b32 s{S_R1}, s2, 31")
    A.barrier()
    A.stamp(1)
    A.barrier()
    iv_issue(0)
    A.barrier()
    for i in (1, 2, 3, 4):
        iv_issue(i)
    A.stamp(2)
    for i in range(48):
        A.vm_wait(("iv", i))
        A.barrier()
        if i == 32:
            A.stamp(3)
        if 1 <= i and i + 4 <= 31:
            iv_issue(i + 4)
        elif i == 28:
            iv_issue(32)
        elif i == 29:
            iv_issue(33)
        elif i >= 32 and i + 2 < 48:
            iv_issue(i + 2)
    assert not A.vm
    assert A.nbar == nbar_cons, (A.nbar, nbar_cons)
    for i in range(4, 8):
        A.stamp(i)
    A.stamp_flush(8)
    A.label("L_exit")
    e("s_endpgm")
    return A.lines


def gen_reduce():
    A = Asm()
    e = A.e
    A.label(KRED)
    e("s_cmp_ge_u32 s2, 896")
    e("s_cbranch_scc1 R_exit")
    e("s_load_dwordx2 s[4:5], s[0:1], 80")
    e("s_load_dwordx2 s[6:7], s[0:1], 96")
    e(f"s_mov_b32 s16, {(1<<32)//28 + 1}")
    e("s_mul_hi_u32 s17, s2, s16")
    e("s_mul_i32 s18, s17, 28")
    e("s_sub_u32 s18, s2, s18")
    e(f"s_mov_b32 s16, {(1<<32)//7 + 1}")
    e("s_mul_hi_u32 s19, s18, s16")
    e("s_mul_i32 s20, s19, 7")
    e("s_sub_u32 s20, s18, s20")
    e("s_waitcnt lgkmcnt(0)")
    e("s_mul_i32 s21, s17, 917504")
    e("s_lshl_b32 s22, s18, 12")
    e("s_add_u32 s21, s21, s22")
    e("s_add_u32 s8, s6, s21")
    e("s_addc_u32 s9, s7, 0")
    e(f"s_mov_b32 s10, {7*114688+4096}")
    e("s_mov_b32 s11, 0x00020000")
    e("s_mov_b32 s12, s4")
    e("s_mov_b32 s13, s5")
    e("s_mov_b32 s14, 1835008")
    e("s_mov_b32 s15, 0x00020000")
    e("v_lshlrev_b32 v1, 4, v0")
    for h in range(8):
        e(f"s_mov_b32 s23, {h*114688}")
        e(f"buffer_load_dwordx4 {vr(8+4*h,4)}, v1, s[8:11], s23 offen")
    e("s_and_b32 s24, s17, 15")
    e("s_lshr_b32 s25, s17, 4")
    e("s_lshl_b32 s24, s24, 6")
    e("s_and_b32 s26, s19, 1")
    e("s_lshl_b32 s26, s26, 5")
    e("s_add_u32 s24, s24, s26")
    e("s_mul_i32 s24, s24, 896")
    e("s_mul_i32 s25, s25, 448")
    e("s_add_u32 s24, s24, s25")
    e("s_lshr_b32 s26, s19, 1")
    e("s_mul_i32 s26, s26, 224")
    e("s_add_u32 s24, s24, s26")
    e("s_lshl_b32 s26, s20, 5")
    e("s_add_u32 s24, s24, s26")
    e("s_lshl_b32 s24, s24, 1")
    e("v_and_b32 v2, 31, v0")
    e("v_mul_u32_u24 v2, 1792, v2")
    e("v_lshrrev_b32 v3, 6, v0")
    e("v_lshlrev_b32 v3, 4, v3")
    e("v_add_u32 v2, v2, v3")
    e("v_bfe_u32 v3, v0, 5, 1")
    e("v_lshlrev_b32 v3, 3, v3")
    e("v_add_u32 v2, v2, v3")
    for h in range(1, 8):
        e(f"s_waitcnt vmcnt({7-h})")
        for i in range(4):
            e(f"v_add_f32 v{8+i}, v{8+i}, v{8+4*h+i}")
    e("v_cvt_pk_bf16_f32 v4, v8, v9")
    e("v_cvt_pk_bf16_f32 v5, v10, v11")
    e("buffer_store_dwordx2 v[4:5], v2, s[12:15], s24 offen")
    if OPT["dbg"]:
        e("s_cmp_lg_u32 s2, 0")
        e("s_cbranch_scc1 R_exit")
        e("s_load_dwordx2 s[4:5], s[0:1], 88")
        e(f"s_add_u32 s8, s6, {(64<<20) + OPT['dbgwg']*1024}")
        e("s_addc_u32 s9, s7, 0")
        e("s_mov_b32 s10, 1024")
        e("s_waitcnt lgkmcnt(0)")
        e("s_mov_b32 s12, s4")
        e("s_mov_b32 s13, s5")
        e("s_mov_b32 s14, 64")
        e("v_lshrrev_b32 v1, 3, v0")
        e("v_lshlrev_b32 v1, 9, v1")
        e("v_and_b32 v2, 7, v0")
        e("v_lshlrev_b32 v2, 3, v2")
        e("v_add_u32 v2, v1, v2")
        e("buffer_load_dword v3, v2, s[8:11], 0 offen")
        e("v_mov_b32 v1, 0")
        e("buffer_load_dword v4, v1, s[8:11], 0 offen")
        e("s_waitcnt vmcnt(0)")
        e("v_sub_u32 v3, v3, v4")
        e("v_lshlrev_b32 v1, 2, v0")
        e("buffer_store_dword v3, v1, s[12:15], 0 offen")
    A.label("R_exit")
    e("s_endpgm")
    return A.lines


def kd(name, vgpr, sgpr):
    acc = (vgpr + 3) // 4 * 4
    return f""".amdhsa_kernel {name}
  .amdhsa_next_free_vgpr {vgpr}
  .amdhsa_next_free_sgpr {sgpr}
  .amdhsa_accum_offset {acc}
  .amdhsa_group_segment_fixed_size 0
  .amdhsa_kernarg_size 104
  .amdhsa_user_sgpr_count 2
  .amdhsa_user_sgpr_kernarg_segment_ptr 1
  .amdhsa_system_sgpr_workgroup_id_x 1
.end_amdhsa_kernel
"""


def main():
    out = []
    out.append(f"; @launch kernel={KMAIN} grid=(256,1,1) block=(512,1,1) lds=163840")
    out.append(f"; @launch kernel={KRED} grid=(896,1,1) block=(256,1,1) lds=0")
    out.append('.amdgcn_target "amdgcn-amd-amdhsa--gfx950"')
    out.append(".text")
    for name, lines in ((KMAIN, gen_main()), (KRED, gen_reduce())):
        out.append(f".globl {name}")
        out.append(".p2align 8")
        out.append(f".type {name},@function")
        out += lines
    out.append('.section .rodata,"a"')
    out.append(".p2align 6")
    out.append(kd(KMAIN, 256, 102))
    out.append(".p2align 6")
    out.append(kd(KRED, 40, 32))
    open(sys.argv[1], "w").write("\n".join(out) + "\n")


main()
```

```python
import sys, math, struct

NAME = "concat_heads__gqa_block_cached__gqa_block_cached__near_ridge"
KMAIN = NAME + "_kernel"
KRED = "reduce_partials_kernel"

OPT = dict(qpipe=1, kpf=4, nws=6, early=0, xprod=0, krot=0, ilv=1, ilvm=1, clk=0, pprio=0, kd=4, kdm=0, pre=1, rot=1, nt=1, stamp=0, dbg=0, dbgwg=0, nocompute=0, kvlate=0)
for a in sys.argv[2:]:
    k, v = a.split("=")
    OPT[k] = int(v)

SLOT = 32768
NT = " nt" if OPT["nt"] else ""

S_BLK, S_HKV, S_B, S_WID = 34, 35, 36, 37
SRD0, SRD1, SRD2 = 40, 44, 48
S_SOFF, S_M0, S_CNT, S_C, S_FLAG = 52, 53, 54, 57, 55
S_HEAD, S_QB = 58, 59
S_T0, S_T1, S_T2, S_T3 = 60, 61, 62, 63
S_X, S_K, S_V, S_WQ, S_WO = 64, 66, 68, 70, 72
S_OUT, S_DBG, S_WS = 28, 30, 32
S_R0, S_R1 = 96, 97


class Asm:
    def __init__(self):
        self.lines = []
        self.lds = []
        self.vm = []
        self.nbar = 0

    def e(self, s):
        if OPT["nocompute"] and (s.startswith("ds_read") or s.startswith("v_mfma") or s.startswith("v_exp")):
            return
        self.lines.append("    " + s)

    def label(self, s):
        self.lines.append(s + ":")

    def c(self, s):
        self.lines.append("    ; " + s)

    def lds_issue(self, tag, s):
        self.e(s)
        self.lds.append(tag)

    def lds_wait(self, tag):
        if tag not in self.lds:
            return
        idx = max(i for i, t in enumerate(self.lds) if t == tag)
        n = len(self.lds) - 1 - idx
        assert n <= 15, n
        self.e(f"s_waitcnt lgkmcnt({n})")
        self.lds = self.lds[idx + 1:]

    def lds_wait_all(self):
        self.e("s_waitcnt lgkmcnt(0)")
        self.lds = []

    def vm_issue(self, tag, s):
        self.e(s)
        self.vm.append(tag)

    def vm_wait(self, tag):
        if tag not in self.vm:
            return
        idx = max(i for i, t in enumerate(self.vm) if t == tag)
        n = len(self.vm) - 1 - idx
        assert n <= 63
        self.e(f"s_waitcnt vmcnt({n})")
        self.vm = self.vm[idx + 1:]

    def stamp(self, i):
        if not OPT["stamp"]:
            return
        self.e(f"s_memrealtime s[{76+2*i}:{77+2*i}]")
        if OPT.get("clk") and i in (5, 6):
            self.e(f"s_memtime s[{76+2*(i-3)}:{77+2*(i-3)}]")
        self.e("s_waitcnt lgkmcnt(0)")
        self.lds = []

    def stamp_flush(self, n):
        if not OPT["stamp"]:
            return
        e = self.e
        e("s_lshl_b32 s92, s2, 3")
        e(f"s_add_u32 s92, s92, s{S_WID}")
        e("s_lshl_b32 s92, s92, 7")
        e(f"s_add_u32 s92, s92, {64<<20}")
        e(f"s_add_u32 s92, s{S_WS}, s92")
        e(f"s_addc_u32 s93, s{S_WS+1}, 0")
        e("s_mov_b32 s94, 128")
        e("s_mov_b32 s95, 0x00020000")
        e("v_mov_b32 v2, 0")
        for i in range(n):
            e(f"v_mov_b32 v4, s{76+2*i}")
            e(f"v_mov_b32 v5, s{77+2*i}")
            e(f"buffer_store_dwordx2 v[4:5], v2, s[92:95], 0 offen offset:{8*i}")
            e("s_nop 1")

    def barrier(self):
        self.e("s_barrier")
        self.nbar += 1


def vr(a, n):
    return f"v[{a}:{a+n-1}]"


def sr(a, n):
    return f"s[{a}:{a+n-1}]"


def mfma(d, a, b, c):
    cs = "0" if c is None else vr(c, 16)
    return f"v_mfma_f32_32x32x16_bf16 {vr(d,16)}, {vr(a,4)}, {vr(b,4)}, {cs}"


V_O = 0
V_Q = 128
V_S = 192
V_F = 224
V_AK = 240
V_AKT = 241
V_AV = 242
V_MC, V_L = 246, 247
V_T = 248
V_LANE = 254
V_X = 255

WBASE = 2 * SLOT
RING = [3, 4, 2]
NWS = OPT['nws']
WREG = NWS * 4096


def lane_fields(e, L, Vh, Vu, Vr, Vcc):
    e(f"v_lshrrev_b32 v{Vh}, 5, v{L}")
    e(f"v_bfe_u32 v{Vu}, v{L}, 4, 1")
    e(f"v_bfe_u32 v{Vr}, v{L}, 2, 2")
    e(f"v_and_b32 v{Vcc}, 3, v{L}")


def gen_main():
    A = Asm()
    e = A.e
    A.label(KMAIN)
    e("s_cmp_ge_u32 s2, 256")
    e("s_cbranch_scc1 L_exit")
    e("s_load_dwordx16 s[8:23], s[0:1], 0")
    e("s_load_dwordx8 s[24:31], s[0:1], 64")
    e("s_load_dwordx2 s[32:33], s[0:1], 96")
    e(f"s_and_b32 s{S_T0}, s2, 7")
    e(f"s_lshl_b32 s{S_T0}, s{S_T0}, 1")
    e(f"s_lshr_b32 s{S_T1}, s2, 3")
    e(f"s_and_b32 s{S_T1}, s{S_T1}, 1")
    e(f"s_add_u32 s{S_T0}, s{S_T0}, s{S_T1}")
    e(f"s_lshr_b32 s{S_B}, s2, 4")
    e(f"s_lshr_b32 s{S_BLK}, s{S_T0}, 3")
    e(f"s_and_b32 s{S_HKV}, s{S_T0}, 7")
    e("v_lshrrev_b32 v1, 6, v0")
    e(f"v_and_b32 v{V_LANE}, 63, v0")
    e("s_nop 0")
    e(f"v_readfirstlane_b32 s{S_WID}, v1")
    e("s_waitcnt lgkmcnt(0)")
    e(f"s_cmp_eq_u32 s{S_BLK}, 0")
    e(f"s_cselect_b64 {sr(S_X,2)}, s[8:9], s[18:19]")
    e(f"s_cselect_b64 {sr(S_K,2)}, s[10:11], s[20:21]")
    e(f"s_cselect_b64 {sr(S_V,2)}, s[12:13], s[22:23]")
    e(f"s_cselect_b64 {sr(S_WQ,2)}, s[14:15], s[24:25]")
    e(f"s_cselect_b64 {sr(S_WO,2)}, s[16:17], s[26:27]")
    A.stamp(0)
    e(f"s_cmp_ge_u32 s{S_WID}, 4")
    e("s_cbranch_scc1 L_producer")

    def bump(sreg, n):
        e(f"s_add_u32 s{sreg}, s{sreg}, 1")
        e(f"s_cmp_ge_u32 s{sreg}, {n}")
        e(f"s_cselect_b32 s{sreg}, 0, s{sreg}")

    L = V_LANE
    e(f"s_lshl_b32 s{S_T0}, s{S_HKV}, 10")
    e(f"s_add_u32 s{SRD0}, s{S_WQ}, s{S_T0}")
    e(f"s_addc_u32 s{SRD0+1}, s{S_WQ+1}, 0")
    e(f"s_sub_u32 s{SRD0+2}, {448*8192}, s{S_T0}")
    e(f"s_mov_b32 s{SRD0+3}, 0x00020000")
    e(f"s_mul_i32 s{S_T0}, s{S_B}, 57344")
    e(f"s_add_u32 s{SRD1}, s{S_X}, s{S_T0}")
    e(f"s_addc_u32 s{SRD1+1}, s{S_X+1}, 0")
    e(f"s_mov_b32 s{SRD1+2}, 57344")
    e(f"s_mov_b32 s{SRD1+3}, 0x00020000")
    e(f"s_lshl_b32 s{S_T0}, s{S_BLK}, 4")
    e(f"s_add_u32 s{S_T0}, s{S_T0}, s{S_B}")
    e(f"s_lshl_b32 s{S_T0}, s{S_T0}, 3")
    e(f"s_add_u32 s{S_T0}, s{S_T0}, s{S_HKV}")
    e(f"s_mul_i32 s{S_T0}, s{S_T0}, 114688")
    e(f"s_add_u32 s{SRD2}, s{S_WS}, s{S_T0}")
    e(f"s_addc_u32 s{SRD2+1}, s{S_WS+1}, 0")
    e(f"s_mov_b32 s{SRD2+2}, 114688")
    e(f"s_mov_b32 s{SRD2+3}, 0x00020000")
    e(f"s_lshr_b32 s{S_HEAD}, s{S_WID}, 1")
    e(f"s_and_b32 s{S_QB}, s{S_WID}, 1")

    Vh, Vu, Vr, Vcc = V_T, V_T + 1, V_T + 2, V_T + 3
    Vt0, Vt1 = V_T + 4, V_T + 5
    lane_fields(e, L, Vh, Vu, Vr, Vcc)

    QR = V_Q
    V_OFFW, V_XB, V_XF7, V_XA = QR, QR + 1, QR + 2, QR + 3
    V_AW = QR + 4
    V_XR = QR + 8
    V_WF = QR + 24
    e(f"s_mul_i32 s{S_T0}, s{S_WID}, 896")
    e(f"s_mov_b32 s{S_T1}, {(1<<32)//56 + 1}")
    e(f"s_mul_i32 s{S_T2}, s{S_WID}, 14336")
    for i in range(14):
        r0 = V_O + 4 * i
        e(f"v_add_u32 v{r0}, {64*i}, v{L}")
        e(f"v_add_u32 v{r0}, s{S_T0}, v{r0}")
        e(f"v_mul_hi_u32 v{r0+1}, v{r0}, s{S_T1}")
        e(f"v_mul_u32_u24 v{r0+2}, 56, v{r0+1}")
        e(f"v_sub_u32 v{r0+2}, v{r0}, v{r0+2}")
        e(f"v_bfe_u32 v{r0+3}, v{r0+1}, 1, 3")
        e(f"v_xor_b32 v{r0+2}, v{r0+2}, v{r0+3}")
        e(f"v_lshlrev_b32 v{r0+2}, 4, v{r0+2}")
        e(f"v_mul_u32_u24 v{r0+1}, 896, v{r0+1}")
        e(f"v_add_u32 v{r0}, v{r0+1}, v{r0+2}")
        e(f"s_add_u32 m0, s{S_T2}, {i*1024}")
        e("s_nop 0")
        A.vm_issue(("xd", 0), f"buffer_load_dwordx4 v{r0}, {sr(SRD1,4)}, 0 offen lds")
    e(f"v_lshrrev_b32 v{Vt0}, 4, v{L}")
    e(f"v_lshlrev_b32 v{Vt1}, 2, v{Vt0}")
    e(f"v_and_b32 v{V_X}, 15, v{L}")
    e(f"v_xor_b32 v{V_X}, v{V_X}, v{Vt1}")
    e(f"v_lshlrev_b32 v{V_X}, 4, v{V_X}")
    e(f"v_lshlrev_b32 v{Vt0}, 13, v{Vt0}")
    e(f"v_add_u32 v{Vt0}, v{Vt0}, v{V_X}")
    e(f"s_lshl_b32 s{S_T0}, s{S_WID}, 8")
    e(f"v_add_u32 v{V_OFFW}, s{S_T0}, v{Vt0}")
    e(f"s_mul_i32 s{S_M0}, s{S_WID}, {WREG}")
    e(f"s_add_u32 s{S_M0}, s{S_M0}, {WBASE}")
    S_WK, S_XK = S_R0, S_R1
    e(f"s_mul_i32 s{S_WK}, s{S_B}, 7")
    e(f"s_lshr_b32 s{S_WK}, s{S_WK}, 2")
    if not OPT["rot"]:
        e(f"s_mov_b32 s{S_WK}, 0")
    e(f"s_mov_b32 s{S_XK}, s{S_WK}")

    def w_issue(j):
        e(f"s_lshl_b32 s{S_SOFF}, s{S_WK}, 17")
        e(f"s_add_u32 m0, s{S_M0}, {(j%NWS)*4096}")
        bump(S_WK, 28)
        for i in range(4):
            A.vm_issue(("w", j), f"buffer_load_dwordx4 v{V_OFFW}, {sr(SRD0,4)}, s{S_SOFF} offen offset:{i*1024} lds")
            if i < 3:
                e(f"s_add_u32 s{S_SOFF}, s{S_SOFF}, {32768-1024}")

    for j in range(NWS - 1):
        w_issue(j)
    e(f"v_and_b32 v{Vt0}, 31, v{L}")
    e(f"v_mul_u32_u24 v{V_XB}, 896, v{Vt0}")
    e(f"v_bfe_u32 v{V_XF7}, v{L}, 1, 3")
    e(f"v_lshlrev_b32 v{Vt0}, 3, v{Vh}")
    e(f"v_add_u32 v{Vt0}, v{Vt0}, v{Vr}")
    e(f"v_lshlrev_b32 v{Vt0}, 8, v{Vt0}")
    e(f"v_lshlrev_b32 v{Vt1}, 5, v{Vu}")
    e(f"v_add_u32 v{Vt0}, v{Vt0}, v{Vt1}")
    e(f"v_and_b32 v{Vt1}, 1, v{Vcc}")
    e(f"v_lshlrev_b32 v{Vt1}, 4, v{Vt1}")
    e(f"v_add_u32 v{Vt0}, v{Vt0}, v{Vt1}")
    e(f"v_lshrrev_b32 v{Vt1}, 1, v{Vcc}")
    e(f"v_lshlrev_b32 v{Vt1}, 3, v{Vt1}")
    e(f"v_add_u32 v{Vt0}, v{Vt0}, v{Vt1}")
    e(f"v_add_u32 v{Vt0}, s{S_M0}, v{Vt0}")
    for t2 in range(4):
        e(f"v_xor_b32 v{Vt1}, {t2}, v{Vr}")
        e(f"v_lshlrev_b32 v{Vt1}, 6, v{Vt1}")
        e(f"v_add_u32 v{V_AW+t2}, v{Vt0}, v{Vt1}")
    e(f"v_and_b32 v{Vt0}, 31, v{L}")
    e(f"v_and_b32 v{Vt1}, 15, v{L}")
    e(f"v_xor_b32 v{Vt1}, v{Vt1}, v{Vh}")
    e(f"v_lshlrev_b32 v{Vt1}, 4, v{Vt1}")
    e(f"v_lshlrev_b32 v{Vt0}, 9, v{Vt0}")
    e(f"v_add_u32 v{V_AK}, v{Vt0}, v{Vt1}")
    e(f"v_lshlrev_b32 v{Vt0}, 2, v{Vh}")
    e(f"v_add_u32 v{Vt0}, v{Vt0}, v{Vr}")
    e(f"v_lshlrev_b32 v{Vt0}, 9, v{Vt0}")
    e(f"v_lshlrev_b32 v{Vt1}, 5, v{Vu}")
    e(f"v_add_u32 v{Vt0}, v{Vt0}, v{Vt1}")
    e(f"v_lshlrev_b32 v{Vt1}, 3, v{Vcc}")
    e(f"v_add_u32 v{Vt0}, v{Vt0}, v{Vt1}")
    e(f"v_add_u32 v{Vt0}, 16384, v{Vt0}")
    for t2 in range(4):
        e(f"v_xor_b32 v{Vt1}, {t2}, v{Vr}")
        e(f"v_lshlrev_b32 v{Vt1}, 6, v{Vt1}")
        e(f"v_add_u32 v{V_AV+t2}, v{Vt0}, v{Vt1}")
    A.vm_wait(("xd", 0))
    A.barrier()
    NJ = 28

    def q_reads(j):
        e(f"s_lshl_b32 s{S_T0}, s{S_XK}, 1")
        bump(S_XK, 28)
        e(f"v_add_u32 v{V_XA}, s{S_T0}, v{Vh}")
        e(f"v_xor_b32 v{V_XA}, v{V_XA}, v{V_XF7}")
        e(f"v_lshlrev_b32 v{V_XA}, 4, v{V_XA}")
        e(f"v_add_u32 v{V_XA}, v{V_XA}, v{V_XB}")
        xr = V_XR + 8 * (j % 2)
        for qb in range(2):
            A.lds_issue(("x", j), f"ds_read_b128 {vr(xr+4*qb,4)}, v{V_XA} offset:{qb*28672}")
        A.vm_wait(("w", j))
        base = (j % NWS) * 4096
        for T in range(4):
            f = V_WF + 16 * (j % 2) + 4 * T
            A.lds_issue(("w", j, T), f"ds_read_b64_tr_b16 {vr(f,2)}, v{V_AW+T} offset:{base}")
            A.lds_issue(("w", j, T), f"ds_read_b64_tr_b16 {vr(f+2,2)}, v{V_AW+T} offset:{base+1024}")

    q_reads(0)
    for j in range(NJ):
        A.c(f"---- Q-proj step {j}")
        xr = V_XR + 8 * (j % 2)
        for T in range(4):
            A.lds_wait(("w", j, T))
            for qb in range(2):
                acc = V_O + 32 * T + 16 * qb
                e(mfma(acc, V_WF + 16 * (j % 2) + 4 * T, xr + 4 * qb, None if j == 0 else acc))
            if T == 3:
                pass
            if T == (1 if OPT["qpipe"] else 3):
                A.lds_wait(("w", j, 3))
                if j + NWS - 1 < NJ:
                    w_issue(j + NWS - 1)
                if j + 1 < NJ:
                    q_reads(j + 1)
        if OPT["stamp"] == 2 and j in (0, 7, 14, 21):
            A.stamp(1 + j // 7)
    assert not A.vm
    A.stamp(5 if OPT["stamp"] == 2 else 1)
    e(f"v_lshlrev_b32 v{Vt0}, 4, v{L}")
    e(f"v_add_u32 v{Vt1}, s{S_M0}, v{Vt0}")
    e(f"s_mul_i32 s{S_T0}, s{S_HEAD}, {2*WREG}")
    e(f"s_lshl_b32 s{S_T1}, s{S_QB}, 13")
    e(f"s_add_u32 s{S_T0}, s{S_T0}, s{S_T1}")
    e(f"s_add_u32 s{S_T0}, s{S_T0}, {WBASE}")
    e(f"v_add_u32 v{V_X}, s{S_T0}, v{Vt0}")
    e("s_nop 15")
    for qb in range(2):
        for T in range(4):
            for u in range(2):
                f = 2 * T + u
                q = V_Q + 4 * (8 * qb + f)
                for r in range(4):
                    a_ = V_O + 32 * T + 16 * qb + 8 * u + 2 * r
                    e(f"v_cvt_pk_bf16_f32 v{q + r}, v{a_}, v{a_+1}")
                e(f"ds_write_b128 v{Vt1}, {vr(q,4)} offset:{qb*8192 + f*1024}")
    e("s_waitcnt lgkmcnt(0)")
    A.barrier()
    for ks in range(16):
        e(f"ds_read_b128 {vr(V_Q+4*ks,4)}, v{V_X} offset:{(ks>>3)*WREG + (ks&7)*1024}")
    for i in range(128):
        e(f"v_mov_b32 v{V_O+i}, 0")
    e(f"v_mov_b32 v{V_MC}, 0xff800000")
    e(f"v_mov_b32 v{V_L}, 0")
    cbits = struct.unpack("<I", struct.pack("<f", math.log2(math.e) / 16.0))[0]
    e(f"s_mov_b32 s{S_C}, 0x{cbits:08x}")
    e(f"s_mov_b32 s{S_CNT}, 0")
    e("s_mov_b32 s56, 0")
    e(f"s_mov_b32 s74, {SLOT}")
    e(f"s_mov_b32 s75, {(-4*SLOT) & 0xffffffff}")
    e("s_mov_b32 s38, 1")
    e(f"v_add_u32 v{V_AK}, {SLOT}, v{V_AK}")
    for t2 in range(4):
        e(f"v_add_u32 v{V_AV+t2}, {SLOT}, v{V_AV+t2}")
    e("s_waitcnt lgkmcnt(0)")
    A.barrier()

    t0, t1, t2_, t3, t4, t5 = (V_T + i for i in range(6))
    pv = [(dt, kk) for dt in range(8) for kk in range(2)]
    nresc = [0]

    def interval():
        S = V_S
        P = V_S + 16
        A.barrier()

        def rdK(ks):
            f = V_F + 4 * (ks % 4)
            k7 = ks & 7
            if k7:
                e(f"v_xor_b32 v{V_AKT}, {k7<<5}, v{V_AK}")
                ar = V_AKT
            else:
                ar = V_AK
            A.lds_issue(("k", ks), f"ds_read_b128 {vr(f,4)}, v{ar} offset:{(ks>>3)*256}")

        def rdV(i):
            dt, kk = pv[i]
            f = V_F + 4 * (i % 4)
            base = kk * 8192 + (dt >> 2) * 256
            A.lds_issue(("v", i), f"ds_read_b64_tr_b16 {vr(f,2)}, v{V_AV+(dt&3)} offset:{base}")
            A.lds_issue(("v", i), f"ds_read_b64_tr_b16 {vr(f+2,2)}, v{V_AV+(dt&3)} offset:{base+4096}")

        PF = OPT["kpf"]
        for ks in range(PF):
            rdK(ks)
        for ks in range(16):
            A.lds_wait(("k", ks))
            e(mfma(S, V_F + 4 * (ks % 4), V_Q + 4 * ks, None if ks == 0 else S))
            if ks + PF < 16:
                rdK(ks + PF)
            else:
                rdV(ks + PF - 16)
        e("s_add_u32 s38, s38, 1")
        e("s_cmp_eq_u32 s38, 5")
        e("s_cselect_b32 s39, s75, s74")
        e("s_cselect_b32 s38, 0, s38")
        e(f"v_add_u32 v{V_AK}, s39, v{V_AK}")
        e("s_nop 8")
        for ins in [f"v_max3_f32 v{t0}, v{S}, v{S+1}, v{S+2}",
                    f"v_max3_f32 v{t1}, v{S+3}, v{S+4}, v{S+5}",
                    f"v_max3_f32 v{t2_}, v{S+6}, v{S+7}, v{S+8}",
                    f"v_max3_f32 v{t3}, v{S+9}, v{S+10}, v{S+11}",
                    f"v_max3_f32 v{t4}, v{S+12}, v{S+13}, v{S+14}",
                    f"v_max3_f32 v{t0}, v{t0}, v{t1}, v{S+15}",
                    f"v_max3_f32 v{t2_}, v{t2_}, v{t3}, v{t4}",
                    f"v_max_f32 v{t0}, v{t0}, v{t2_}",
                    f"v_mov_b32 v{t1}, v{t0}",
                    "s_nop 1",
                    f"v_permlane32_swap_b32 v{t0}, v{t1}",
                    "s_nop 1",
                    f"v_max_f32 v{t0}, v{t0}, v{t1}",
                    f"v_mul_f32 v{t5}, s{S_C}, v{t0}",
                    f"v_sub_f32 v{t1}, v{t5}, v{V_MC}",
                    f"v_cmp_lt_f32 vcc, 0x41000000, v{t1}",
                    "s_nop 1"]:
            e(ins)
        nresc[0] += 1
        e(f"s_cbranch_vccnz L_rescale{nresc[0]}")
        A.label(f"L_rescale_done{nresc[0]}")
        for i in range(16):
            e(f"v_fma_f32 v{S+i}, v{S+i}, s{S_C}, -v{V_MC}")
        for i in range(16):
            e(f"v_exp_f32 v{S+i}, v{S+i}")
        e("s_nop 0")
        for i in range(8):
            e(f"v_cvt_pk_bf16_f32 v{P+i}, v{S+2*i}, v{S+2*i+1}")
        sums = [f"v_add_f32 v{t0}, v{S}, v{S+1}", f"v_add_f32 v{t1}, v{S+2}, v{S+3}"]
        for i in range(4, 16, 2):
            sums.append(f"v_add_f32 v{t0}, v{t0}, v{S+i}")
            sums.append(f"v_add_f32 v{t1}, v{t1}, v{S+i+1}")
        sums.append(f"v_add_f32 v{t0}, v{t0}, v{t1}")
        sums.append(f"v_add_f32 v{V_L}, v{V_L}, v{t0}")
        if not OPT["ilvm"]:
            while sums:
                e(sums.pop(0))
        else:
            e("s_nop 1")
        for i in range(16):
            dt, kk = pv[i]
            A.lds_wait(("v", i))
            e(mfma(V_O + 16 * dt, V_F + 4 * (i % 4), P + 4 * kk, V_O + 16 * dt))
            if i + PF < 16:
                rdV(i + PF)
            if sums:
                e(sums.pop(0))
        assert not A.lds and not sums
        for t2 in range(4):
            e(f"v_add_u32 v{V_AV+t2}, s39, v{V_AV+t2}")

    nb0 = A.nbar
    A.label("L_loop")
    interval()
    e(f"s_add_u32 s{S_CNT}, s{S_CNT}, 1")
    e(f"s_cmp_lt_u32 s{S_CNT}, 32")
    e("s_cbranch_scc1 L_loop")
    A.nbar = nb0 + 32

    A.stamp(6 if OPT["stamp"] == 2 else 2)
    e(f"v_mov_b32 v{t1}, v{V_L}")
    e("s_nop 1")
    e(f"v_permlane32_swap_b32 v{V_L}, v{t1}")
    e("s_nop 1")
    e(f"v_add_f32 v{t0}, v{V_L}, v{t1}")
    e(f"v_rcp_f32 v{t5}, v{t0}")
    e(f"s_lshl_b32 s{S_T1}, s{S_QB}, 14")
    e(f"s_add_u32 s{S_T0}, s{S_T1}, 32768")
    e(f"s_cmp_eq_u32 s{S_HEAD}, 0")
    e(f"s_cselect_b32 s{S_T2}, s{S_T1}, s{S_T0}")
    V_AB, V_ABC, V_AOWN, V_AWO = V_AK, V_AK + 1, V_AK + 2, V_AK + 4
    e(f"v_lshlrev_b32 v{t1}, 4, v{L}")
    e(f"v_add_u32 v{V_AB}, s{S_T1}, v{t1}")
    e(f"v_add_u32 v{V_AOWN}, s{S_T2}, v{t1}")
    e("s_nop 7")
    for fr in range(16):
        dt, u = fr >> 1, fr & 1
        q = V_Q + 4 * fr
        for r in range(4):
            a = V_O + 16 * dt + 8 * u + 2 * r
            e(f"v_mul_f32 v{a}, v{a}, v{t5}")
            e(f"v_mul_f32 v{a+1}, v{a+1}, v{t5}")
            e(f"v_cvt_pk_bf16_f32 v{q+r}, v{a}, v{a+1}")
        e(f"ds_write_b128 v{V_AOWN}, {vr(q,4)} offset:{fr*1024}")
    lane_fields(e, L, Vh, Vu, Vr, Vcc)
    e(f"v_lshlrev_b32 v{Vt0}, 2, v{Vh}")
    e(f"v_add_u32 v{Vt0}, v{Vt0}, v{Vr}")
    e(f"v_mul_u32_u24 v{Vt0}, 896, v{Vt0}")
    e(f"v_lshlrev_b32 v{Vt1}, 5, v{Vu}")
    e(f"v_add_u32 v{Vt0}, v{Vt0}, v{Vt1}")
    e(f"v_lshlrev_b32 v{Vt1}, 3, v{Vcc}")
    e(f"v_add_u32 v{Vt0}, v{Vt0}, v{Vt1}")
    e(f"s_mul_i32 s{S_T0}, s{S_HEAD}, 448")
    e(f"s_add_u32 s{S_T0}, s{S_T0}, {3*SLOT}")
    e(f"v_add_u32 v{Vt0}, s{S_T0}, v{Vt0}")
    e(f"v_lshrrev_b32 v{Vt1}, 1, v{Vr}")
    e(f"v_lshlrev_b32 v{Vt1}, 6, v{Vt1}")
    e(f"v_add_u32 v{V_S}, v{Vt0}, v{Vt1}")
    e(f"v_sub_u32 v{V_S+1}, v{Vt0}, v{Vt1}")
    e(f"s_cmp_eq_u32 s{S_HEAD}, 0")
    e("s_cselect_b64 vcc, -1, 0")
    e("s_nop 1")
    e(f"v_cndmask_b32 v{V_AWO}, v{V_S+1}, v{V_S}, vcc")
    e(f"v_cndmask_b32 v{V_AWO+1}, v{V_S}, v{V_S+1}, vcc")
    e("s_waitcnt lgkmcnt(0)")
    if OPT["stamp"] == 1:
        A.stamp(3)

    V_ACC = 0
    V_BF = V_S + 8
    V_AF = V_Q
    NAF = 7
    S_OK = S_R0
    e(f"s_mov_b32 s{S_OK}, " + (f"s{S_B}" if OPT["rot"] else "0"))
    for k in range(16):
        A.c(f"---- O-proj stage {k}")
        e(f"s_lshr_b32 s{S_T0}, s{S_OK}, 3")
        e(f"s_lshl_b32 s{S_T0}, s{S_T0}, 15")
        e(f"s_and_b32 s{S_T1}, s{S_OK}, 7")
        e(f"s_lshl_b32 s{S_T1}, s{S_T1}, 11")
        e(f"s_add_u32 s{S_T0}, s{S_T0}, s{S_T1}")
        e(f"v_add_u32 v{V_ABC}, s{S_T0}, v{V_AB}")
        e(f"s_add_u32 s{S_OK}, s{S_OK}, 1")
        e(f"s_and_b32 s{S_OK}, s{S_OK}, 15")
        A.barrier()
        A.lds_issue(("b", 0), f"ds_read_b128 {vr(V_BF,4)}, v{V_ABC}")
        seq = [(ksl, nt) for ksl in range(2) for nt in range(7)]
        sl = 0

        def rdA(i):
            ksl, nt = seq[i]
            f = V_AF + 4 * (i % 8)
            base = ksl * 16 * 896 + nt * 64 + sl
            A.lds_issue(("a", i), f"ds_read_b64_tr_b16 {vr(f,2)}, v{V_AWO+(nt&1)} offset:{base}")
            A.lds_issue(("a", i), f"ds_read_b64_tr_b16 {vr(f+2,2)}, v{V_AWO+(nt&1)} offset:{base+8*896}")
        for i in range(NAF):
            rdA(i)
        for i in range(14):
            ksl, nt = seq[i]
            A.lds_wait(("a", i))
            if i == 7:
                A.lds_wait(("b", 1))
            e(mfma(V_ACC + 16 * nt, V_AF + 4 * (i % 8), V_BF + 4 * ksl, None if (k == 0 and ksl == 0) else V_ACC + 16 * nt))
            if i == 0:
                A.lds_issue(("b", 1), f"ds_read_b128 {vr(V_BF+4,4)}, v{V_ABC} offset:1024")
            if i + NAF < 14:
                rdA(i + NAF)
        assert not A.lds
        if k < 15:
            d_ = (RING[(k + 1) % 3] - RING[k % 3]) * SLOT
            e(f"v_add_u32 v{V_AWO}, {d_ & 0xffffffff}, v{V_AWO}")
            e(f"v_add_u32 v{V_AWO+1}, {d_ & 0xffffffff}, v{V_AWO+1}")
    if OPT["stamp"] == 1:
        A.stamp(4)
    A.c("---- store partials")
    e(f"v_lshlrev_b32 v{t0}, 4, v{L}")
    e(f"s_mul_i32 s{S_SOFF}, s{S_WID}, 28672")
    e("s_nop 15")
    for nt in range(7):
        for g in range(4):
            e(f"buffer_store_dwordx4 {vr(V_ACC+16*nt+4*g,4)}, v{t0}, {sr(SRD2,4)}, s{S_SOFF} offen offset:{g*1024}")
        if nt < 6:
            e(f"s_add_u32 s{S_SOFF}, s{S_SOFF}, 4096")
    if OPT["stamp"]:
        e("s_waitcnt vmcnt(0)")
    A.stamp(7 if OPT["stamp"] == 2 else 5)
    if OPT["stamp"] == 2:
        e("s_add_u32 s84, s76, s56")
        e("s_addc_u32 s85, s77, 0")
    A.stamp_flush(8)
    e("s_endpgm")
    nbar_cons = A.nbar

    for n in range(1, nresc[0] + 1):
        A.label(f"L_rescale{n}")
        if OPT["stamp"]:
            e("s_add_u32 s56, s56, 1000")
        e("s_nop 15")
        e(f"v_max_f32 v{t0}, v{t5}, v{V_MC}")
        e(f"v_sub_f32 v{t1}, v{V_MC}, v{t0}")
        e(f"v_exp_f32 v{t1}, v{t1}")
        e(f"v_mov_b32 v{V_MC}, v{t0}")
        e("s_nop 0")
        e(f"v_mul_f32 v{V_L}, v{V_L}, v{t1}")
        for i in range(128):
            e(f"v_mul_f32 v{V_O+i}, v{V_O+i}, v{t1}")
        e(f"s_branch L_rescale_done{n}")

    A.label("L_producer")
    if OPT["pprio"]:
        e(f"s_setprio {OPT['pprio']}")
    A.nbar = 0
    A.vm = []
    A.lds = []
    S_P = 58
    e(f"s_sub_u32 s{S_P}, s{S_WID}, 4")
    e(f"s_lshl_b32 s{S_T0}, s{S_B}, 22")
    e(f"s_lshl_b32 s{S_T1}, s{S_HKV}, 19")
    e(f"s_add_u32 s{S_T0}, s{S_T0}, s{S_T1}")
    e(f"s_add_u32 s{SRD0}, s{S_K}, s{S_T0}")
    e(f"s_addc_u32 s{SRD0+1}, s{S_K+1}, 0")
    e(f"s_mov_b32 s{SRD0+2}, 524288")
    e(f"s_mov_b32 s{SRD0+3}, 0x00020000")
    e(f"s_add_u32 s{SRD1}, s{S_V}, s{S_T0}")
    e(f"s_addc_u32 s{SRD1+1}, s{S_V+1}, 0")
    e(f"s_mov_b32 s{SRD1+2}, 524288")
    e(f"s_mov_b32 s{SRD1+3}, 0x00020000")
    e(f"s_mul_i32 s{S_T0}, s{S_HKV}, 458752")
    e(f"s_add_u32 s{SRD2}, s{S_WO}, s{S_T0}")
    e(f"s_addc_u32 s{SRD2+1}, s{S_WO+1}, 0")
    e(f"s_mov_b32 s{SRD2+2}, 458752")
    e(f"s_mov_b32 s{SRD2+3}, 0x00020000")
    PK, PV_, PW, PAK, PAW = 10, 14, 16, 23, 24
    a, b2, c2, d2 = 2, 3, 4, 5
    e(f"v_lshrrev_b32 v{a}, 5, v{L}")
    e(f"v_and_b32 v{b2}, 31, v{L}")
    e(f"s_lshl_b32 s{S_T0}, s{S_P}, 3")
    e(f"v_add_u32 v{c2}, s{S_T0}, v{a}")
    e(f"v_lshlrev_b32 v{d2}, 9, v{c2}")
    for j in range(4):
        e(f"v_add_u32 v6, {2*j}, v{c2}")
        e("v_and_b32 v6, 15, v6")
        e(f"v_xor_b32 v6, v6, v{b2}")
        e("v_lshlrev_b32 v6, 4, v6")
        e(f"v_add_u32 v{PK+j}, v{d2}, v6")
    for jp in range(2):
        e(f"v_add_u32 v6, {2*jp}, v{a}")
        e("v_lshlrev_b32 v6, 2, v6")
        e(f"v_xor_b32 v6, v6, v{b2}")
        e("v_lshlrev_b32 v6, 4, v6")
        e(f"v_add_u32 v{PV_+jp}, v{d2}, v6")
    e(f"s_mul_i32 s{S_T0}, s{S_P}, 448")
    e(f"s_mov_b32 s{S_T1}, {(1<<32)//56 + 1}")
    for j in range(7):
        e(f"v_add_u32 v6, {64*j}, v{L}")
        e(f"v_add_u32 v6, s{S_T0}, v6")
        e(f"v_mul_hi_u32 v7, v6, s{S_T1}")
        e("v_mul_u32_u24 v8, 56, v7")
        e("v_sub_u32 v8, v6, v8")
        e("v_bfe_u32 v9, v7, 1, 1")
        e("v_lshlrev_b32 v9, 2, v9")
        e("v_xor_b32 v8, v8, v9")
        e("v_lshlrev_b32 v8, 4, v8")
        e("v_mul_u32_u24 v7, 896, v7")
        e(f"v_add_u32 v{PW+j}, v7, v8")
    e(f"s_lshl_b32 s{S_M0}, s{S_P}, 12")
    e(f"s_mul_i32 s{S_T3}, s{S_P}, 7168")
    e(f"s_mov_b32 s{S_R0}, " + (f"s{S_B}" if OPT["rot"] else "0"))

    def iv_issue(i):
        if i <= 31:
            sl = ((i + 1) % 5) * SLOT
            if OPT["krot"]:
                e(f"s_lshl_b32 s{S_SOFF}, s{S_R1}, 14")
                e(f"s_add_u32 s{S_R1}, s{S_R1}, 1")
                e(f"s_and_b32 s{S_R1}, s{S_R1}, 31")
            else:
                e(f"s_mov_b32 s{S_SOFF}, {i*16384}")
            e(f"s_add_u32 m0, s{S_M0}, {sl}")
            e("s_nop 0")
            for j in range(4):
                A.vm_issue(("iv", i), f"buffer_load_dwordx4 v{PK+j}, {sr(SRD0,4)}, s{S_SOFF} offen offset:{j*1024}{NT} lds")
            e(f"s_add_u32 m0, s{S_M0}, {sl+16384}")
            e("s_nop 0")
            for j in range(4):
                A.vm_issue(("iv", i), f"buffer_load_dwordx4 v{PV_+(j&1)}, {sr(SRD1,4)}, s{S_SOFF} offen offset:{j*1024}{NT} lds")
        else:
            k = i - 32
            sl = RING[k % 3] * SLOT
            e(f"s_mul_i32 s{S_SOFF}, s{S_R0}, 28672")
            e(f"s_add_u32 s{S_R0}, s{S_R0}, 1")
            e(f"s_and_b32 s{S_R0}, s{S_R0}, 15")
            for j in range(7):
                e(f"s_add_u32 m0, s{S_T3}, {sl + j*1024}")
                e("s_nop 0")
                A.vm_issue(("iv", i), f"buffer_load_dwordx4 v{PW+j}, {sr(SRD2,4)}, s{S_SOFF} offen lds")

    if OPT["krot"] == 1:
        e(f"s_mul_i32 s{S_R1}, s2, 5")
        e(f"s_and_b32 s{S_R1}, s{S_R1}, 31")
    elif OPT["krot"] == 2:
        e(f"s_lshr_b32 s{S_R1}, s2, 3")
    elif OPT["krot"] == 3:
        e(f"s_and_b32 s{S_R1}, s2, 31")
    A.barrier()
    A.stamp(1)
    A.barrier()
    iv_issue(0)
    A.barrier()
    for i in (1, 2, 3, 4):
        iv_issue(i)
    A.stamp(2)
    for i in range(48):
        A.vm_wait(("iv", i))
        A.barrier()
        if i == 32:
            A.stamp(3)
        if 1 <= i and i + 4 <= 31:
            iv_issue(i + 4)
        elif i == 28:
            iv_issue(32)
        elif i == 29:
            iv_issue(33)
        elif i >= 32 and i + 2 < 48:
            iv_issue(i + 2)
    assert not A.vm
    assert A.nbar == nbar_cons, (A.nbar, nbar_cons)
    for i in range(4, 8):
        A.stamp(i)
    A.stamp_flush(8)
    A.label("L_exit")
    e("s_endpgm")
    return A.lines


def gen_reduce():
    A = Asm()
    e = A.e
    A.label(KRED)
    e("s_cmp_ge_u32 s2, 896")
    e("s_cbranch_scc1 R_exit")
    e("s_load_dwordx2 s[4:5], s[0:1], 80")
    e("s_load_dwordx2 s[6:7], s[0:1], 96")
    e(f"s_mov_b32 s16, {(1<<32)//28 + 1}")
    e("s_mul_hi_u32 s17, s2, s16")
    e("s_mul_i32 s18, s17, 28")
    e("s_sub_u32 s18, s2, s18")
    e(f"s_mov_b32 s16, {(1<<32)//7 + 1}")
    e("s_mul_hi_u32 s19, s18, s16")
    e("s_mul_i32 s20, s19, 7")
    e("s_sub_u32 s20, s18, s20")
    e("s_waitcnt lgkmcnt(0)")
    e("s_mul_i32 s21, s17, 917504")
    e("s_lshl_b32 s22, s18, 12")
    e("s_add_u32 s21, s21, s22")
    e("s_add_u32 s8, s6, s21")
    e("s_addc_u32 s9, s7, 0")
    e(f"s_mov_b32 s10, {7*114688+4096}")
    e("s_mov_b32 s11, 0x00020000")
    e("s_mov_b32 s12, s4")
    e("s_mov_b32 s13, s5")
    e("s_mov_b32 s14, 1835008")
    e("s_mov_b32 s15, 0x00020000")
    e("v_lshlrev_b32 v1, 4, v0")
    for h in range(8):
        e(f"s_mov_b32 s23, {h*114688}")
        e(f"buffer_load_dwordx4 {vr(8+4*h,4)}, v1, s[8:11], s23 offen")
    e("s_and_b32 s24, s17, 15")
    e("s_lshr_b32 s25, s17, 4")
    e("s_lshl_b32 s24, s24, 6")
    e("s_and_b32 s26, s19, 1")
    e("s_lshl_b32 s26, s26, 5")
    e("s_add_u32 s24, s24, s26")
    e("s_mul_i32 s24, s24, 896")
    e("s_mul_i32 s25, s25, 448")
    e("s_add_u32 s24, s24, s25")
    e("s_lshr_b32 s26, s19, 1")
    e("s_mul_i32 s26, s26, 224")
    e("s_add_u32 s24, s24, s26")
    e("s_lshl_b32 s26, s20, 5")
    e("s_add_u32 s24, s24, s26")
    e("s_lshl_b32 s24, s24, 1")
    e("v_and_b32 v2, 31, v0")
    e("v_mul_u32_u24 v2, 1792, v2")
    e("v_lshrrev_b32 v3, 6, v0")
    e("v_lshlrev_b32 v3, 4, v3")
    e("v_add_u32 v2, v2, v3")
    e("v_bfe_u32 v3, v0, 5, 1")
    e("v_lshlrev_b32 v3, 3, v3")
    e("v_add_u32 v2, v2, v3")
    for h in range(1, 8):
        e(f"s_waitcnt vmcnt({7-h})")
        for i in range(4):
            e(f"v_add_f32 v{8+i}, v{8+i}, v{8+4*h+i}")
    e("v_cvt_pk_bf16_f32 v4, v8, v9")
    e("v_cvt_pk_bf16_f32 v5, v10, v11")
    e("buffer_store_dwordx2 v[4:5], v2, s[12:15], s24 offen")
    if OPT["dbg"]:
        e("s_cmp_lg_u32 s2, 0")
        e("s_cbranch_scc1 R_exit")
        e("s_load_dwordx2 s[4:5], s[0:1], 88")
        e(f"s_add_u32 s8, s6, {(64<<20) + OPT['dbgwg']*1024}")
        e("s_addc_u32 s9, s7, 0")
        e("s_mov_b32 s10, 1024")
        e("s_waitcnt lgkmcnt(0)")
        e("s_mov_b32 s12, s4")
        e("s_mov_b32 s13, s5")
        e("s_mov_b32 s14, 64")
        e("v_lshrrev_b32 v1, 3, v0")
        e("v_lshlrev_b32 v1, 9, v1")
        e("v_and_b32 v2, 7, v0")
        e("v_lshlrev_b32 v2, 3, v2")
        e("v_add_u32 v2, v1, v2")
        e("buffer_load_dword v3, v2, s[8:11], 0 offen")
        e("v_mov_b32 v1, 0")
        e("buffer_load_dword v4, v1, s[8:11], 0 offen")
        e("s_waitcnt vmcnt(0)")
        e("v_sub_u32 v3, v3, v4")
        e("v_lshlrev_b32 v1, 2, v0")
        e("buffer_store_dword v3, v1, s[12:15], 0 offen")
    A.label("R_exit")
    e("s_endpgm")
    return A.lines


def kd(name, vgpr, sgpr):
    acc = (vgpr + 3) // 4 * 4
    return f""".amdhsa_kernel {name}
  .amdhsa_next_free_vgpr {vgpr}
  .amdhsa_next_free_sgpr {sgpr}
  .amdhsa_accum_offset {acc}
  .amdhsa_group_segment_fixed_size 0
  .amdhsa_kernarg_size 104
  .amdhsa_user_sgpr_count 2
  .amdhsa_user_sgpr_kernarg_segment_ptr 1
  .amdhsa_system_sgpr_workgroup_id_x 1
.end_amdhsa_kernel
"""


def main():
    out = []
    out.append(f"; @launch kernel={KMAIN} grid=(256,1,1) block=(512,1,1) lds=163840")
    out.append(f"; @launch kernel={KRED} grid=(896,1,1) block=(256,1,1) lds=0")
    out.append('.amdgcn_target "amdgcn-amd-amdhsa--gfx950"')
    out.append(".text")
    for name, lines in ((KMAIN, gen_main()), (KRED, gen_reduce())):
        out.append(f".globl {name}")
        out.append(".p2align 8")
        out.append(f".type {name},@function")
        out += lines
    out.append('.section .rodata,"a"')
    out.append(".p2align 6")
    out.append(kd(KMAIN, 256, 102))
    out.append(".p2align 6")
    out.append(kd(KRED, 40, 32))
    open(sys.argv[1], "w").write("\n".join(out) + "\n")


main()
```

```python
import sys, math, struct

NAME = "concat_heads__gqa_block_cached__gqa_block_cached__near_ridge"
KMAIN = NAME + "_kernel"
KRED = "reduce_partials_kernel"

OPT = dict(lst=0, krot=0, ilv=1, ilvm=1, clk=0, pprio=0, kd=4, kdm=0, pre=1, rot=1, nt=1, stamp=0, dbg=0, dbgwg=0, nocompute=0, kvlate=0)
for a in sys.argv[2:]:
    k, v = a.split("=")
    OPT[k] = int(v)

SLOT = 32768
NT = " nt" if OPT["nt"] else ""

S_BLK, S_HKV, S_B, S_WID = 34, 35, 36, 37
SRD0, SRD1, SRD2 = 40, 44, 48
S_SOFF, S_M0, S_CNT, S_C, S_FLAG = 52, 53, 54, 57, 55
S_HEAD, S_QB = 58, 59
S_T0, S_T1, S_T2, S_T3 = 60, 61, 62, 63
S_X, S_K, S_V, S_WQ, S_WO = 64, 66, 68, 70, 72
S_OUT, S_DBG, S_WS = 28, 30, 32
S_R0, S_R1 = 96, 97


class Asm:
    def __init__(self):
        self.lines = []
        self.lds = []
        self.vm = []
        self.nbar = 0

    def e(self, s):
        if OPT["nocompute"] and (s.startswith("ds_read") or s.startswith("v_mfma") or s.startswith("v_exp")):
            return
        self.lines.append("    " + s)

    def label(self, s):
        self.lines.append(s + ":")

    def c(self, s):
        self.lines.append("    ; " + s)

    def lds_issue(self, tag, s):
        self.e(s)
        self.lds.append(tag)

    def lds_wait(self, tag):
        if tag not in self.lds:
            return
        idx = max(i for i, t in enumerate(self.lds) if t == tag)
        n = len(self.lds) - 1 - idx
        assert n <= 15, n
        self.e(f"s_waitcnt lgkmcnt({n})")
        self.lds = self.lds[idx + 1:]

    def lds_wait_all(self):
        self.e("s_waitcnt lgkmcnt(0)")
        self.lds = []

    def vm_issue(self, tag, s):
        self.e(s)
        self.vm.append(tag)

    def vm_wait(self, tag):
        if tag not in self.vm:
            return
        idx = max(i for i, t in enumerate(self.vm) if t == tag)
        n = len(self.vm) - 1 - idx
        assert n <= 63
        self.e(f"s_waitcnt vmcnt({n})")
        self.vm = self.vm[idx + 1:]

    def stamp(self, i):
        if not OPT["stamp"]:
            return
        self.e(f"s_memrealtime s[{76+2*i}:{77+2*i}]")
        if OPT["dbg"] and i == 1:
            self.e("s_memtime s[98:99]")
        if OPT["dbg"] and i == 2:
            self.e("s_memtime s[90:91]")
        if OPT.get("clk") and i in (5, 6):
            self.e(f"s_memtime s[{76+2*(i-3)}:{77+2*(i-3)}]")
        self.e("s_waitcnt lgkmcnt(0)")
        self.lds = []

    def stamp_flush(self, n):
        if not OPT["stamp"]:
            return
        e = self.e
        if OPT["dbg"]:
            e(f"s_cmp_lg_u32 s{S_WID}, 0")
            e("s_cbranch_scc1 L_nodbg")
            e("s_mov_b32 s92, 0")
            e(f"s_cmp_eq_u32 s2, {OPT['dbgwg']}")
            e("s_cbranch_scc1 L_dodbg")
            e("s_mov_b32 s92, 32")
            e(f"s_cmp_lg_u32 s2, {OPT['dbgwg']+100}")
            e("s_cbranch_scc1 L_nodbg")
            self.label("L_dodbg")
            e(f"s_add_u32 s92, s{S_DBG}, s92")
            e(f"s_addc_u32 s93, s{S_DBG+1}, 0")
            e("s_mov_b32 s94, 32")
            e("s_mov_b32 s95, 0x00020000")
            e("v_mov_b32 v2, 0")
            for i in range(n):
                if i == 0:
                    e("s_sub_u32 s39, s90, s98")
                else:
                    e(f"s_sub_u32 s39, s{76+2*i}, s76")
                e("v_mov_b32 v4, s39")
                e(f"buffer_store_dword v4, v2, s[92:95], 0 offen offset:{4*i}")
                e("s_nop 1")
            self.label("L_nodbg")
            return
        e("s_lshl_b32 s92, s2, 3")
        e(f"s_add_u32 s92, s92, s{S_WID}")
        e("s_lshl_b32 s92, s92, 7")
        e(f"s_add_u32 s92, s92, {64<<20}")
        e(f"s_add_u32 s92, s{S_WS}, s92")
        e(f"s_addc_u32 s93, s{S_WS+1}, 0")
        e("s_mov_b32 s94, 128")
        e("s_mov_b32 s95, 0x00020000")
        e("v_mov_b32 v2, 0")
        for i in range(n):
            e(f"v_mov_b32 v4, s{76+2*i}")
            e(f"v_mov_b32 v5, s{77+2*i}")
            e(f"buffer_store_dwordx2 v[4:5], v2, s[92:95], 0 offen offset:{8*i}")
            e("s_nop 1")

    def barrier(self):
        self.e("s_barrier")
        self.nbar += 1


def vr(a, n):
    return f"v[{a}:{a+n-1}]"


def sr(a, n):
    return f"s[{a}:{a+n-1}]"


def mfma(d, a, b, c):
    cs = "0" if c is None else vr(c, 16)
    return f"v_mfma_f32_32x32x16_bf16 {vr(d,16)}, {vr(a,4)}, {vr(b,4)}, {cs}"


V_O = 0
V_Q = 128
V_S = 192
V_F = 224
V_AK = 240
V_AKT = 241
V_AV = 242
V_MC, V_L = 246, 247
V_T = 248
V_LANE = 254
V_X = 255

WBASE = 2 * SLOT
RING = [3, 4, 2]
NWS = 6
WREG = NWS * 4096


def lane_fields(e, L, Vh, Vu, Vr, Vcc):
    e(f"v_lshrrev_b32 v{Vh}, 5, v{L}")
    e(f"v_bfe_u32 v{Vu}, v{L}, 4, 1")
    e(f"v_bfe_u32 v{Vr}, v{L}, 2, 2")
    e(f"v_and_b32 v{Vcc}, 3, v{L}")


def gen_main():
    A = Asm()
    e = A.e
    A.label(KMAIN)
    e("s_cmp_ge_u32 s2, 256")
    e("s_cbranch_scc1 L_exit")
    e("s_load_dwordx16 s[8:23], s[0:1], 0")
    e("s_load_dwordx8 s[24:31], s[0:1], 64")
    e("s_load_dwordx2 s[32:33], s[0:1], 96")
    e(f"s_and_b32 s{S_T0}, s2, 7")
    e(f"s_lshl_b32 s{S_T0}, s{S_T0}, 1")
    e(f"s_lshr_b32 s{S_T1}, s2, 3")
    e(f"s_and_b32 s{S_T1}, s{S_T1}, 1")
    e(f"s_add_u32 s{S_T0}, s{S_T0}, s{S_T1}")
    e(f"s_lshr_b32 s{S_B}, s2, 4")
    e(f"s_lshr_b32 s{S_BLK}, s{S_T0}, 3")
    e(f"s_and_b32 s{S_HKV}, s{S_T0}, 7")
    e("v_lshrrev_b32 v1, 6, v0")
    e(f"v_and_b32 v{V_LANE}, 63, v0")
    e("s_nop 0")
    e(f"v_readfirstlane_b32 s{S_WID}, v1")
    e("s_waitcnt lgkmcnt(0)")
    e(f"s_cmp_eq_u32 s{S_BLK}, 0")
    e(f"s_cselect_b64 {sr(S_X,2)}, s[8:9], s[18:19]")
    e(f"s_cselect_b64 {sr(S_K,2)}, s[10:11], s[20:21]")
    e(f"s_cselect_b64 {sr(S_V,2)}, s[12:13], s[22:23]")
    e(f"s_cselect_b64 {sr(S_WQ,2)}, s[14:15], s[24:25]")
    e(f"s_cselect_b64 {sr(S_WO,2)}, s[16:17], s[26:27]")
    A.stamp(0)
    e(f"s_cmp_ge_u32 s{S_WID}, 4")
    e("s_cbranch_scc1 L_producer")

    def bump(sreg, n):
        e(f"s_add_u32 s{sreg}, s{sreg}, 1")
        e(f"s_cmp_ge_u32 s{sreg}, {n}")
        e(f"s_cselect_b32 s{sreg}, 0, s{sreg}")

    L = V_LANE
    e(f"s_lshl_b32 s{S_T0}, s{S_HKV}, 10")
    e(f"s_add_u32 s{SRD0}, s{S_WQ}, s{S_T0}")
    e(f"s_addc_u32 s{SRD0+1}, s{S_WQ+1}, 0")
    e(f"s_sub_u32 s{SRD0+2}, {448*8192}, s{S_T0}")
    e(f"s_mov_b32 s{SRD0+3}, 0x00020000")
    e(f"s_mul_i32 s{S_T0}, s{S_B}, 57344")
    e(f"s_add_u32 s{SRD1}, s{S_X}, s{S_T0}")
    e(f"s_addc_u32 s{SRD1+1}, s{S_X+1}, 0")
    e(f"s_mov_b32 s{SRD1+2}, 57344")
    e(f"s_mov_b32 s{SRD1+3}, 0x00020000")
    e(f"s_lshl_b32 s{S_T0}, s{S_BLK}, 4")
    e(f"s_add_u32 s{S_T0}, s{S_T0}, s{S_B}")
    e(f"s_mul_i32 s{S_T0}, s{S_T0}, {8*57344}")
    e(f"s_add_u32 s{SRD2}, s{S_WS}, s{S_T0}")
    e(f"s_addc_u32 s{SRD2+1}, s{S_WS+1}, 0")
    e(f"s_mov_b32 s{SRD2+2}, {8*57344}")
    e(f"s_mov_b32 s{SRD2+3}, 0x00020000")
    e(f"s_lshr_b32 s{S_HEAD}, s{S_WID}, 1")
    e(f"s_and_b32 s{S_QB}, s{S_WID}, 1")

    Vh, Vu, Vr, Vcc = V_T, V_T + 1, V_T + 2, V_T + 3
    Vt0, Vt1 = V_T + 4, V_T + 5
    lane_fields(e, L, Vh, Vu, Vr, Vcc)

    QR = V_Q
    V_OFFW, V_XB, V_XF7, V_XA = QR, QR + 1, QR + 2, QR + 3
    V_AW = QR + 4
    V_XR = QR + 8
    V_WF = QR + 24
    e(f"s_mul_i32 s{S_T0}, s{S_WID}, 896")
    e(f"s_mov_b32 s{S_T1}, {(1<<32)//56 + 1}")
    e(f"s_mul_i32 s{S_T2}, s{S_WID}, 14336")
    for i in range(14):
        r0 = V_O + 4 * i
        e(f"v_add_u32 v{r0}, {64*i}, v{L}")
        e(f"v_add_u32 v{r0}, s{S_T0}, v{r0}")
        e(f"v_mul_hi_u32 v{r0+1}, v{r0}, s{S_T1}")
        e(f"v_mul_u32_u24 v{r0+2}, 56, v{r0+1}")
        e(f"v_sub_u32 v{r0+2}, v{r0}, v{r0+2}")
        e(f"v_bfe_u32 v{r0+3}, v{r0+1}, 1, 3")
        e(f"v_xor_b32 v{r0+2}, v{r0+2}, v{r0+3}")
        e(f"v_lshlrev_b32 v{r0+2}, 4, v{r0+2}")
        e(f"v_mul_u32_u24 v{r0+1}, 896, v{r0+1}")
        e(f"v_add_u32 v{r0}, v{r0+1}, v{r0+2}")
        e(f"s_add_u32 m0, s{S_T2}, {i*1024}")
        e("s_nop 0")
        A.vm_issue(("xd", 0), f"buffer_load_dwordx4 v{r0}, {sr(SRD1,4)}, 0 offen lds")
    e(f"v_lshrrev_b32 v{Vt0}, 4, v{L}")
    e(f"v_lshlrev_b32 v{Vt1}, 2, v{Vt0}")
    e(f"v_and_b32 v{V_X}, 15, v{L}")
    e(f"v_xor_b32 v{V_X}, v{V_X}, v{Vt1}")
    e(f"v_lshlrev_b32 v{V_X}, 4, v{V_X}")
    e(f"v_lshlrev_b32 v{Vt0}, 13, v{Vt0}")
    e(f"v_add_u32 v{Vt0}, v{Vt0}, v{V_X}")
    e(f"s_lshl_b32 s{S_T0}, s{S_WID}, 8")
    e(f"v_add_u32 v{V_OFFW}, s{S_T0}, v{Vt0}")
    e(f"s_mul_i32 s{S_M0}, s{S_WID}, {WREG}")
    e(f"s_add_u32 s{S_M0}, s{S_M0}, {WBASE}")
    S_WK, S_XK = S_R0, S_R1
    e(f"s_mul_i32 s{S_WK}, s{S_B}, 7")
    e(f"s_lshr_b32 s{S_WK}, s{S_WK}, 2")
    if not OPT["rot"]:
        e(f"s_mov_b32 s{S_WK}, 0")
    e(f"s_mov_b32 s{S_XK}, s{S_WK}")

    def w_issue(j):
        e(f"s_lshl_b32 s{S_SOFF}, s{S_WK}, 17")
        e(f"s_add_u32 m0, s{S_M0}, {(j%NWS)*4096}")
        bump(S_WK, 28)
        for i in range(4):
            A.vm_issue(("w", j), f"buffer_load_dwordx4 v{V_OFFW}, {sr(SRD0,4)}, s{S_SOFF} offen offset:{i*1024} lds")
            if i < 3:
                e(f"s_add_u32 s{S_SOFF}, s{S_SOFF}, {32768-1024}")

    for j in range(NWS - 1):
        w_issue(j)
    e(f"v_and_b32 v{Vt0}, 31, v{L}")
    e(f"v_mul_u32_u24 v{V_XB}, 896, v{Vt0}")
    e(f"v_bfe_u32 v{V_XF7}, v{L}, 1, 3")
    e(f"v_lshlrev_b32 v{Vt0}, 3, v{Vh}")
    e(f"v_add_u32 v{Vt0}, v{Vt0}, v{Vr}")
    e(f"v_lshlrev_b32 v{Vt0}, 8, v{Vt0}")
    e(f"v_lshlrev_b32 v{Vt1}, 5, v{Vu}")
    e(f"v_add_u32 v{Vt0}, v{Vt0}, v{Vt1}")
    e(f"v_and_b32 v{Vt1}, 1, v{Vcc}")
    e(f"v_lshlrev_b32 v{Vt1}, 4, v{Vt1}")
    e(f"v_add_u32 v{Vt0}, v{Vt0}, v{Vt1}")
    e(f"v_lshrrev_b32 v{Vt1}, 1, v{Vcc}")
    e(f"v_lshlrev_b32 v{Vt1}, 3, v{Vt1}")
    e(f"v_add_u32 v{Vt0}, v{Vt0}, v{Vt1}")
    e(f"v_add_u32 v{Vt0}, s{S_M0}, v{Vt0}")
    for t2 in range(4):
        e(f"v_xor_b32 v{Vt1}, {t2}, v{Vr}")
        e(f"v_lshlrev_b32 v{Vt1}, 6, v{Vt1}")
        e(f"v_add_u32 v{V_AW+t2}, v{Vt0}, v{Vt1}")
    e(f"v_and_b32 v{Vt0}, 31, v{L}")
    e(f"v_and_b32 v{Vt1}, 15, v{L}")
    e(f"v_xor_b32 v{Vt1}, v{Vt1}, v{Vh}")
    e(f"v_lshlrev_b32 v{Vt1}, 4, v{Vt1}")
    e(f"v_lshlrev_b32 v{Vt0}, 9, v{Vt0}")
    e(f"v_add_u32 v{V_AK}, v{Vt0}, v{Vt1}")
    e(f"v_lshlrev_b32 v{Vt0}, 2, v{Vh}")
    e(f"v_add_u32 v{Vt0}, v{Vt0}, v{Vr}")
    e(f"v_lshlrev_b32 v{Vt0}, 9, v{Vt0}")
    e(f"v_lshlrev_b32 v{Vt1}, 5, v{Vu}")
    e(f"v_add_u32 v{Vt0}, v{Vt0}, v{Vt1}")
    e(f"v_lshlrev_b32 v{Vt1}, 3, v{Vcc}")
    e(f"v_add_u32 v{Vt0}, v{Vt0}, v{Vt1}")
    e(f"v_add_u32 v{Vt0}, 16384, v{Vt0}")
    for t2 in range(4):
        e(f"v_xor_b32 v{Vt1}, {t2}, v{Vr}")
        e(f"v_lshlrev_b32 v{Vt1}, 6, v{Vt1}")
        e(f"v_add_u32 v{V_AV+t2}, v{Vt0}, v{Vt1}")
    A.vm_wait(("xd", 0))
    A.barrier()
    NJ = 28

    def q_reads(j):
        e(f"s_lshl_b32 s{S_T0}, s{S_XK}, 1")
        bump(S_XK, 28)
        e(f"v_add_u32 v{V_XA}, s{S_T0}, v{Vh}")
        e(f"v_xor_b32 v{V_XA}, v{V_XA}, v{V_XF7}")
        e(f"v_lshlrev_b32 v{V_XA}, 4, v{V_XA}")
        e(f"v_add_u32 v{V_XA}, v{V_XA}, v{V_XB}")
        xr = V_XR + 8 * (j % 2)
        for qb in range(2):
            A.lds_issue(("x", j), f"ds_read_b128 {vr(xr+4*qb,4)}, v{V_XA} offset:{qb*28672}")
        A.vm_wait(("w", j))
        base = (j % NWS) * 4096
        for T in range(4):
            f = V_WF + 16 * (j % 2) + 4 * T
            A.lds_issue(("w", j, T), f"ds_read_b64_tr_b16 {vr(f,2)}, v{V_AW+T} offset:{base}")
            A.lds_issue(("w", j, T), f"ds_read_b64_tr_b16 {vr(f+2,2)}, v{V_AW+T} offset:{base+1024}")

    q_reads(0)
    for j in range(NJ):
        A.c(f"---- Q-proj step {j}")
        xr = V_XR + 8 * (j % 2)
        for T in range(4):
            A.lds_wait(("w", j, T))
            for qb in range(2):
                acc = V_O + 32 * T + 16 * qb
                e(mfma(acc, V_WF + 16 * (j % 2) + 4 * T, xr + 4 * qb, None if j == 0 else acc))
            if T == 3:
                pass
            if T == 1:
                A.lds_wait(("w", j, 3))
                if j + NWS - 1 < NJ:
                    w_issue(j + NWS - 1)
                if j + 1 < NJ:
                    q_reads(j + 1)
        if OPT["stamp"] == 2 and j in (0, 7, 14, 21):
            A.stamp(1 + j // 7)
    assert not A.vm
    A.stamp(5 if OPT["stamp"] == 2 else 1)
    e(f"v_lshlrev_b32 v{Vt0}, 4, v{L}")
    e(f"v_add_u32 v{Vt1}, s{S_M0}, v{Vt0}")
    e(f"s_mul_i32 s{S_T0}, s{S_HEAD}, {2*WREG}")
    e(f"s_lshl_b32 s{S_T1}, s{S_QB}, 13")
    e(f"s_add_u32 s{S_T0}, s{S_T0}, s{S_T1}")
    e(f"s_add_u32 s{S_T0}, s{S_T0}, {WBASE}")
    e(f"v_add_u32 v{V_X}, s{S_T0}, v{Vt0}")
    e("s_nop 15")
    for qb in range(2):
        for T in range(4):
            for u in range(2):
                f = 2 * T + u
                q = V_Q + 4 * (8 * qb + f)
                for r in range(4):
                    a_ = V_O + 32 * T + 16 * qb + 8 * u + 2 * r
                    e(f"v_cvt_pk_bf16_f32 v{q + r}, v{a_}, v{a_+1}")
                e(f"ds_write_b128 v{Vt1}, {vr(q,4)} offset:{qb*8192 + f*1024}")
    e("s_waitcnt lgkmcnt(0)")
    A.barrier()
    for ks in range(16):
        e(f"ds_read_b128 {vr(V_Q+4*ks,4)}, v{V_X} offset:{(ks>>3)*WREG + (ks&7)*1024}")
    for i in range(128):
        e(f"v_mov_b32 v{V_O+i}, 0")
    e(f"v_mov_b32 v{V_MC}, 0xff800000")
    e(f"v_mov_b32 v{V_L}, 0")
    cbits = struct.unpack("<I", struct.pack("<f", math.log2(math.e) / 16.0))[0]
    e(f"s_mov_b32 s{S_C}, 0x{cbits:08x}")
    e(f"s_mov_b32 s{S_CNT}, 0")
    e("s_mov_b32 s56, 0")
    e(f"s_mov_b32 s74, {SLOT}")
    e(f"s_mov_b32 s75, {(-4*SLOT) & 0xffffffff}")
    e("s_mov_b32 s38, 1")
    e(f"v_add_u32 v{V_AK}, {SLOT}, v{V_AK}")
    for t2 in range(4):
        e(f"v_add_u32 v{V_AV+t2}, {SLOT}, v{V_AV+t2}")
    e("s_waitcnt lgkmcnt(0)")
    A.barrier()

    t0, t1, t2_, t3, t4, t5 = (V_T + i for i in range(6))
    pv = [(dt, kk) for dt in range(8) for kk in range(2)]
    nresc = [0]

    def interval():
        S = V_S
        P = V_S + 16
        A.barrier()

        def rdK(ks):
            f = V_F + 4 * (ks % 4)
            k7 = ks & 7
            if k7:
                e(f"v_xor_b32 v{V_AKT}, {k7<<5}, v{V_AK}")
                ar = V_AKT
            else:
                ar = V_AK
            A.lds_issue(("k", ks), f"ds_read_b128 {vr(f,4)}, v{ar} offset:{(ks>>3)*256}")

        def rdV(i):
            dt, kk = pv[i]
            f = V_F + 4 * (i % 4)
            base = kk * 8192 + (dt >> 2) * 256
            A.lds_issue(("v", i), f"ds_read_b64_tr_b16 {vr(f,2)}, v{V_AV+(dt&3)} offset:{base}")
            A.lds_issue(("v", i), f"ds_read_b64_tr_b16 {vr(f+2,2)}, v{V_AV+(dt&3)} offset:{base+4096}")

        for ks in range(4):
            rdK(ks)
        for ks in range(16):
            A.lds_wait(("k", ks))
            e(mfma(S, V_F + 4 * (ks % 4), V_Q + 4 * ks, None if ks == 0 else S))
            if ks + 4 < 16:
                rdK(ks + 4)
            else:
                rdV(ks - 12)
        e("s_add_u32 s38, s38, 1")
        e("s_cmp_eq_u32 s38, 5")
        e("s_cselect_b32 s39, s75, s74")
        e("s_cselect_b32 s38, 0, s38")
        e(f"v_add_u32 v{V_AK}, s39, v{V_AK}")
        e("s_nop 8")
        for ins in [f"v_max3_f32 v{t0}, v{S}, v{S+1}, v{S+2}",
                    f"v_max3_f32 v{t1}, v{S+3}, v{S+4}, v{S+5}",
                    f"v_max3_f32 v{t2_}, v{S+6}, v{S+7}, v{S+8}",
                    f"v_max3_f32 v{t3}, v{S+9}, v{S+10}, v{S+11}",
                    f"v_max3_f32 v{t4}, v{S+12}, v{S+13}, v{S+14}",
                    f"v_max3_f32 v{t0}, v{t0}, v{t1}, v{S+15}",
                    f"v_max3_f32 v{t2_}, v{t2_}, v{t3}, v{t4}",
                    f"v_max_f32 v{t0}, v{t0}, v{t2_}",
                    f"v_mov_b32 v{t1}, v{t0}",
                    "s_nop 1",
                    f"v_permlane32_swap_b32 v{t0}, v{t1}",
                    "s_nop 1",
                    f"v_max_f32 v{t0}, v{t0}, v{t1}",
                    f"v_mul_f32 v{t5}, s{S_C}, v{t0}",
                    f"v_sub_f32 v{t1}, v{t5}, v{V_MC}",
                    f"v_cmp_lt_f32 vcc, 0x41000000, v{t1}",
                    "s_nop 1"]:
            e(ins)
        nresc[0] += 1
        e(f"s_cbranch_vccnz L_rescale{nresc[0]}")
        A.label(f"L_rescale_done{nresc[0]}")
        for i in range(16):
            e(f"v_fma_f32 v{S+i}, v{S+i}, s{S_C}, -v{V_MC}")
        for i in range(16):
            e(f"v_exp_f32 v{S+i}, v{S+i}")
        e("s_nop 0")
        for i in range(8):
            e(f"v_cvt_pk_bf16_f32 v{P+i}, v{S+2*i}, v{S+2*i+1}")
        sums = [f"v_add_f32 v{t0}, v{S}, v{S+1}", f"v_add_f32 v{t1}, v{S+2}, v{S+3}"]
        for i in range(4, 16, 2):
            sums.append(f"v_add_f32 v{t0}, v{t0}, v{S+i}")
            sums.append(f"v_add_f32 v{t1}, v{t1}, v{S+i+1}")
        sums.append(f"v_add_f32 v{t0}, v{t0}, v{t1}")
        sums.append(f"v_add_f32 v{V_L}, v{V_L}, v{t0}")
        if not OPT["ilvm"]:
            while sums:
                e(sums.pop(0))
        else:
            e("s_nop 1")
        for i in range(16):
            dt, kk = pv[i]
            A.lds_wait(("v", i))
            e(mfma(V_O + 16 * dt, V_F + 4 * (i % 4), P + 4 * kk, V_O + 16 * dt))
            if i + 4 < 16:
                rdV(i + 4)
            if sums:
                e(sums.pop(0))
        assert not A.lds and not sums
        for t2 in range(4):
            e(f"v_add_u32 v{V_AV+t2}, s39, v{V_AV+t2}")

    nb0 = A.nbar
    A.label("L_loop")
    interval()
    e(f"s_add_u32 s{S_CNT}, s{S_CNT}, 1")
    e(f"s_cmp_lt_u32 s{S_CNT}, 32")
    e("s_cbranch_scc1 L_loop")
    A.nbar = nb0 + 32

    A.stamp(6 if OPT["stamp"] == 2 else 2)
    e(f"v_mov_b32 v{t1}, v{V_L}")
    e("s_nop 1")
    e(f"v_permlane32_swap_b32 v{V_L}, v{t1}")
    e("s_nop 1")
    e(f"v_add_f32 v{t0}, v{V_L}, v{t1}")
    e(f"v_rcp_f32 v{t5}, v{t0}")
    e(f"s_lshl_b32 s{S_T1}, s{S_QB}, 14")
    e(f"s_add_u32 s{S_T0}, s{S_T1}, 32768")
    e(f"s_cmp_eq_u32 s{S_HEAD}, 0")
    e(f"s_cselect_b32 s{S_T2}, s{S_T1}, s{S_T0}")
    V_AB, V_ABC, V_AOWN, V_AWO = V_AK, V_AK + 1, V_AK + 2, V_AK + 4
    e(f"v_lshlrev_b32 v{t1}, 4, v{L}")
    e(f"v_add_u32 v{V_AB}, s{S_T1}, v{t1}")
    e(f"v_add_u32 v{V_AOWN}, s{S_T2}, v{t1}")
    e("s_nop 7")
    for fr in range(16):
        dt, u = fr >> 1, fr & 1
        q = V_Q + 4 * fr
        for r in range(4):
            a = V_O + 16 * dt + 8 * u + 2 * r
            e(f"v_mul_f32 v{a}, v{a}, v{t5}")
            e(f"v_mul_f32 v{a+1}, v{a+1}, v{t5}")
            e(f"v_cvt_pk_bf16_f32 v{q+r}, v{a}, v{a+1}")
        e(f"ds_write_b128 v{V_AOWN}, {vr(q,4)} offset:{fr*1024}")
    lane_fields(e, L, Vh, Vu, Vr, Vcc)
    e(f"v_lshlrev_b32 v{Vt0}, 2, v{Vh}")
    e(f"v_add_u32 v{Vt0}, v{Vt0}, v{Vr}")
    e(f"v_mul_u32_u24 v{Vt0}, 896, v{Vt0}")
    e(f"v_lshlrev_b32 v{Vt1}, 5, v{Vu}")
    e(f"v_add_u32 v{Vt0}, v{Vt0}, v{Vt1}")
    e(f"v_lshlrev_b32 v{Vt1}, 3, v{Vcc}")
    e(f"v_add_u32 v{Vt0}, v{Vt0}, v{Vt1}")
    e(f"s_mul_i32 s{S_T0}, s{S_HEAD}, 448")
    e(f"s_add_u32 s{S_T0}, s{S_T0}, {3*SLOT}")
    e(f"v_add_u32 v{Vt0}, s{S_T0}, v{Vt0}")
    e(f"v_lshrrev_b32 v{Vt1}, 1, v{Vr}")
    e(f"v_lshlrev_b32 v{Vt1}, 6, v{Vt1}")
    e(f"v_add_u32 v{V_S}, v{Vt0}, v{Vt1}")
    e(f"v_sub_u32 v{V_S+1}, v{Vt0}, v{Vt1}")
    e(f"s_cmp_eq_u32 s{S_HEAD}, 0")
    e("s_cselect_b64 vcc, -1, 0")
    e("s_nop 1")
    e(f"v_cndmask_b32 v{V_AWO}, v{V_S+1}, v{V_S}, vcc")
    e(f"v_cndmask_b32 v{V_AWO+1}, v{V_S}, v{V_S+1}, vcc")
    e("s_waitcnt lgkmcnt(0)")
    if OPT["stamp"] == 1:
        A.stamp(3)

    V_ACC = 0
    V_BF = V_S + 8
    V_AF = V_Q
    NAF = 7
    S_OK = S_R0
    e(f"s_mov_b32 s{S_OK}, " + (f"s{S_B}" if OPT["rot"] else "0"))
    for k in range(16):
        A.c(f"---- O-proj stage {k}")
        e(f"s_lshr_b32 s{S_T0}, s{S_OK}, 3")
        e(f"s_lshl_b32 s{S_T0}, s{S_T0}, 15")
        e(f"s_and_b32 s{S_T1}, s{S_OK}, 7")
        e(f"s_lshl_b32 s{S_T1}, s{S_T1}, 11")
        e(f"s_add_u32 s{S_T0}, s{S_T0}, s{S_T1}")
        e(f"v_add_u32 v{V_ABC}, s{S_T0}, v{V_AB}")
        e(f"s_add_u32 s{S_OK}, s{S_OK}, 1")
        e(f"s_and_b32 s{S_OK}, s{S_OK}, 15")
        A.barrier()
        A.lds_issue(("b", 0), f"ds_read_b128 {vr(V_BF,4)}, v{V_ABC}")
        seq = [(ksl, nt) for ksl in range(2) for nt in range(7)]
        sl = 0

        def rdA(i):
            ksl, nt = seq[i]
            f = V_AF + 4 * (i % 8)
            base = ksl * 16 * 896 + nt * 64 + sl
            A.lds_issue(("a", i), f"ds_read_b64_tr_b16 {vr(f,2)}, v{V_AWO+(nt&1)} offset:{base}")
            A.lds_issue(("a", i), f"ds_read_b64_tr_b16 {vr(f+2,2)}, v{V_AWO+(nt&1)} offset:{base+8*896}")
        for i in range(NAF):
            rdA(i)
        for i in range(14):
            ksl, nt = seq[i]
            A.lds_wait(("a", i))
            if i == 7:
                A.lds_wait(("b", 1))
            e(mfma(V_ACC + 16 * nt, V_AF + 4 * (i % 8), V_BF + 4 * ksl, None if (k == 0 and ksl == 0) else V_ACC + 16 * nt))
            if i == 0:
                A.lds_issue(("b", 1), f"ds_read_b128 {vr(V_BF+4,4)}, v{V_ABC} offset:1024")
            if i + NAF < 14:
                rdA(i + NAF)
        assert not A.lds
        if k < 15:
            d_ = (RING[(k + 1) % 3] - RING[k % 3]) * SLOT
            e(f"v_add_u32 v{V_AWO}, {d_ & 0xffffffff}, v{V_AWO}")
            e(f"v_add_u32 v{V_AWO+1}, {d_ & 0xffffffff}, v{V_AWO+1}")
    if OPT["stamp"] == 1:
        A.stamp(4)
    A.c("---- store bf16 partials (write-through)")
    e(f"v_lshlrev_b32 v{t0}, 4, v{L}")
    e(f"s_mul_i32 s{S_SOFF}, s{S_HKV}, 57344")
    e(f"s_mul_i32 s{S_T0}, s{S_WID}, 14336")
    e(f"s_add_u32 s{S_SOFF}, s{S_SOFF}, s{S_T0}")
    e("s_nop 15")
    for nt in range(7):
        pk = V_Q + 8 * nt
        for d in range(8):
            e(f"v_cvt_pk_bf16_f32 v{pk+d}, v{V_ACC+16*nt+2*d}, v{V_ACC+16*nt+2*d+1}")
        for hf in range(2):
            e(f"buffer_store_dwordx4 {vr(pk+4*hf,4)}, v{t0}, {sr(SRD2,4)}, s{S_SOFF} offen offset:{(nt&1)*2048 + hf*1024} sc0 sc1")
        if nt & 1:
            e(f"s_add_u32 s{S_SOFF}, s{S_SOFF}, 4096")
    e("s_waitcnt vmcnt(0)")
    A.stamp(7 if OPT["stamp"] == 2 else 5)
    e("s_branch L_reduce")
    nbar_cons = A.nbar

    for n in range(1, nresc[0] + 1):
        A.label(f"L_rescale{n}")
        if OPT["stamp"]:
            e("s_add_u32 s56, s56, 1000")
        e("s_nop 15")
        e(f"v_max_f32 v{t0}, v{t5}, v{V_MC}")
        e(f"v_sub_f32 v{t1}, v{V_MC}, v{t0}")
        e(f"v_exp_f32 v{t1}, v{t1}")
        e(f"v_mov_b32 v{V_MC}, v{t0}")
        e("s_nop 0")
        e(f"v_mul_f32 v{V_L}, v{V_L}, v{t1}")
        for i in range(128):
            e(f"v_mul_f32 v{V_O+i}, v{V_O+i}, v{t1}")
        e(f"s_branch L_rescale_done{n}")

    A.label("L_producer")
    if OPT["pprio"]:
        e(f"s_setprio {OPT['pprio']}")
    A.nbar = 0
    A.vm = []
    A.lds = []
    S_P = 58
    e(f"s_sub_u32 s{S_P}, s{S_WID}, 4")
    e(f"s_lshl_b32 s{S_T0}, s{S_B}, 22")
    e(f"s_lshl_b32 s{S_T1}, s{S_HKV}, 19")
    e(f"s_add_u32 s{S_T0}, s{S_T0}, s{S_T1}")
    e(f"s_add_u32 s{SRD0}, s{S_K}, s{S_T0}")
    e(f"s_addc_u32 s{SRD0+1}, s{S_K+1}, 0")
    e(f"s_mov_b32 s{SRD0+2}, 524288")
    e(f"s_mov_b32 s{SRD0+3}, 0x00020000")
    e(f"s_add_u32 s{SRD1}, s{S_V}, s{S_T0}")
    e(f"s_addc_u32 s{SRD1+1}, s{S_V+1}, 0")
    e(f"s_mov_b32 s{SRD1+2}, 524288")
    e(f"s_mov_b32 s{SRD1+3}, 0x00020000")
    e(f"s_mul_i32 s{S_T0}, s{S_HKV}, 458752")
    e(f"s_add_u32 s{SRD2}, s{S_WO}, s{S_T0}")
    e(f"s_addc_u32 s{SRD2+1}, s{S_WO+1}, 0")
    e(f"s_mov_b32 s{SRD2+2}, 458752")
    e(f"s_mov_b32 s{SRD2+3}, 0x00020000")
    PK, PV_, PW, PAK, PAW = 10, 14, 16, 23, 24
    a, b2, c2, d2 = 2, 3, 4, 5
    e(f"v_lshrrev_b32 v{a}, 5, v{L}")
    e(f"v_and_b32 v{b2}, 31, v{L}")
    e(f"s_lshl_b32 s{S_T0}, s{S_P}, 3")
    e(f"v_add_u32 v{c2}, s{S_T0}, v{a}")
    e(f"v_lshlrev_b32 v{d2}, 9, v{c2}")
    for j in range(4):
        e(f"v_add_u32 v6, {2*j}, v{c2}")
        e("v_and_b32 v6, 15, v6")
        e(f"v_xor_b32 v6, v6, v{b2}")
        e("v_lshlrev_b32 v6, 4, v6")
        e(f"v_add_u32 v{PK+j}, v{d2}, v6")
    for jp in range(2):
        e(f"v_add_u32 v6, {2*jp}, v{a}")
        e("v_lshlrev_b32 v6, 2, v6")
        e(f"v_xor_b32 v6, v6, v{b2}")
        e("v_lshlrev_b32 v6, 4, v6")
        e(f"v_add_u32 v{PV_+jp}, v{d2}, v6")
    e(f"s_mul_i32 s{S_T0}, s{S_P}, 448")
    e(f"s_mov_b32 s{S_T1}, {(1<<32)//56 + 1}")
    for j in range(7):
        e(f"v_add_u32 v6, {64*j}, v{L}")
        e(f"v_add_u32 v6, s{S_T0}, v6")
        e(f"v_mul_hi_u32 v7, v6, s{S_T1}")
        e("v_mul_u32_u24 v8, 56, v7")
        e("v_sub_u32 v8, v6, v8")
        e("v_bfe_u32 v9, v7, 1, 1")
        e("v_lshlrev_b32 v9, 2, v9")
        e("v_xor_b32 v8, v8, v9")
        e("v_lshlrev_b32 v8, 4, v8")
        e("v_mul_u32_u24 v7, 896, v7")
        e(f"v_add_u32 v{PW+j}, v7, v8")
    e(f"s_lshl_b32 s{S_M0}, s{S_P}, 12")
    e(f"s_mul_i32 s{S_T3}, s{S_P}, 7168")
    e(f"s_mov_b32 s{S_R0}, " + (f"s{S_B}" if OPT["rot"] else "0"))

    def iv_issue(i):
        if i <= 31:
            sl = ((i + 1) % 5) * SLOT
            if OPT["krot"]:
                e(f"s_lshl_b32 s{S_SOFF}, s{S_R1}, 14")
                e(f"s_add_u32 s{S_R1}, s{S_R1}, 1")
                e(f"s_and_b32 s{S_R1}, s{S_R1}, 31")
            else:
                e(f"s_mov_b32 s{S_SOFF}, {i*16384}")
            e(f"s_add_u32 m0, s{S_M0}, {sl}")
            e("s_nop 0")
            for j in range(4):
                A.vm_issue(("iv", i), f"buffer_load_dwordx4 v{PK+j}, {sr(SRD0,4)}, s{S_SOFF} offen offset:{j*1024}{NT} lds")
            e(f"s_add_u32 m0, s{S_M0}, {sl+16384}")
            e("s_nop 0")
            for j in range(4):
                A.vm_issue(("iv", i), f"buffer_load_dwordx4 v{PV_+(j&1)}, {sr(SRD1,4)}, s{S_SOFF} offen offset:{j*1024}{NT} lds")
        else:
            k = i - 32
            sl = RING[k % 3] * SLOT
            e(f"s_mul_i32 s{S_SOFF}, s{S_R0}, 28672")
            e(f"s_add_u32 s{S_R0}, s{S_R0}, 1")
            e(f"s_and_b32 s{S_R0}, s{S_R0}, 15")
            for j in range(7):
                e(f"s_add_u32 m0, s{S_T3}, {sl + j*1024}")
                e("s_nop 0")
                A.vm_issue(("iv", i), f"buffer_load_dwordx4 v{PW+j}, {sr(SRD2,4)}, s{S_SOFF} offen lds")

    if OPT["krot"] == 1:
        e(f"s_mul_i32 s{S_R1}, s2, 5")
        e(f"s_and_b32 s{S_R1}, s{S_R1}, 31")
    elif OPT["krot"] == 2:
        e(f"s_lshr_b32 s{S_R1}, s2, 3")
    elif OPT["krot"] == 3:
        e(f"s_and_b32 s{S_R1}, s2, 31")
    A.barrier()
    A.stamp(1)
    A.barrier()
    iv_issue(0)
    A.barrier()
    for i in (1, 2, 3, 4):
        iv_issue(i)
    A.stamp(2)
    for i in range(48):
        A.vm_wait(("iv", i))
        A.barrier()
        if i == 32:
            A.stamp(3)
        if 1 <= i and i + 4 <= 31:
            iv_issue(i + 4)
        elif i == 28:
            iv_issue(32)
        elif i == 29:
            iv_issue(33)
        elif i >= 32 and i + 2 < 48:
            iv_issue(i + 2)
    assert not A.vm
    assert A.nbar == nbar_cons, (A.nbar, nbar_cons)
    e(f"s_lshl_b32 s{S_T0}, s{S_BLK}, 4")
    e(f"s_add_u32 s{S_T0}, s{S_T0}, s{S_B}")
    e(f"s_mul_i32 s{S_T0}, s{S_T0}, {8*57344}")
    e(f"s_add_u32 s{SRD2}, s{S_WS}, s{S_T0}")
    e(f"s_addc_u32 s{SRD2+1}, s{S_WS+1}, 0")
    e(f"s_mov_b32 s{SRD2+2}, {8*57344}")
    e(f"s_mov_b32 s{SRD2+3}, 0x00020000")
    A.label("L_reduce")
    e(f"s_mov_b32 s{SRD0}, s{S_DBG}")
    e(f"s_mov_b32 s{SRD0+1}, s{S_DBG+1}")
    e(f"s_mov_b32 s{SRD0+2}, 256")
    e(f"s_mov_b32 s{SRD0+3}, 0x00020000")
    e(f"s_mov_b32 s{SRD1}, s{S_OUT}")
    e(f"s_mov_b32 s{SRD1+1}, s{S_OUT+1}")
    e(f"s_mov_b32 s{SRD1+2}, 1835008")
    e(f"s_mov_b32 s{SRD1+3}, 0x00020000")
    e(f"s_lshl_b32 s{S_T0}, s{S_BLK}, 4")
    e(f"s_add_u32 s{S_T0}, s{S_T0}, s{S_B}")
    e(f"s_lshl_b32 s{S_T0}, s{S_T0}, 2")
    e(f"s_add_u32 s{S_T0}, s{S_T0}, 128")
    e("s_barrier")
    e(f"s_cmp_lg_u32 s{S_WID}, 0")
    e("s_cbranch_scc1 L_wait_done")
    e("v_mov_b32 v2, 0")
    e("v_mov_b32 v3, 1")
    e("s_mov_b64 exec, 1")
    e(f"buffer_atomic_add v3, v2, {sr(SRD0,4)}, s{S_T0} offen sc1")
    e("s_waitcnt vmcnt(0)")
    A.label("L_poll")
    e(f"buffer_load_dword v4, v2, {sr(SRD0,4)}, s{S_T0} offen sc0 sc1")
    e("s_waitcnt vmcnt(0)")
    e("v_readfirstlane_b32 s39, v4")
    e("s_cmp_ge_u32 s39, 8")
    e("s_cbranch_scc1 L_poll_done")
    e("s_sleep 2")
    e("s_branch L_poll")
    A.label("L_poll_done")
    e("s_mov_b64 exec, -1")
    A.label("L_wait_done")
    e("s_barrier")
    e(f"s_cmp_ge_u32 s{S_WID}, 7")
    e("s_cbranch_scc1 L_fin")
    e(f"s_mul_i32 s{S_T0}, s{S_HKV}, 7")
    e(f"s_add_u32 s{S_T0}, s{S_T0}, s{S_WID}")
    e(f"v_lshlrev_b32 v2, 4, v{L}")
    e(f"s_lshl_b32 s{S_SOFF}, s{S_T0}, 10")
    for h8 in range(8):
        e(f"buffer_load_dwordx4 {vr(8+4*h8,4)}, v2, {sr(SRD2,4)}, s{S_SOFF} offen sc0 sc1")
        if h8 < 7:
            e(f"s_add_u32 s{S_SOFF}, s{S_SOFF}, 57344")
    e(f"s_mov_b32 s{S_T1}, {(1<<32)//14 + 1}")
    e(f"s_mul_hi_u32 s{S_T1}, s{S_T0}, s{S_T1}")
    e(f"s_mul_i32 s{S_T2}, s{S_T1}, 14")
    e(f"s_sub_u32 s{S_T2}, s{S_T0}, s{S_T2}")
    e(f"s_lshl_b32 s{S_T3}, s{S_B}, 6")
    e(f"s_and_b32 s38, s{S_T1}, 1")
    e("s_lshl_b32 s38, s38, 5")
    e(f"s_add_u32 s{S_T3}, s{S_T3}, s38")
    e(f"s_mul_i32 s{S_T3}, s{S_T3}, 896")
    e(f"s_mul_i32 s38, s{S_BLK}, 448")
    e(f"s_add_u32 s{S_T3}, s{S_T3}, s38")
    e(f"s_lshr_b32 s38, s{S_T1}, 1")
    e("s_mul_i32 s38, s38, 224")
    e(f"s_add_u32 s{S_T3}, s{S_T3}, s38")
    e(f"s_lshl_b32 s38, s{S_T2}, 4")
    e(f"s_add_u32 s{S_T3}, s{S_T3}, s38")
    e(f"s_lshl_b32 s{S_T3}, s{S_T3}, 1")
    e(f"v_and_b32 v3, 31, v{L}")
    e("v_mul_u32_u24 v3, 1792, v3")
    e(f"v_lshrrev_b32 v4, 5, v{L}")
    e("v_lshlrev_b32 v4, 3, v4")
    e("v_add_u32 v3, v3, v4")
    for h8 in range(8):
        e(f"s_waitcnt vmcnt({7-h8})")
        for d in range(4):
            src = 8 + 4 * h8 + d
            if h8 == 0:
                e(f"v_lshlrev_b32 v{48+2*d}, 16, v{src}")
                e(f"v_and_b32 v{49+2*d}, 0xffff0000, v{src}")
            else:
                e(f"v_lshlrev_b32 v5, 16, v{src}")
                e(f"v_and_b32 v6, 0xffff0000, v{src}")
                e(f"v_add_f32 v{48+2*d}, v{48+2*d}, v5")
                e(f"v_add_f32 v{49+2*d}, v{49+2*d}, v6")
    for d in range(4):
        e(f"v_cvt_pk_bf16_f32 v{56+d}, v{48+2*d}, v{49+2*d}")
    e(f"buffer_store_dwordx2 v[56:57], v3, {sr(SRD1,4)}, s{S_T3} offen")
    e(f"buffer_store_dwordx2 v[58:59], v3, {sr(SRD1,4)}, s{S_T3} offen offset:16")
    A.label("L_fin")
    if OPT["stamp"]:
        e("s_waitcnt vmcnt(0)")
        A.stamp(4 if OPT["stamp"] == 2 else 6)
        A.stamp_flush(8)
    A.label("L_exit")
    e("s_endpgm")
    return A.lines


def gen_reduce():
    A = Asm()
    e = A.e
    A.label(KRED)
    e("s_cmp_ge_u32 s2, 896")
    e("s_cbranch_scc1 R_exit")
    e("s_load_dwordx2 s[4:5], s[0:1], 80")
    e("s_load_dwordx2 s[6:7], s[0:1], 96")
    e(f"s_mov_b32 s16, {(1<<32)//28 + 1}")
    e("s_mul_hi_u32 s17, s2, s16")
    e("s_mul_i32 s18, s17, 28")
    e("s_sub_u32 s18, s2, s18")
    e(f"s_mov_b32 s16, {(1<<32)//7 + 1}")
    e("s_mul_hi_u32 s19, s18, s16")
    e("s_mul_i32 s20, s19, 7")
    e("s_sub_u32 s20, s18, s20")
    e("s_waitcnt lgkmcnt(0)")
    e("s_mul_i32 s21, s17, 917504")
    e("s_lshl_b32 s22, s18, 12")
    e("s_add_u32 s21, s21, s22")
    e("s_add_u32 s8, s6, s21")
    e("s_addc_u32 s9, s7, 0")
    e(f"s_mov_b32 s10, {7*114688+4096}")
    e("s_mov_b32 s11, 0x00020000")
    e("s_mov_b32 s12, s4")
    e("s_mov_b32 s13, s5")
    e("s_mov_b32 s14, 1835008")
    e("s_mov_b32 s15, 0x00020000")
    e("v_lshlrev_b32 v1, 4, v0")
    for h in range(8):
        e(f"s_mov_b32 s23, {h*114688}")
        e(f"buffer_load_dwordx4 {vr(8+4*h,4)}, v1, s[8:11], s23 offen")
    e("s_and_b32 s24, s17, 15")
    e("s_lshr_b32 s25, s17, 4")
    e("s_lshl_b32 s24, s24, 6")
    e("s_and_b32 s26, s19, 1")
    e("s_lshl_b32 s26, s26, 5")
    e("s_add_u32 s24, s24, s26")
    e("s_mul_i32 s24, s24, 896")
    e("s_mul_i32 s25, s25, 448")
    e("s_add_u32 s24, s24, s25")
    e("s_lshr_b32 s26, s19, 1")
    e("s_mul_i32 s26, s26, 224")
    e("s_add_u32 s24, s24, s26")
    e("s_lshl_b32 s26, s20, 5")
    e("s_add_u32 s24, s24, s26")
    e("s_lshl_b32 s24, s24, 1")
    e("v_and_b32 v2, 31, v0")
    e("v_mul_u32_u24 v2, 1792, v2")
    e("v_lshrrev_b32 v3, 6, v0")
    e("v_lshlrev_b32 v3, 4, v3")
    e("v_add_u32 v2, v2, v3")
    e("v_bfe_u32 v3, v0, 5, 1")
    e("v_lshlrev_b32 v3, 3, v3")
    e("v_add_u32 v2, v2, v3")
    for h in range(1, 8):
        e(f"s_waitcnt vmcnt({7-h})")
        for i in range(4):
            e(f"v_add_f32 v{8+i}, v{8+i}, v{8+4*h+i}")
    e("v_cvt_pk_bf16_f32 v4, v8, v9")
    e("v_cvt_pk_bf16_f32 v5, v10, v11")
    e("buffer_store_dwordx2 v[4:5], v2, s[12:15], s24 offen")
    if OPT["dbg"]:
        e("s_cmp_lg_u32 s2, 0")
        e("s_cbranch_scc1 R_exit")
        e("s_load_dwordx2 s[4:5], s[0:1], 88")
        e(f"s_add_u32 s8, s6, {(64<<20) + OPT['dbgwg']*1024}")
        e("s_addc_u32 s9, s7, 0")
        e("s_mov_b32 s10, 1024")
        e("s_waitcnt lgkmcnt(0)")
        e("s_mov_b32 s12, s4")
        e("s_mov_b32 s13, s5")
        e("s_mov_b32 s14, 64")
        e("v_lshrrev_b32 v1, 3, v0")
        e("v_lshlrev_b32 v1, 9, v1")
        e("v_and_b32 v2, 7, v0")
        e("v_lshlrev_b32 v2, 3, v2")
        e("v_add_u32 v2, v1, v2")
        e("buffer_load_dword v3, v2, s[8:11], 0 offen")
        e("v_mov_b32 v1, 0")
        e("buffer_load_dword v4, v1, s[8:11], 0 offen")
        e("s_waitcnt vmcnt(0)")
        e("v_sub_u32 v3, v3, v4")
        e("v_lshlrev_b32 v1, 2, v0")
        e("buffer_store_dword v3, v1, s[12:15], 0 offen")
    A.label("R_exit")
    e("s_endpgm")
    return A.lines


def kd(name, vgpr, sgpr):
    acc = (vgpr + 3) // 4 * 4
    return f""".amdhsa_kernel {name}
  .amdhsa_next_free_vgpr {vgpr}
  .amdhsa_next_free_sgpr {sgpr}
  .amdhsa_accum_offset {acc}
  .amdhsa_group_segment_fixed_size 0
  .amdhsa_kernarg_size 104
  .amdhsa_user_sgpr_count 2
  .amdhsa_user_sgpr_kernarg_segment_ptr 1
  .amdhsa_system_sgpr_workgroup_id_x 1
.end_amdhsa_kernel
"""


def main():
    out = []
    if OPT["lst"]:
        out.append(f"; @launch kernel={KMAIN} grid=(256,1,1) block=(512,1,1) lds=163840")
    else:
        out.append(f"; @launch grid=(256,1,1) block=(512,1,1) lds=163840")
    out.append('.amdgcn_target "amdgcn-amd-amdhsa--gfx950"')
    out.append(".text")
    for name, lines in ((KMAIN, gen_main()),):
        out.append(f".globl {name}")
        out.append(".p2align 8")
        out.append(f".type {name},@function")
        out += lines
    out.append('.section .rodata,"a"')
    out.append(".p2align 6")
    out.append(kd(KMAIN, 256, 102))

    open(sys.argv[1], "w").write("\n".join(out) + "\n")


main()
```

```python
import sys, math, struct

NAME = "concat_heads__gqa_block_cached__gqa_block_cached__near_ridge"
KMAIN = NAME + "_kernel"
KRED = "reduce_partials_kernel"

OPT = dict(pbf=1, wont=0, psc=0, xnt=1, wnt=1, qpipe=1, kpf=4, nws=4, early=24, xprod=0, krot=0, ilv=1, ilvm=1, clk=0, pprio=0, kd=4, kdm=0, pre=1, rot=1, nt=1, stamp=0, dbg=0, dbgwg=0, nocompute=0, kvlate=0)
for a in sys.argv[2:]:
    k, v = a.split("=")
    OPT[k] = int(v)

SLOT = 32768
SLAB = 57344 if OPT['pbf'] else 114688
PSC = {0: '', 1: ' nt', 2: ' sc1', 3: ' sc0 sc1'}[OPT['psc']]
NT = " nt" if OPT["nt"] else ""

S_BLK, S_HKV, S_B, S_WID = 34, 35, 36, 37
SRD0, SRD1, SRD2 = 40, 44, 48
S_SOFF, S_M0, S_CNT, S_C, S_FLAG = 52, 53, 54, 57, 55
S_HEAD, S_QB = 58, 59
S_T0, S_T1, S_T2, S_T3 = 60, 61, 62, 63
S_X, S_K, S_V, S_WQ, S_WO = 64, 66, 68, 70, 72
S_OUT, S_DBG, S_WS = 28, 30, 32
S_R0, S_R1 = 96, 97


class Asm:
    def __init__(self):
        self.lines = []
        self.lds = []
        self.vm = []
        self.nbar = 0

    def e(self, s):
        if OPT["nocompute"] and (s.startswith("ds_read") or s.startswith("v_mfma") or s.startswith("v_exp")):
            return
        self.lines.append("    " + s)

    def label(self, s):
        self.lines.append(s + ":")

    def c(self, s):
        self.lines.append("    ; " + s)

    def lds_issue(self, tag, s):
        self.e(s)
        self.lds.append(tag)

    def lds_wait(self, tag):
        if tag not in self.lds:
            return
        idx = max(i for i, t in enumerate(self.lds) if t == tag)
        n = len(self.lds) - 1 - idx
        assert n <= 15, n
        self.e(f"s_waitcnt lgkmcnt({n})")
        self.lds = self.lds[idx + 1:]

    def lds_wait_all(self):
        self.e("s_waitcnt lgkmcnt(0)")
        self.lds = []

    def vm_issue(self, tag, s):
        self.e(s)
        self.vm.append(tag)

    def vm_wait(self, tag):
        if tag not in self.vm:
            return
        idx = max(i for i, t in enumerate(self.vm) if t == tag)
        n = len(self.vm) - 1 - idx
        assert n <= 63
        self.e(f"s_waitcnt vmcnt({n})")
        self.vm = self.vm[idx + 1:]

    def stamp(self, i):
        if not OPT["stamp"]:
            return
        self.e(f"s_memrealtime s[{76+2*i}:{77+2*i}]")
        if OPT.get("clk") and i in (5, 6):
            self.e(f"s_memtime s[{76+2*(i-3)}:{77+2*(i-3)}]")
        self.e("s_waitcnt lgkmcnt(0)")
        self.lds = []

    def stamp_flush(self, n):
        if not OPT["stamp"]:
            return
        e = self.e
        e("s_lshl_b32 s92, s2, 3")
        e(f"s_add_u32 s92, s92, s{S_WID}")
        e("s_lshl_b32 s92, s92, 7")
        e(f"s_add_u32 s92, s92, {64<<20}")
        e(f"s_add_u32 s92, s{S_WS}, s92")
        e(f"s_addc_u32 s93, s{S_WS+1}, 0")
        e("s_mov_b32 s94, 128")
        e("s_mov_b32 s95, 0x00020000")
        e("v_mov_b32 v2, 0")
        for i in range(n):
            e(f"v_mov_b32 v4, s{76+2*i}")
            e(f"v_mov_b32 v5, s{77+2*i}")
            e(f"buffer_store_dwordx2 v[4:5], v2, s[92:95], 0 offen offset:{8*i}")
            e("s_nop 1")

    def barrier(self):
        self.e("s_barrier")
        self.nbar += 1


def vr(a, n):
    return f"v[{a}:{a+n-1}]"


def sr(a, n):
    return f"s[{a}:{a+n-1}]"


def mfma(d, a, b, c):
    cs = "0" if c is None else vr(c, 16)
    return f"v_mfma_f32_32x32x16_bf16 {vr(d,16)}, {vr(a,4)}, {vr(b,4)}, {cs}"


V_O = 0
V_Q = 128
V_S = 192
V_F = 224
V_AK = 240
V_AKT = 241
V_AV = 242
V_MC, V_L = 246, 247
V_T = 248
V_LANE = 254
V_X = 255

WBASE = 2 * SLOT
RING = [1, 2, 0]
NWS = OPT['nws']
WREG = NWS * 4096


def lane_fields(e, L, Vh, Vu, Vr, Vcc):
    e(f"v_lshrrev_b32 v{Vh}, 5, v{L}")
    e(f"v_bfe_u32 v{Vu}, v{L}, 4, 1")
    e(f"v_bfe_u32 v{Vr}, v{L}, 2, 2")
    e(f"v_and_b32 v{Vcc}, 3, v{L}")


def gen_main():
    A = Asm()
    e = A.e
    A.label(KMAIN)
    e("s_cmp_ge_u32 s2, 256")
    e("s_cbranch_scc1 L_exit")
    e("s_load_dwordx16 s[8:23], s[0:1], 0")
    e("s_load_dwordx8 s[24:31], s[0:1], 64")
    e("s_load_dwordx2 s[32:33], s[0:1], 96")
    e(f"s_and_b32 s{S_T0}, s2, 7")
    e(f"s_lshl_b32 s{S_T0}, s{S_T0}, 1")
    e(f"s_lshr_b32 s{S_T1}, s2, 3")
    e(f"s_and_b32 s{S_T1}, s{S_T1}, 1")
    e(f"s_add_u32 s{S_T0}, s{S_T0}, s{S_T1}")
    e(f"s_lshr_b32 s{S_B}, s2, 4")
    e(f"s_lshr_b32 s{S_BLK}, s{S_T0}, 3")
    e(f"s_and_b32 s{S_HKV}, s{S_T0}, 7")
    e("v_lshrrev_b32 v1, 6, v0")
    e(f"v_and_b32 v{V_LANE}, 63, v0")
    e("s_nop 0")
    e(f"v_readfirstlane_b32 s{S_WID}, v1")
    e("s_waitcnt lgkmcnt(0)")
    e(f"s_cmp_eq_u32 s{S_BLK}, 0")
    e(f"s_cselect_b64 {sr(S_X,2)}, s[8:9], s[18:19]")
    e(f"s_cselect_b64 {sr(S_K,2)}, s[10:11], s[20:21]")
    e(f"s_cselect_b64 {sr(S_V,2)}, s[12:13], s[22:23]")
    e(f"s_cselect_b64 {sr(S_WQ,2)}, s[14:15], s[24:25]")
    e(f"s_cselect_b64 {sr(S_WO,2)}, s[16:17], s[26:27]")
    A.stamp(0)
    e(f"s_cmp_ge_u32 s{S_WID}, 4")
    e("s_cbranch_scc1 L_producer")

    def bump(sreg, n):
        e(f"s_add_u32 s{sreg}, s{sreg}, 1")
        e(f"s_cmp_ge_u32 s{sreg}, {n}")
        e(f"s_cselect_b32 s{sreg}, 0, s{sreg}")

    L = V_LANE
    e(f"s_lshl_b32 s{S_T0}, s{S_HKV}, 10")
    e(f"s_add_u32 s{SRD0}, s{S_WQ}, s{S_T0}")
    e(f"s_addc_u32 s{SRD0+1}, s{S_WQ+1}, 0")
    e(f"s_sub_u32 s{SRD0+2}, {448*8192}, s{S_T0}")
    e(f"s_mov_b32 s{SRD0+3}, 0x00020000")
    e(f"s_mul_i32 s{S_T0}, s{S_B}, 57344")
    e(f"s_add_u32 s{SRD1}, s{S_X}, s{S_T0}")
    e(f"s_addc_u32 s{SRD1+1}, s{S_X+1}, 0")
    e(f"s_mov_b32 s{SRD1+2}, 57344")
    e(f"s_mov_b32 s{SRD1+3}, 0x00020000")
    e(f"s_lshl_b32 s{S_T0}, s{S_BLK}, 4")
    e(f"s_add_u32 s{S_T0}, s{S_T0}, s{S_B}")
    e(f"s_lshl_b32 s{S_T0}, s{S_T0}, 3")
    e(f"s_add_u32 s{S_T0}, s{S_T0}, s{S_HKV}")
    e(f"s_mul_i32 s{S_T0}, s{S_T0}, {SLAB}")
    e(f"s_add_u32 s{SRD2}, s{S_WS}, s{S_T0}")
    e(f"s_addc_u32 s{SRD2+1}, s{S_WS+1}, 0")
    e(f"s_mov_b32 s{SRD2+2}, {SLAB}")
    e(f"s_mov_b32 s{SRD2+3}, 0x00020000")
    e(f"s_lshr_b32 s{S_HEAD}, s{S_WID}, 1")
    e(f"s_and_b32 s{S_QB}, s{S_WID}, 1")

    Vh, Vu, Vr, Vcc = V_T, V_T + 1, V_T + 2, V_T + 3
    Vt0, Vt1 = V_T + 4, V_T + 5
    lane_fields(e, L, Vh, Vu, Vr, Vcc)

    QR = V_Q
    V_OFFW, V_XB, V_XF7, V_XA = QR, QR + 1, QR + 2, QR + 3
    V_AW = QR + 4
    V_XR = QR + 8
    V_WF = QR + 24
    e(f"s_mul_i32 s{S_M0}, s{S_WID}, {WREG}")
    e(f"s_add_u32 s{S_M0}, s{S_M0}, {WBASE}")
    S_WK, S_XK = S_R0, S_R1
    e(f"s_mul_i32 s{S_WK}, s{S_B}, 7")
    e(f"s_lshr_b32 s{S_WK}, s{S_WK}, 2")
    if not OPT["rot"]:
        e(f"s_mov_b32 s{S_WK}, 0")
    e(f"s_mov_b32 s{S_XK}, s{S_WK}")

    e(f"v_and_b32 v{Vt0}, 31, v{L}")
    e(f"v_mul_u32_u24 v{V_XB}, 896, v{Vt0}")
    e(f"v_bfe_u32 v{V_XF7}, v{L}, 1, 3")
    e(f"v_lshlrev_b32 v{Vt0}, 3, v{Vh}")
    e(f"v_add_u32 v{Vt0}, v{Vt0}, v{Vr}")
    e(f"v_lshlrev_b32 v{Vt0}, 8, v{Vt0}")
    e(f"v_lshlrev_b32 v{Vt1}, 5, v{Vu}")
    e(f"v_add_u32 v{Vt0}, v{Vt0}, v{Vt1}")
    e(f"v_and_b32 v{Vt1}, 1, v{Vcc}")
    e(f"v_lshlrev_b32 v{Vt1}, 4, v{Vt1}")
    e(f"v_add_u32 v{Vt0}, v{Vt0}, v{Vt1}")
    e(f"v_lshrrev_b32 v{Vt1}, 1, v{Vcc}")
    e(f"v_lshlrev_b32 v{Vt1}, 3, v{Vt1}")
    e(f"v_add_u32 v{Vt0}, v{Vt0}, v{Vt1}")
    e(f"v_add_u32 v{Vt0}, s{S_M0}, v{Vt0}")
    for t2 in range(4):
        e(f"v_xor_b32 v{Vt1}, {t2}, v{Vr}")
        e(f"v_lshlrev_b32 v{Vt1}, 6, v{Vt1}")
        e(f"v_add_u32 v{V_AW+t2}, v{Vt0}, v{Vt1}")
    e(f"v_and_b32 v{Vt0}, 31, v{L}")
    e(f"v_and_b32 v{Vt1}, 15, v{L}")
    e(f"v_xor_b32 v{Vt1}, v{Vt1}, v{Vh}")
    e(f"v_lshlrev_b32 v{Vt1}, 4, v{Vt1}")
    e(f"v_lshlrev_b32 v{Vt0}, 9, v{Vt0}")
    e(f"v_add_u32 v{V_AK}, v{Vt0}, v{Vt1}")
    e(f"v_lshlrev_b32 v{Vt0}, 2, v{Vh}")
    e(f"v_add_u32 v{Vt0}, v{Vt0}, v{Vr}")
    e(f"v_lshlrev_b32 v{Vt0}, 9, v{Vt0}")
    e(f"v_lshlrev_b32 v{Vt1}, 5, v{Vu}")
    e(f"v_add_u32 v{Vt0}, v{Vt0}, v{Vt1}")
    e(f"v_lshlrev_b32 v{Vt1}, 3, v{Vcc}")
    e(f"v_add_u32 v{Vt0}, v{Vt0}, v{Vt1}")
    e(f"v_add_u32 v{Vt0}, 16384, v{Vt0}")
    for t2 in range(4):
        e(f"v_xor_b32 v{Vt1}, {t2}, v{Vr}")
        e(f"v_lshlrev_b32 v{Vt1}, 6, v{Vt1}")
        e(f"v_add_u32 v{V_AV+t2}, v{Vt0}, v{Vt1}")
    A.barrier()
    NJ = 28

    def q_reads(j):
        e(f"s_lshl_b32 s{S_T0}, s{S_XK}, 1")
        bump(S_XK, 28)
        e(f"v_add_u32 v{V_XA}, s{S_T0}, v{Vh}")
        e(f"v_xor_b32 v{V_XA}, v{V_XA}, v{V_XF7}")
        e(f"v_lshlrev_b32 v{V_XA}, 4, v{V_XA}")
        e(f"v_add_u32 v{V_XA}, v{V_XA}, v{V_XB}")
        xr = V_XR + 8 * (j % 2)
        for qb in range(2):
            A.lds_issue(("x", j), f"ds_read_b128 {vr(xr+4*qb,4)}, v{V_XA} offset:{qb*28672}")
        base = (j % NWS) * 4096
        for T in range(4):
            f = V_WF + 16 * (j % 2) + 4 * T
            A.lds_issue(("w", j, T), f"ds_read_b64_tr_b16 {vr(f,2)}, v{V_AW+T} offset:{base}")
            A.lds_issue(("w", j, T), f"ds_read_b64_tr_b16 {vr(f+2,2)}, v{V_AW+T} offset:{base+1024}")

    q_reads(0)
    for j in range(NJ):
        A.c(f"---- Q-proj step {j}")
        xr = V_XR + 8 * (j % 2)
        for T in range(4):
            A.lds_wait(("w", j, T))
            for qb in range(2):
                acc = V_O + 32 * T + 16 * qb
                e(mfma(acc, V_WF + 16 * (j % 2) + 4 * T, xr + 4 * qb, None if j == 0 else acc))
            if T == 3:
                pass
            if T == (1 if OPT["qpipe"] else 3):
                A.lds_wait(("w", j, 3))
                if j + 1 < NJ:
                    A.barrier()
                    q_reads(j + 1)
        if OPT["stamp"] == 2 and j in (0, 7, 14, 21):
            A.stamp(1 + j // 7)
    assert not A.vm
    A.stamp(5 if OPT["stamp"] == 2 else 1)
    e(f"v_lshlrev_b32 v{Vt0}, 4, v{L}")
    e(f"v_add_u32 v{Vt1}, s{S_M0}, v{Vt0}")
    e(f"s_mul_i32 s{S_T0}, s{S_HEAD}, {2*WREG}")
    e(f"s_lshl_b32 s{S_T1}, s{S_QB}, 13")
    e(f"s_add_u32 s{S_T0}, s{S_T0}, s{S_T1}")
    e(f"s_add_u32 s{S_T0}, s{S_T0}, {WBASE}")
    e(f"v_add_u32 v{V_X}, s{S_T0}, v{Vt0}")
    e("s_nop 15")
    for qb in range(2):
        for T in range(4):
            for u in range(2):
                f = 2 * T + u
                q = V_Q + 4 * (8 * qb + f)
                for r in range(4):
                    a_ = V_O + 32 * T + 16 * qb + 8 * u + 2 * r
                    e(f"v_cvt_pk_bf16_f32 v{q + r}, v{a_}, v{a_+1}")
                e(f"ds_write_b128 v{Vt1}, {vr(q,4)} offset:{qb*8192 + f*1024}")
    e("s_waitcnt lgkmcnt(0)")
    A.barrier()
    for ks in range(16):
        e(f"ds_read_b128 {vr(V_Q+4*ks,4)}, v{V_X} offset:{(ks>>3)*WREG + (ks&7)*1024}")
    for i in range(128):
        e(f"v_mov_b32 v{V_O+i}, 0")
    e(f"v_mov_b32 v{V_MC}, 0xff800000")
    e(f"v_mov_b32 v{V_L}, 0")
    cbits = struct.unpack("<I", struct.pack("<f", math.log2(math.e) / 16.0))[0]
    e(f"s_mov_b32 s{S_C}, 0x{cbits:08x}")
    e(f"s_mov_b32 s{S_CNT}, 0")
    e("s_mov_b32 s56, 0")
    e(f"s_mov_b32 s74, {SLOT}")
    e(f"s_mov_b32 s75, {(-4*SLOT) & 0xffffffff}")
    e("s_mov_b32 s38, 4")
    e(f"v_add_u32 v{V_AK}, {4*SLOT}, v{V_AK}")
    for t2 in range(4):
        e(f"v_add_u32 v{V_AV+t2}, {4*SLOT}, v{V_AV+t2}")
    e("s_waitcnt lgkmcnt(0)")
    A.barrier()

    t0, t1, t2_, t3, t4, t5 = (V_T + i for i in range(6))
    pv = [(dt, kk) for dt in range(8) for kk in range(2)]
    nresc = [0]

    def interval():
        S = V_S
        P = V_S + 16
        A.barrier()

        def rdK(ks):
            f = V_F + 4 * (ks % 4)
            k7 = ks & 7
            if k7:
                e(f"v_xor_b32 v{V_AKT}, {k7<<5}, v{V_AK}")
                ar = V_AKT
            else:
                ar = V_AK
            A.lds_issue(("k", ks), f"ds_read_b128 {vr(f,4)}, v{ar} offset:{(ks>>3)*256}")

        def rdV(i):
            dt, kk = pv[i]
            f = V_F + 4 * (i % 4)
            base = kk * 8192 + (dt >> 2) * 256
            A.lds_issue(("v", i), f"ds_read_b64_tr_b16 {vr(f,2)}, v{V_AV+(dt&3)} offset:{base}")
            A.lds_issue(("v", i), f"ds_read_b64_tr_b16 {vr(f+2,2)}, v{V_AV+(dt&3)} offset:{base+4096}")

        PF = OPT["kpf"]
        for ks in range(PF):
            rdK(ks)
        for ks in range(16):
            A.lds_wait(("k", ks))
            e(mfma(S, V_F + 4 * (ks % 4), V_Q + 4 * ks, None if ks == 0 else S))
            if ks + PF < 16:
                rdK(ks + PF)
            else:
                rdV(ks + PF - 16)
        e("s_add_u32 s38, s38, 1")
        e("s_cmp_eq_u32 s38, 5")
        e("s_cselect_b32 s39, s75, s74")
        e("s_cselect_b32 s38, 0, s38")
        e(f"v_add_u32 v{V_AK}, s39, v{V_AK}")
        e("s_nop 8")
        for ins in [f"v_max3_f32 v{t0}, v{S}, v{S+1}, v{S+2}",
                    f"v_max3_f32 v{t1}, v{S+3}, v{S+4}, v{S+5}",
                    f"v_max3_f32 v{t2_}, v{S+6}, v{S+7}, v{S+8}",
                    f"v_max3_f32 v{t3}, v{S+9}, v{S+10}, v{S+11}",
                    f"v_max3_f32 v{t4}, v{S+12}, v{S+13}, v{S+14}",
                    f"v_max3_f32 v{t0}, v{t0}, v{t1}, v{S+15}",
                    f"v_max3_f32 v{t2_}, v{t2_}, v{t3}, v{t4}",
                    f"v_max_f32 v{t0}, v{t0}, v{t2_}",
                    f"v_mov_b32 v{t1}, v{t0}",
                    "s_nop 1",
                    f"v_permlane32_swap_b32 v{t0}, v{t1}",
                    "s_nop 1",
                    f"v_max_f32 v{t0}, v{t0}, v{t1}",
                    f"v_mul_f32 v{t5}, s{S_C}, v{t0}",
                    f"v_sub_f32 v{t1}, v{t5}, v{V_MC}",
                    f"v_cmp_lt_f32 vcc, 0x41000000, v{t1}",
                    "s_nop 1"]:
            e(ins)
        nresc[0] += 1
        e(f"s_cbranch_vccnz L_rescale{nresc[0]}")
        A.label(f"L_rescale_done{nresc[0]}")
        for i in range(16):
            e(f"v_fma_f32 v{S+i}, v{S+i}, s{S_C}, -v{V_MC}")
        for i in range(16):
            e(f"v_exp_f32 v{S+i}, v{S+i}")
        e("s_nop 0")
        for i in range(8):
            e(f"v_cvt_pk_bf16_f32 v{P+i}, v{S+2*i}, v{S+2*i+1}")
        sums = [f"v_add_f32 v{t0}, v{S}, v{S+1}", f"v_add_f32 v{t1}, v{S+2}, v{S+3}"]
        for i in range(4, 16, 2):
            sums.append(f"v_add_f32 v{t0}, v{t0}, v{S+i}")
            sums.append(f"v_add_f32 v{t1}, v{t1}, v{S+i+1}")
        sums.append(f"v_add_f32 v{t0}, v{t0}, v{t1}")
        sums.append(f"v_add_f32 v{V_L}, v{V_L}, v{t0}")
        if not OPT["ilvm"]:
            while sums:
                e(sums.pop(0))
        else:
            e("s_nop 1")
        for i in range(16):
            dt, kk = pv[i]
            A.lds_wait(("v", i))
            e(mfma(V_O + 16 * dt, V_F + 4 * (i % 4), P + 4 * kk, V_O + 16 * dt))
            if i + PF < 16:
                rdV(i + PF)
            if sums:
                e(sums.pop(0))
        assert not A.lds and not sums
        for t2 in range(4):
            e(f"v_add_u32 v{V_AV+t2}, s39, v{V_AV+t2}")

    nb0 = A.nbar
    A.label("L_loop")
    interval()
    e(f"s_add_u32 s{S_CNT}, s{S_CNT}, 1")
    e(f"s_cmp_lt_u32 s{S_CNT}, 32")
    e("s_cbranch_scc1 L_loop")
    A.nbar = nb0 + 32

    A.stamp(6 if OPT["stamp"] == 2 else 2)
    e(f"v_mov_b32 v{t1}, v{V_L}")
    e("s_nop 1")
    e(f"v_permlane32_swap_b32 v{V_L}, v{t1}")
    e("s_nop 1")
    e(f"v_add_f32 v{t0}, v{V_L}, v{t1}")
    e(f"v_rcp_f32 v{t5}, v{t0}")
    e(f"s_lshl_b32 s{S_T1}, s{S_QB}, 14")
    e(f"s_add_u32 s{S_T1}, s{S_T1}, {3*SLOT}")
    e(f"s_add_u32 s{S_T0}, s{S_T1}, 32768")
    e(f"s_cmp_eq_u32 s{S_HEAD}, 0")
    e(f"s_cselect_b32 s{S_T2}, s{S_T1}, s{S_T0}")
    V_AB, V_ABC, V_AOWN, V_AWO = V_AK, V_AK + 1, V_AK + 2, V_AK + 4
    e(f"v_lshlrev_b32 v{t1}, 4, v{L}")
    e(f"v_add_u32 v{V_AB}, s{S_T1}, v{t1}")
    e(f"v_add_u32 v{V_AOWN}, s{S_T2}, v{t1}")
    e("s_nop 7")
    for fr in range(16):
        dt, u = fr >> 1, fr & 1
        q = V_Q + 4 * fr
        for r in range(4):
            a = V_O + 16 * dt + 8 * u + 2 * r
            e(f"v_mul_f32 v{a}, v{a}, v{t5}")
            e(f"v_mul_f32 v{a+1}, v{a+1}, v{t5}")
            e(f"v_cvt_pk_bf16_f32 v{q+r}, v{a}, v{a+1}")
        e(f"ds_write_b128 v{V_AOWN}, {vr(q,4)} offset:{fr*1024}")
    lane_fields(e, L, Vh, Vu, Vr, Vcc)
    e(f"v_lshlrev_b32 v{Vt0}, 2, v{Vh}")
    e(f"v_add_u32 v{Vt0}, v{Vt0}, v{Vr}")
    e(f"v_mul_u32_u24 v{Vt0}, 896, v{Vt0}")
    e(f"v_lshlrev_b32 v{Vt1}, 5, v{Vu}")
    e(f"v_add_u32 v{Vt0}, v{Vt0}, v{Vt1}")
    e(f"v_lshlrev_b32 v{Vt1}, 3, v{Vcc}")
    e(f"v_add_u32 v{Vt0}, v{Vt0}, v{Vt1}")
    e(f"s_mul_i32 s{S_T0}, s{S_HEAD}, 448")
    e(f"s_add_u32 s{S_T0}, s{S_T0}, {RING[0]*SLOT}")
    e(f"v_add_u32 v{Vt0}, s{S_T0}, v{Vt0}")
    e(f"v_lshrrev_b32 v{Vt1}, 1, v{Vr}")
    e(f"v_lshlrev_b32 v{Vt1}, 6, v{Vt1}")
    e(f"v_add_u32 v{V_S}, v{Vt0}, v{Vt1}")
    e(f"v_sub_u32 v{V_S+1}, v{Vt0}, v{Vt1}")
    e(f"s_cmp_eq_u32 s{S_HEAD}, 0")
    e("s_cselect_b64 vcc, -1, 0")
    e("s_nop 1")
    e(f"v_cndmask_b32 v{V_AWO}, v{V_S+1}, v{V_S}, vcc")
    e(f"v_cndmask_b32 v{V_AWO+1}, v{V_S}, v{V_S+1}, vcc")
    e("s_waitcnt lgkmcnt(0)")
    if OPT["stamp"] == 1:
        A.stamp(3)

    V_ACC = 0
    V_BF = V_S + 8
    V_AF = V_Q
    NAF = 7
    S_OK = S_R0
    e(f"s_mov_b32 s{S_OK}, " + (f"s{S_B}" if OPT["rot"] else "0"))
    for k in range(16):
        A.c(f"---- O-proj stage {k}")
        e(f"s_lshr_b32 s{S_T0}, s{S_OK}, 3")
        e(f"s_lshl_b32 s{S_T0}, s{S_T0}, 15")
        e(f"s_and_b32 s{S_T1}, s{S_OK}, 7")
        e(f"s_lshl_b32 s{S_T1}, s{S_T1}, 11")
        e(f"s_add_u32 s{S_T0}, s{S_T0}, s{S_T1}")
        e(f"v_add_u32 v{V_ABC}, s{S_T0}, v{V_AB}")
        e(f"s_add_u32 s{S_OK}, s{S_OK}, 1")
        e(f"s_and_b32 s{S_OK}, s{S_OK}, 15")
        A.barrier()
        A.lds_issue(("b", 0), f"ds_read_b128 {vr(V_BF,4)}, v{V_ABC}")
        seq = [(ksl, nt) for ksl in range(2) for nt in range(7)]
        sl = 0

        def rdA(i):
            ksl, nt = seq[i]
            f = V_AF + 4 * (i % 8)
            base = ksl * 16 * 896 + nt * 64 + sl
            A.lds_issue(("a", i), f"ds_read_b64_tr_b16 {vr(f,2)}, v{V_AWO+(nt&1)} offset:{base}")
            A.lds_issue(("a", i), f"ds_read_b64_tr_b16 {vr(f+2,2)}, v{V_AWO+(nt&1)} offset:{base+8*896}")
        for i in range(NAF):
            rdA(i)
        for i in range(14):
            ksl, nt = seq[i]
            A.lds_wait(("a", i))
            if i == 7:
                A.lds_wait(("b", 1))
            e(mfma(V_ACC + 16 * nt, V_AF + 4 * (i % 8), V_BF + 4 * ksl, None if (k == 0 and ksl == 0) else V_ACC + 16 * nt))
            if i == 0:
                A.lds_issue(("b", 1), f"ds_read_b128 {vr(V_BF+4,4)}, v{V_ABC} offset:1024")
            if i + NAF < 14:
                rdA(i + NAF)
        assert not A.lds
        if k < 15:
            d_ = (RING[(k + 1) % 3] - RING[k % 3]) * SLOT
            e(f"v_add_u32 v{V_AWO}, {d_ & 0xffffffff}, v{V_AWO}")
            e(f"v_add_u32 v{V_AWO+1}, {d_ & 0xffffffff}, v{V_AWO+1}")
    if OPT["stamp"] == 1:
        A.stamp(4)
    A.c("---- store partials")
    e(f"v_lshlrev_b32 v{t0}, 4, v{L}")
    if OPT["pbf"]:
        e(f"s_mul_i32 s{S_SOFF}, s{S_WID}, 14336")
        e("s_nop 15")
        for nt in range(7):
            pk = V_Q + 8 * nt
            for d in range(8):
                e(f"v_cvt_pk_bf16_f32 v{pk+d}, v{V_ACC+16*nt+2*d}, v{V_ACC+16*nt+2*d+1}")
            for hf in range(2):
                e(f"buffer_store_dwordx4 {vr(pk+4*hf,4)}, v{t0}, {sr(SRD2,4)}, s{S_SOFF} offen offset:{(nt&1)*2048 + hf*1024}{PSC}")
            if nt & 1:
                e(f"s_add_u32 s{S_SOFF}, s{S_SOFF}, 4096")
    else:
        e(f"s_mul_i32 s{S_SOFF}, s{S_WID}, 28672")
        e("s_nop 15")
        for nt in range(7):
            for g in range(4):
                e(f"buffer_store_dwordx4 {vr(V_ACC+16*nt+4*g,4)}, v{t0}, {sr(SRD2,4)}, s{S_SOFF} offen offset:{g*1024}{PSC}")
            if nt < 6:
                e(f"s_add_u32 s{S_SOFF}, s{S_SOFF}, 4096")
    if OPT["stamp"]:
        e("s_waitcnt vmcnt(0)")
    A.stamp(7 if OPT["stamp"] == 2 else 5)
    if OPT["stamp"] == 2:
        e("s_add_u32 s84, s76, s56")
        e("s_addc_u32 s85, s77, 0")
    A.stamp_flush(8)
    e("s_endpgm")
    nbar_cons = A.nbar

    for n in range(1, nresc[0] + 1):
        A.label(f"L_rescale{n}")
        if OPT["stamp"]:
            e("s_add_u32 s56, s56, 1000")
        e("s_nop 15")
        e(f"v_max_f32 v{t0}, v{t5}, v{V_MC}")
        e(f"v_sub_f32 v{t1}, v{V_MC}, v{t0}")
        e(f"v_exp_f32 v{t1}, v{t1}")
        e(f"v_mov_b32 v{V_MC}, v{t0}")
        e("s_nop 0")
        e(f"v_mul_f32 v{V_L}, v{V_L}, v{t1}")
        for i in range(128):
            e(f"v_mul_f32 v{V_O+i}, v{V_O+i}, v{t1}")
        e(f"s_branch L_rescale_done{n}")

    A.label("L_producer")
    if OPT["pprio"]:
        e(f"s_setprio {OPT['pprio']}")
    A.nbar = 0
    A.vm = []
    A.lds = []
    S_P = 58
    e(f"s_sub_u32 s{S_P}, s{S_WID}, 4")
    e(f"s_lshl_b32 s{S_T0}, s{S_HKV}, 10")
    e(f"s_add_u32 s12, s{S_WQ}, s{S_T0}")
    e(f"s_addc_u32 s13, s{S_WQ+1}, 0")
    e(f"s_sub_u32 s14, {448*8192}, s{S_T0}")
    e("s_mov_b32 s15, 0x00020000")
    e(f"v_lshrrev_b32 v2, 4, v{L}")
    e("v_lshlrev_b32 v3, 2, v2")
    e(f"v_and_b32 v4, 15, v{L}")
    e("v_xor_b32 v4, v4, v3")
    e("v_lshlrev_b32 v4, 4, v4")
    e("v_lshlrev_b32 v2, 13, v2")
    e("v_add_u32 v2, v2, v4")
    e(f"s_lshl_b32 s{S_T0}, s{S_P}, 8")
    e(f"v_add_u32 v26, s{S_T0}, v2")
    e(f"s_mul_i32 s16, s{S_P}, {WREG}")
    e(f"s_add_u32 s16, s16, {WBASE}")
    e(f"s_mul_i32 s17, s{S_B}, 7")
    e("s_lshr_b32 s17, s17, 2")
    if not OPT["rot"]:
        e("s_mov_b32 s17, 0")

    def w_issue(j):
        e(f"s_lshl_b32 s{S_SOFF}, s17, 17")
        e(f"s_add_u32 m0, s16, {(j%NWS)*4096}")
        bump(17, 28)
        for i in range(4):
            A.vm_issue(("w", j), f"buffer_load_dwordx4 v26, s[12:15], s{S_SOFF} offen offset:{i*1024}{' nt' if OPT['wnt'] else ''} lds")
            if i < 3:
                e(f"s_add_u32 s{S_SOFF}, s{S_SOFF}, {32768-1024}")

    w_issue(0)
    e(f"s_mul_i32 s{S_T0}, s{S_B}, 57344")
    e(f"s_add_u32 s8, s{S_X}, s{S_T0}")
    e(f"s_addc_u32 s9, s{S_X+1}, 0")
    e("s_mov_b32 s10, 57344")
    e("s_mov_b32 s11, 0x00020000")
    e(f"s_mul_i32 s{S_T0}, s{S_P}, 896")
    e(f"s_mov_b32 s{S_T1}, {(1<<32)//56 + 1}")
    e(f"s_mul_i32 s{S_T2}, s{S_P}, 14336")
    for i in range(14):
        r0 = 32 + 4 * i
        e(f"v_add_u32 v{r0}, {64*i}, v{L}")
        e(f"v_add_u32 v{r0}, s{S_T0}, v{r0}")
        e(f"v_mul_hi_u32 v{r0+1}, v{r0}, s{S_T1}")
        e(f"v_mul_u32_u24 v{r0+2}, 56, v{r0+1}")
        e(f"v_sub_u32 v{r0+2}, v{r0}, v{r0+2}")
        e(f"v_bfe_u32 v{r0+3}, v{r0+1}, 1, 3")
        e(f"v_xor_b32 v{r0+2}, v{r0+2}, v{r0+3}")
        e(f"v_lshlrev_b32 v{r0+2}, 4, v{r0+2}")
        e(f"v_mul_u32_u24 v{r0+1}, 896, v{r0+1}")
        e(f"v_add_u32 v{r0}, v{r0+1}, v{r0+2}")
        e(f"s_add_u32 m0, s{S_T2}, {i*1024}")
        e("s_nop 0")
        A.vm_issue(("xd", 0), f"buffer_load_dwordx4 v{r0}, s[8:11], 0 offen{' nt' if OPT['xnt'] else ''} lds")
    e(f"s_lshl_b32 s{S_T0}, s{S_B}, 22")
    e(f"s_lshl_b32 s{S_T1}, s{S_HKV}, 19")
    e(f"s_add_u32 s{S_T0}, s{S_T0}, s{S_T1}")
    e(f"s_add_u32 s{SRD0}, s{S_K}, s{S_T0}")
    e(f"s_addc_u32 s{SRD0+1}, s{S_K+1}, 0")
    e(f"s_mov_b32 s{SRD0+2}, 524288")
    e(f"s_mov_b32 s{SRD0+3}, 0x00020000")
    e(f"s_add_u32 s{SRD1}, s{S_V}, s{S_T0}")
    e(f"s_addc_u32 s{SRD1+1}, s{S_V+1}, 0")
    e(f"s_mov_b32 s{SRD1+2}, 524288")
    e(f"s_mov_b32 s{SRD1+3}, 0x00020000")
    e(f"s_mul_i32 s{S_T0}, s{S_HKV}, 458752")
    e(f"s_add_u32 s{SRD2}, s{S_WO}, s{S_T0}")
    e(f"s_addc_u32 s{SRD2+1}, s{S_WO+1}, 0")
    e(f"s_mov_b32 s{SRD2+2}, 458752")
    e(f"s_mov_b32 s{SRD2+3}, 0x00020000")
    PK, PV_, PW, PAK, PAW = 10, 14, 16, 23, 24
    a, b2, c2, d2 = 2, 3, 4, 5
    e(f"v_lshrrev_b32 v{a}, 5, v{L}")
    e(f"v_and_b32 v{b2}, 31, v{L}")
    e(f"s_lshl_b32 s{S_T0}, s{S_P}, 3")
    e(f"v_add_u32 v{c2}, s{S_T0}, v{a}")
    e(f"v_lshlrev_b32 v{d2}, 9, v{c2}")
    for j in range(4):
        e(f"v_add_u32 v6, {2*j}, v{c2}")
        e("v_and_b32 v6, 15, v6")
        e(f"v_xor_b32 v6, v6, v{b2}")
        e("v_lshlrev_b32 v6, 4, v6")
        e(f"v_add_u32 v{PK+j}, v{d2}, v6")
    for jp in range(2):
        e(f"v_add_u32 v6, {2*jp}, v{a}")
        e("v_lshlrev_b32 v6, 2, v6")
        e(f"v_xor_b32 v6, v6, v{b2}")
        e("v_lshlrev_b32 v6, 4, v6")
        e(f"v_add_u32 v{PV_+jp}, v{d2}, v6")
    e(f"s_mul_i32 s{S_T0}, s{S_P}, 448")
    e(f"s_mov_b32 s{S_T1}, {(1<<32)//56 + 1}")
    for j in range(7):
        e(f"v_add_u32 v6, {64*j}, v{L}")
        e(f"v_add_u32 v6, s{S_T0}, v6")
        e(f"v_mul_hi_u32 v7, v6, s{S_T1}")
        e("v_mul_u32_u24 v8, 56, v7")
        e("v_sub_u32 v8, v6, v8")
        e("v_bfe_u32 v9, v7, 1, 1")
        e("v_lshlrev_b32 v9, 2, v9")
        e("v_xor_b32 v8, v8, v9")
        e("v_lshlrev_b32 v8, 4, v8")
        e("v_mul_u32_u24 v7, 896, v7")
        e(f"v_add_u32 v{PW+j}, v7, v8")
    e(f"s_lshl_b32 s{S_M0}, s{S_P}, 12")
    e(f"s_mul_i32 s{S_T3}, s{S_P}, 7168")
    e(f"s_mov_b32 s{S_R0}, " + (f"s{S_B}" if OPT["rot"] else "0"))

    def iv_issue(i):
        if i <= 31:
            sl = ((i + 4) % 5) * SLOT
            if OPT["krot"]:
                e(f"s_lshl_b32 s{S_SOFF}, s{S_R1}, 14")
                e(f"s_add_u32 s{S_R1}, s{S_R1}, 1")
                e(f"s_and_b32 s{S_R1}, s{S_R1}, 31")
            else:
                e(f"s_mov_b32 s{S_SOFF}, {i*16384}")
            e(f"s_add_u32 m0, s{S_M0}, {sl}")
            e("s_nop 0")
            for j in range(4):
                A.vm_issue(("iv", i), f"buffer_load_dwordx4 v{PK+j}, {sr(SRD0,4)}, s{S_SOFF} offen offset:{j*1024}{NT} lds")
            e(f"s_add_u32 m0, s{S_M0}, {sl+16384}")
            e("s_nop 0")
            for j in range(4):
                A.vm_issue(("iv", i), f"buffer_load_dwordx4 v{PV_+(j&1)}, {sr(SRD1,4)}, s{S_SOFF} offen offset:{j*1024}{NT} lds")
        else:
            k = i - 32
            sl = RING[k % 3] * SLOT
            e(f"s_mul_i32 s{S_SOFF}, s{S_R0}, 28672")
            e(f"s_add_u32 s{S_R0}, s{S_R0}, 1")
            e(f"s_and_b32 s{S_R0}, s{S_R0}, 15")
            for j in range(7):
                e(f"s_add_u32 m0, s{S_T3}, {sl + j*1024}")
                e("s_nop 0")
                A.vm_issue(("iv", i), f"buffer_load_dwordx4 v{PW+j}, {sr(SRD2,4)}, s{S_SOFF} offen{' nt' if OPT['wont'] else ''} lds")

    if OPT["krot"] == 1:
        e(f"s_mul_i32 s{S_R1}, s2, 5")
        e(f"s_and_b32 s{S_R1}, s{S_R1}, 31")
    elif OPT["krot"] == 2:
        e(f"s_lshr_b32 s{S_R1}, s2, 3")
    elif OPT["krot"] == 3:
        e(f"s_and_b32 s{S_R1}, s2, 31")
    for j in range(1, NWS):
        w_issue(j)
    if OPT["early"] == 0:
        iv_issue(0)
    A.vm_wait(("xd", 0))
    A.barrier()
    A.stamp(1)
    for j in range(1, 28):
        A.vm_wait(("w", j))
        A.barrier()
        if j - 1 + NWS < 28:
            w_issue(j - 1 + NWS)
        if j == OPT["early"]:
            iv_issue(0)
    A.barrier()
    iv_issue(1)
    iv_issue(2)
    A.barrier()
    for i in (3, 4):
        iv_issue(i)
    A.stamp(2)
    for i in range(48):
        A.vm_wait(("iv", i))
        A.barrier()
        if i == 32:
            A.stamp(3)
        if 1 <= i and i + 4 <= 31:
            iv_issue(i + 4)
        elif i == 28:
            iv_issue(32)
        elif i == 29:
            iv_issue(33)
        elif i >= 32 and i + 2 < 48:
            iv_issue(i + 2)
    assert not A.vm
    assert A.nbar == nbar_cons, (A.nbar, nbar_cons)
    for i in range(4, 8):
        A.stamp(i)
    A.stamp_flush(8)
    A.label("L_exit")
    e("s_endpgm")
    return A.lines


def gen_reduce_f32():
    A = Asm()
    e = A.e
    A.label(KRED)
    e("s_cmp_ge_u32 s2, 896")
    e("s_cbranch_scc1 R_exit")
    e("s_load_dwordx2 s[4:5], s[0:1], 80")
    e("s_load_dwordx2 s[6:7], s[0:1], 96")
    e(f"s_mov_b32 s16, {(1<<32)//28 + 1}")
    e("s_mul_hi_u32 s17, s2, s16")
    e("s_mul_i32 s18, s17, 28")
    e("s_sub_u32 s18, s2, s18")
    e(f"s_mov_b32 s16, {(1<<32)//7 + 1}")
    e("s_mul_hi_u32 s19, s18, s16")
    e("s_mul_i32 s20, s19, 7")
    e("s_sub_u32 s20, s18, s20")
    e("s_waitcnt lgkmcnt(0)")
    e("s_mul_i32 s21, s17, 917504")
    e("s_lshl_b32 s22, s18, 12")
    e("s_add_u32 s21, s21, s22")
    e("s_add_u32 s8, s6, s21")
    e("s_addc_u32 s9, s7, 0")
    e(f"s_mov_b32 s10, {7*114688+4096}")
    e("s_mov_b32 s11, 0x00020000")
    e("s_mov_b32 s12, s4")
    e("s_mov_b32 s13, s5")
    e("s_mov_b32 s14, 1835008")
    e("s_mov_b32 s15, 0x00020000")
    e("v_lshlrev_b32 v1, 4, v0")
    for h in range(8):
        e(f"s_mov_b32 s23, {h*114688}")
        e(f"buffer_load_dwordx4 {vr(8+4*h,4)}, v1, s[8:11], s23 offen")
    e("s_and_b32 s24, s17, 15")
    e("s_lshr_b32 s25, s17, 4")
    e("s_lshl_b32 s24, s24, 6")
    e("s_and_b32 s26, s19, 1")
    e("s_lshl_b32 s26, s26, 5")
    e("s_add_u32 s24, s24, s26")
    e("s_mul_i32 s24, s24, 896")
    e("s_mul_i32 s25, s25, 448")
    e("s_add_u32 s24, s24, s25")
    e("s_lshr_b32 s26, s19, 1")
    e("s_mul_i32 s26, s26, 224")
    e("s_add_u32 s24, s24, s26")
    e("s_lshl_b32 s26, s20, 5")
    e("s_add_u32 s24, s24, s26")
    e("s_lshl_b32 s24, s24, 1")
    e("v_and_b32 v2, 31, v0")
    e("v_mul_u32_u24 v2, 1792, v2")
    e("v_lshrrev_b32 v3, 6, v0")
    e("v_lshlrev_b32 v3, 4, v3")
    e("v_add_u32 v2, v2, v3")
    e("v_bfe_u32 v3, v0, 5, 1")
    e("v_lshlrev_b32 v3, 3, v3")
    e("v_add_u32 v2, v2, v3")
    for h in range(1, 8):
        e(f"s_waitcnt vmcnt({7-h})")
        for i in range(4):
            e(f"v_add_f32 v{8+i}, v{8+i}, v{8+4*h+i}")
    e("v_cvt_pk_bf16_f32 v4, v8, v9")
    e("v_cvt_pk_bf16_f32 v5, v10, v11")
    e("buffer_store_dwordx2 v[4:5], v2, s[12:15], s24 offen")
    if OPT["dbg"]:
        e("s_cmp_lg_u32 s2, 0")
        e("s_cbranch_scc1 R_exit")
        e("s_load_dwordx2 s[4:5], s[0:1], 88")
        e(f"s_add_u32 s8, s6, {(64<<20) + OPT['dbgwg']*1024}")
        e("s_addc_u32 s9, s7, 0")
        e("s_mov_b32 s10, 1024")
        e("s_waitcnt lgkmcnt(0)")
        e("s_mov_b32 s12, s4")
        e("s_mov_b32 s13, s5")
        e("s_mov_b32 s14, 64")
        e("v_lshrrev_b32 v1, 3, v0")
        e("v_lshlrev_b32 v1, 9, v1")
        e("v_and_b32 v2, 7, v0")
        e("v_lshlrev_b32 v2, 3, v2")
        e("v_add_u32 v2, v1, v2")
        e("buffer_load_dword v3, v2, s[8:11], 0 offen")
        e("v_mov_b32 v1, 0")
        e("buffer_load_dword v4, v1, s[8:11], 0 offen")
        e("s_waitcnt vmcnt(0)")
        e("v_sub_u32 v3, v3, v4")
        e("v_lshlrev_b32 v1, 2, v0")
        e("buffer_store_dword v3, v1, s[12:15], 0 offen")
    A.label("R_exit")
    e("s_endpgm")
    return A.lines


def gen_reduce():
    if not OPT["pbf"]:
        return gen_reduce_f32()
    A = Asm()
    e = A.e
    A.label(KRED)
    e("s_cmp_ge_u32 s2, 448")
    e("s_cbranch_scc1 R_exit")
    e("s_load_dwordx2 s[4:5], s[0:1], 80")
    e("s_load_dwordx2 s[6:7], s[0:1], 96")
    e(f"s_mov_b32 s16, {(1<<32)//14 + 1}")
    e("s_mul_hi_u32 s17, s2, s16")
    e("s_mul_i32 s18, s17, 14")
    e("s_sub_u32 s18, s2, s18")
    e("v_lshrrev_b32 v1, 6, v0")
    e("s_nop 0")
    e("v_readfirstlane_b32 s19, v1")
    e("s_lshl_b32 s18, s18, 2")
    e("s_add_u32 s18, s18, s19")
    e("s_mul_hi_u32 s19, s18, s16")
    e("s_mul_i32 s20, s19, 14")
    e("s_sub_u32 s20, s18, s20")
    e("s_waitcnt lgkmcnt(0)")
    e(f"s_mul_i32 s21, s17, {8*57344}")
    e("s_lshl_b32 s22, s18, 10")
    e("s_add_u32 s21, s21, s22")
    e("s_add_u32 s8, s6, s21")
    e("s_addc_u32 s9, s7, 0")
    e(f"s_mov_b32 s10, {7*57344+1024}")
    e("s_mov_b32 s11, 0x00020000")
    e("s_mov_b32 s12, s4")
    e("s_mov_b32 s13, s5")
    e("s_mov_b32 s14, 1835008")
    e("s_mov_b32 s15, 0x00020000")
    e("v_and_b32 v1, 63, v0")
    e("v_lshlrev_b32 v2, 4, v1")
    for h in range(8):
        e(f"s_mov_b32 s23, {h*57344}")
        e(f"buffer_load_dwordx4 {vr(8+4*h,4)}, v2, s[8:11], s23 offen")
    e("s_and_b32 s24, s17, 15")
    e("s_lshr_b32 s25, s17, 4")
    e("s_lshl_b32 s24, s24, 6")
    e("s_and_b32 s26, s19, 1")
    e("s_lshl_b32 s26, s26, 5")
    e("s_add_u32 s24, s24, s26")
    e("s_mul_i32 s24, s24, 896")
    e("s_mul_i32 s25, s25, 448")
    e("s_add_u32 s24, s24, s25")
    e("s_lshr_b32 s26, s19, 1")
    e("s_mul_i32 s26, s26, 224")
    e("s_add_u32 s24, s24, s26")
    e("s_lshl_b32 s26, s20, 4")
    e("s_add_u32 s24, s24, s26")
    e("s_lshl_b32 s24, s24, 1")
    e("v_and_b32 v3, 31, v1")
    e("v_mul_u32_u24 v3, 1792, v3")
    e("v_lshrrev_b32 v4, 5, v1")
    e("v_lshlrev_b32 v4, 3, v4")
    e("v_add_u32 v3, v3, v4")
    for h8 in range(8):
        e(f"s_waitcnt vmcnt({7-h8})")
        for d in range(4):
            src = 8 + 4 * h8 + d
            if h8 == 0:
                e(f"v_lshlrev_b32 v{48+2*d}, 16, v{src}")
                e(f"v_and_b32 v{49+2*d}, 0xffff0000, v{src}")
            else:
                e(f"v_lshlrev_b32 v5, 16, v{src}")
                e(f"v_and_b32 v6, 0xffff0000, v{src}")
                e(f"v_add_f32 v{48+2*d}, v{48+2*d}, v5")
                e(f"v_add_f32 v{49+2*d}, v{49+2*d}, v6")
    for d in range(4):
        e(f"v_cvt_pk_bf16_f32 v{56+d}, v{48+2*d}, v{49+2*d}")
    e("buffer_store_dwordx2 v[56:57], v3, s[12:15], s24 offen")
    e("buffer_store_dwordx2 v[58:59], v3, s[12:15], s24 offen offset:16")
    A.label("R_exit")
    e("s_endpgm")
    return A.lines


def kd(name, vgpr, sgpr):
    acc = (vgpr + 3) // 4 * 4
    return f""".amdhsa_kernel {name}
  .amdhsa_next_free_vgpr {vgpr}
  .amdhsa_next_free_sgpr {sgpr}
  .amdhsa_accum_offset {acc}
  .amdhsa_group_segment_fixed_size 0
  .amdhsa_kernarg_size 104
  .amdhsa_user_sgpr_count 2
  .amdhsa_user_sgpr_kernarg_segment_ptr 1
  .amdhsa_system_sgpr_workgroup_id_x 1
.end_amdhsa_kernel
"""


def main():
    out = []
    out.append(f"; @launch kernel={KMAIN} grid=(256,1,1) block=(512,1,1) lds=163840")
    out.append(f"; @launch kernel={KRED} grid=({448 if OPT['pbf'] else 896},1,1) block=(256,1,1) lds=0")
    out.append('.amdgcn_target "amdgcn-amd-amdhsa--gfx950"')
    out.append(".text")
    for name, lines in ((KMAIN, gen_main()), (KRED, gen_reduce())):
        out.append(f".globl {name}")
        out.append(".p2align 8")
        out.append(f".type {name},@function")
        out += lines
    out.append('.section .rodata,"a"')
    out.append(".p2align 6")
    out.append(kd(KMAIN, 256, 102))
    out.append(".p2align 6")
    out.append(kd(KRED, 64, 32))
    open(sys.argv[1], "w").write("\n".join(out) + "\n")


main()
```

```python
import sys, math, struct

NAME = "concat_heads__gqa_block_cached__gqa_block_cached__near_ridge"
KMAIN = NAME + "_kernel"
KRED = "reduce_partials_kernel"

OPT = dict(psc=0, early=24, rot=1, stamp=0, nocompute=0, kpf=4)
for a in sys.argv[2:]:
    k, v = a.split("=")
    OPT[k] = int(v)

SLOT = 32768
SLAB = 57344
PSC = {0: '', 1: ' nt', 2: ' sc1', 3: ' sc0 sc1'}[OPT['psc']]
WBASE = 2 * SLOT
NWS = 2
WT = 8192
NWS = 2
WREG = 16384
RING = [1, 2, 0]
NJ = 14

S_BLK, S_HKV, S_B, S_WID = 34, 35, 36, 37
SRD0, SRD1, SRD2 = 40, 44, 48
S_SOFF, S_M0, S_CNT, S_C = 52, 53, 54, 57
S_HEAD, S_QB = 58, 59
S_T0, S_T1, S_T2, S_T3 = 60, 61, 62, 63
S_X, S_K, S_V, S_WQ, S_WO = 64, 66, 68, 70, 72
S_OUT, S_DBG, S_WS = 28, 30, 32
S_R0, S_R1 = 96, 97


class Asm:
    def __init__(self):
        self.lines = []
        self.lds = []
        self.vm = []
        self.nbar = 0

    def e(self, s):
        if OPT["nocompute"] and (s.startswith("ds_read") or s.startswith("v_mfma") or s.startswith("v_exp")):
            return
        self.lines.append("    " + s)

    def label(self, s):
        self.lines.append(s + ":")

    def c(self, s):
        self.lines.append("    ; " + s)

    def lds_issue(self, tag, s):
        self.e(s)
        self.lds.append(tag)

    def lds_wait(self, tag):
        if tag not in self.lds:
            return
        idx = max(i for i, t in enumerate(self.lds) if t == tag)
        n = len(self.lds) - 1 - idx
        assert n <= 15, n
        self.e(f"s_waitcnt lgkmcnt({n})")
        self.lds = self.lds[idx + 1:]

    def vm_issue(self, tag, s):
        self.e(s)
        self.vm.append(tag)

    def vm_wait(self, tag):
        if tag not in self.vm:
            return
        idx = max(i for i, t in enumerate(self.vm) if t == tag)
        n = len(self.vm) - 1 - idx
        assert n <= 63
        self.e(f"s_waitcnt vmcnt({n})")
        self.vm = self.vm[idx + 1:]

    def stamp(self, i):
        if not OPT["stamp"]:
            return
        self.e(f"s_memrealtime s[{76+2*i}:{77+2*i}]")
        self.e("s_waitcnt lgkmcnt(0)")
        self.lds = []

    def stamp_flush(self, n):
        if not OPT["stamp"]:
            return
        e = self.e
        e("s_lshl_b32 s92, s2, 3")
        e(f"s_add_u32 s92, s92, s{S_WID}")
        e("s_lshl_b32 s92, s92, 7")
        e(f"s_add_u32 s92, s92, {64<<20}")
        e(f"s_add_u32 s92, s{S_WS}, s92")
        e(f"s_addc_u32 s93, s{S_WS+1}, 0")
        e("s_mov_b32 s94, 128")
        e("s_mov_b32 s95, 0x00020000")
        e("v_mov_b32 v2, 0")
        for i in range(n):
            e(f"v_mov_b32 v4, s{76+2*i}")
            e(f"v_mov_b32 v5, s{77+2*i}")
            e(f"buffer_store_dwordx2 v[4:5], v2, s[92:95], 0 offen offset:{8*i}")
            e("s_nop 1")

    def barrier(self):
        self.e("s_barrier")
        self.nbar += 1


def vr(a, n):
    return f"v[{a}:{a+n-1}]"


def sr(a, n):
    return f"s[{a}:{a+n-1}]"


def mfma(d, a, b, first=False):
    cs = "0" if first else vr(d, 4)
    return f"v_mfma_f32_16x16x32_bf16 {vr(d,4)}, {vr(a,4)}, {vr(b,4)}, {cs}"


V_O = 0
V_Q = 128
V_S = 192
V_P = 208
V_F = 216
V_AK, V_AV, V_AT = 232, 233, 234
V_MC = 236
V_L = 238
V_TM = 240
V_T = 242
V_LANE = 254
V_X = 255


def gen_main():
    A = Asm()
    e = A.e
    A.label(KMAIN)
    e("s_cmp_ge_u32 s2, 256")
    e("s_cbranch_scc1 L_exit")
    e("s_load_dwordx16 s[8:23], s[0:1], 0")
    e("s_load_dwordx8 s[24:31], s[0:1], 64")
    e("s_load_dwordx2 s[32:33], s[0:1], 96")
    e(f"s_and_b32 s{S_T0}, s2, 7")
    e(f"s_lshl_b32 s{S_T0}, s{S_T0}, 1")
    e(f"s_lshr_b32 s{S_T1}, s2, 3")
    e(f"s_and_b32 s{S_T1}, s{S_T1}, 1")
    e(f"s_add_u32 s{S_T0}, s{S_T0}, s{S_T1}")
    e(f"s_lshr_b32 s{S_B}, s2, 4")
    e(f"s_lshr_b32 s{S_BLK}, s{S_T0}, 3")
    e(f"s_and_b32 s{S_HKV}, s{S_T0}, 7")
    e("v_lshrrev_b32 v1, 6, v0")
    e(f"v_and_b32 v{V_LANE}, 63, v0")
    e("s_nop 0")
    e(f"v_readfirstlane_b32 s{S_WID}, v1")
    e("s_waitcnt lgkmcnt(0)")
    e(f"s_cmp_eq_u32 s{S_BLK}, 0")
    e(f"s_cselect_b64 {sr(S_X,2)}, s[8:9], s[18:19]")
    e(f"s_cselect_b64 {sr(S_K,2)}, s[10:11], s[20:21]")
    e(f"s_cselect_b64 {sr(S_V,2)}, s[12:13], s[22:23]")
    e(f"s_cselect_b64 {sr(S_WQ,2)}, s[14:15], s[24:25]")
    e(f"s_cselect_b64 {sr(S_WO,2)}, s[16:17], s[26:27]")
    A.stamp(0)
    e(f"s_cmp_ge_u32 s{S_WID}, 4")
    e("s_cbranch_scc1 L_producer")

    def bump(sreg, n):
        e(f"s_add_u32 s{sreg}, s{sreg}, 1")
        e(f"s_cmp_ge_u32 s{sreg}, {n}")
        e(f"s_cselect_b32 s{sreg}, 0, s{sreg}")

    L = V_LANE
    e(f"s_lshl_b32 s{S_T0}, s{S_BLK}, 4")
    e(f"s_add_u32 s{S_T0}, s{S_T0}, s{S_B}")
    e(f"s_lshl_b32 s{S_T0}, s{S_T0}, 3")
    e(f"s_add_u32 s{S_T0}, s{S_T0}, s{S_HKV}")
    e(f"s_mul_i32 s{S_T0}, s{S_T0}, {SLAB}")
    e(f"s_add_u32 s{SRD2}, s{S_WS}, s{S_T0}")
    e(f"s_addc_u32 s{SRD2+1}, s{S_WS+1}, 0")
    e(f"s_mov_b32 s{SRD2+2}, {SLAB}")
    e(f"s_mov_b32 s{SRD2+3}, 0x00020000")
    e(f"s_lshr_b32 s{S_HEAD}, s{S_WID}, 1")
    e(f"s_and_b32 s{S_QB}, s{S_WID}, 1")

    Vg, Vc, Vr, Vcc, Vt0, Vt1 = (V_T + i for i in range(6))

    def lane_fields():
        e(f"v_lshrrev_b32 v{Vg}, 4, v{L}")
        e(f"v_and_b32 v{Vc}, 15, v{L}")
        e(f"v_bfe_u32 v{Vr}, v{L}, 2, 2")
        e(f"v_and_b32 v{Vcc}, 3, v{L}")
    lane_fields()

    QR = V_Q
    V_XB, V_XF7, V_XA = QR, QR + 1, QR + 2
    V_AW = QR + 4
    V_XR = QR + 8
    V_WF = QR + 40
    e(f"s_mul_i32 s{S_M0}, s{S_WID}, {WREG}")
    e(f"s_add_u32 s{S_M0}, s{S_M0}, {WBASE}")
    S_XK = S_R1
    e(f"s_mul_i32 s{S_XK}, s{S_B}, 7")
    e(f"s_lshr_b32 s{S_XK}, s{S_XK}, 3")
    if not OPT["rot"]:
        e(f"s_mov_b32 s{S_XK}, 0")
    e(f"v_mul_u32_u24 v{V_XB}, 896, v{Vc}")
    e(f"v_bfe_u32 v{V_XF7}, v{L}, 1, 3")
    e(f"v_lshlrev_b32 v{Vt0}, 3, v{Vg}")
    e(f"v_add_u32 v{Vt0}, v{Vt0}, v{Vr}")
    e(f"v_lshlrev_b32 v{Vt0}, 7, v{Vt0}")
    e(f"v_lshlrev_b32 v{Vt1}, 4, v{Vcc}")
    e(f"v_add_u32 v{Vt0}, v{Vt0}, v{Vt1}")
    e(f"v_add_u32 v{Vt0}, s{S_M0}, v{Vt0}")
    for u in range(2):
        e(f"v_lshrrev_b32 v{Vt1}, 1, v{Vr}")
        e(f"v_xor_b32 v{Vt1}, {u}, v{Vt1}")
        e(f"v_lshlrev_b32 v{Vt1}, 6, v{Vt1}")
        e(f"v_add_u32 v{V_AW+u}, v{Vt0}, v{Vt1}")
    e(f"v_xor_b32 v{Vt1}, v{Vg}, v{Vc}")
    e(f"v_lshlrev_b32 v{Vt1}, 4, v{Vt1}")
    e(f"v_lshlrev_b32 v{Vt0}, 9, v{Vc}")
    e(f"v_add_u32 v{Vt0}, v{Vt0}, v{Vt1}")
    e(f"v_add_u32 v{V_AK}, {4*SLOT}, v{Vt0}")
    e(f"v_lshlrev_b32 v{Vt0}, 2, v{Vg}")
    e(f"v_add_u32 v{Vt0}, v{Vt0}, v{Vr}")
    e(f"v_and_b32 v{Vt1}, 7, v{Vt0}")
    e(f"v_lshlrev_b32 v{Vt1}, 5, v{Vt1}")
    e(f"v_lshlrev_b32 v{Vt0}, 9, v{Vt0}")
    e(f"v_add_u32 v{Vt0}, v{Vt0}, v{Vt1}")
    e(f"v_lshlrev_b32 v{Vt1}, 3, v{Vcc}")
    e(f"v_add_u32 v{Vt0}, v{Vt0}, v{Vt1}")
    e(f"v_add_u32 v{V_AV}, {4*SLOT + 16384}, v{Vt0}")
    A.barrier()

    def x_reads(j):
        e(f"s_lshl_b32 s{S_T0}, s{S_XK}, 2")
        bump(S_XK, NJ)
        e(f"v_add_u32 v{V_XA}, s{S_T0}, v{Vg}")
        e(f"v_xor_b32 v{V_XA}, v{V_XA}, v{V_XF7}")
        e(f"v_lshlrev_b32 v{V_XA}, 4, v{V_XA}")
        e(f"v_add_u32 v{V_XA}, v{V_XA}, v{V_XB}")
        xr = V_XR + 16 * (j % 2)
        for qc in range(4):
            A.lds_issue(("x", j), f"ds_read_b128 {vr(xr+4*qc,4)}, v{V_XA} offset:{qc*14336}")

    def w_read(j, db):
        u, v = db >> 1, db & 1
        sub = 2 * j + (db >> 2)
        f = V_WF + 4 * db
        base = (sub % 4) * 4096 + 8 * v
        A.lds_issue(("w", j, db), f"ds_read_b64_tr_b16 {vr(f,2)}, v{V_AW+(u&1)} offset:{base}")
        A.lds_issue(("w", j, db), f"ds_read_b64_tr_b16 {vr(f+2,2)}, v{V_AW+(u&1)} offset:{base+512}")

    x_reads(0)
    for db in range(4):
        w_read(0, db)
    for j in range(NJ):
        A.c(f"---- Q-proj step {j}")
        xr = V_XR + 16 * (j % 2)
        for db in range(8):
            A.lds_wait(("w", j, db))
            for qc in range(4):
                e(mfma(V_O + 16 * db + 4 * qc, V_WF + 4 * db, xr + 4 * qc, j == 0))
            if db < 4:
                if db == 0:
                    A.lds_wait(("w", j, 3))
                    A.barrier()
                w_read(j, db + 4)
            elif j + 1 < NJ:
                if db == 4:
                    A.lds_wait(("w", j, 7))
                    A.barrier()
                    x_reads(j + 1)
                w_read(j + 1, db - 4)
    A.stamp(1)
    e(f"v_lshlrev_b32 v{Vt0}, 4, v{L}")
    e(f"v_add_u32 v{Vt1}, s{S_M0}, v{Vt0}")
    e(f"s_mul_i32 s{S_T0}, s{S_HEAD}, {2*WREG}")
    e(f"s_lshl_b32 s{S_T1}, s{S_QB}, 13")
    e(f"s_add_u32 s{S_T0}, s{S_T0}, s{S_T1}")
    e(f"s_add_u32 s{S_T0}, s{S_T0}, {WBASE}")
    e(f"v_add_u32 v{V_X}, s{S_T0}, v{Vt0}")
    e("s_nop 15")
    for qc in range(4):
        for u in range(4):
            q = V_Q + 4 * (4 * qc + u)
            for v in range(2):
                a_ = V_O + 16 * (2 * u + v) + 4 * qc
                e(f"v_cvt_pk_bf16_f32 v{q+2*v}, v{a_}, v{a_+1}")
                e(f"v_cvt_pk_bf16_f32 v{q+2*v+1}, v{a_+2}, v{a_+3}")
            e(f"ds_write_b128 v{Vt1}, {vr(q,4)} offset:{(4*qc+u)*1024}")
    e("s_waitcnt lgkmcnt(0)")
    A.barrier()
    for qc in range(2):
        for ks in range(8):
            e(f"ds_read_b128 {vr(V_Q+32*qc+4*ks,4)}, v{V_X} offset:{(ks>>2)*WREG + (4*qc + (ks&3))*1024}")
    for i in range(128):
        e(f"v_mov_b32 v{V_O+i}, 0")
    for qc in range(2):
        e(f"v_mov_b32 v{V_MC+qc}, 0xff800000")
        e(f"v_mov_b32 v{V_L+qc}, 0")
    cbits = struct.unpack("<I", struct.pack("<f", math.log2(math.e) / 16.0))[0]
    e(f"s_mov_b32 s{S_C}, 0x{cbits:08x}")
    e(f"s_mov_b32 s{S_CNT}, 0")
    e(f"s_mov_b32 s74, {SLOT}")
    e(f"s_mov_b32 s75, {(-4*SLOT) & 0xffffffff}")
    e("s_mov_b32 s38, 4")
    e("s_waitcnt lgkmcnt(0)")
    A.barrier()

    T = [V_T + i for i in range(10)]
    nb0 = A.nbar
    A.label("L_loop")
    A.barrier()
    kseq = [(kb, ks) for ks in range(8) for kb in range(2)]
    PF = OPT["kpf"]

    def rdK(i):
        kb, ks = kseq[i]
        f = V_F + 4 * (i % 4)
        if ks & 3:
            if kb == 0:
                e(f"v_xor_b32 v{V_AT}, {(ks&3)<<6}, v{V_AK}")
            ar = V_AT
        else:
            ar = V_AK
        A.lds_issue(("k", i), f"ds_read_b128 {vr(f,4)}, v{ar} offset:{(ks>>2)*256 + kb*8192}")

    def rdV(db):
        f = V_F + 4 * (db % 4)
        if db & 7:
            e(f"v_xor_b32 v{V_AT+1}, {(db&7)<<5}, v{V_AV}")
            ar = V_AT + 1
        else:
            ar = V_AV
        base = (db >> 3) * 256
        A.lds_issue(("v", db), f"ds_read_b64_tr_b16 {vr(f,2)}, v{ar} offset:{base}")
        A.lds_issue(("v", db), f"ds_read_b64_tr_b16 {vr(f+2,2)}, v{ar} offset:{base+8192}")

    for i in range(PF):
        rdK(i)
    for i in range(16):
        kb, ks = kseq[i]
        A.lds_wait(("k", i))
        for qc in range(2):
            e(mfma(V_S + 8 * qc + 4 * kb, V_F + 4 * (i % 4), V_Q + 32 * qc + 4 * ks, ks == 0))
        if i + PF < 16:
            rdK(i + PF)
        else:
            rdV(i + PF - 16)
    e("s_add_u32 s38, s38, 1")
    e("s_cmp_eq_u32 s38, 5")
    e("s_cselect_b32 s39, s75, s74")
    e("s_cselect_b32 s38, 0, s38")
    e(f"v_add_u32 v{V_AK}, s39, v{V_AK}")
    e("s_nop 4")
    for qc in range(2):
        S = V_S + 8 * qc
        a, b = T[2 * qc], T[2 * qc + 1]
        e(f"v_max3_f32 v{a}, v{S}, v{S+1}, v{S+2}")
        e(f"v_max3_f32 v{b}, v{S+3}, v{S+4}, v{S+5}")
        e(f"v_max3_f32 v{a}, v{a}, v{S+6}, v{S+7}")
        e(f"v_max_f32 v{a}, v{a}, v{b}")
        e(f"v_mov_b32 v{b}, v{a}")
    e("s_nop 0")
    for qc in range(2):
        e(f"v_permlane16_swap_b32 v{T[2*qc]}, v{T[2*qc+1]}")
    e("s_nop 0")
    for qc in range(2):
        e(f"v_max_f32 v{T[2*qc]}, v{T[2*qc]}, v{T[2*qc+1]}")
        e(f"v_mov_b32 v{T[2*qc+1]}, v{T[2*qc]}")
    e("s_nop 1")
    for qc in range(2):
        e(f"v_permlane32_swap_b32 v{T[2*qc]}, v{T[2*qc+1]}")
    e("s_nop 0")
    for qc in range(2):
        e(f"v_max_f32 v{T[2*qc]}, v{T[2*qc]}, v{T[2*qc+1]}")
        e(f"v_mul_f32 v{V_TM+qc}, s{S_C}, v{T[2*qc]}")
        e(f"v_sub_f32 v{T[2*qc+1]}, v{V_TM+qc}, v{V_MC+qc}")
    e(f"v_max_f32 v{T[0]}, v{T[1]}, v{T[3]}")
    e(f"v_cmp_lt_f32 vcc, 0x41000000, v{T[0]}")
    e("s_nop 1")
    e("s_cbranch_vccnz L_rescale")
    A.label("L_rescale_done")
    for qc in range(2):
        for i in range(8):
            e(f"v_fma_f32 v{V_S+8*qc+i}, v{V_S+8*qc+i}, s{S_C}, -v{V_MC+qc}")
    for i in range(16):
        e(f"v_exp_f32 v{V_S+i}, v{V_S+i}")
    e("s_nop 0")
    for i in range(8):
        e(f"v_cvt_pk_bf16_f32 v{V_P+i}, v{V_S+2*i}, v{V_S+2*i+1}")
    sums = []
    for qc in range(2):
        S = V_S + 8 * qc
        a, b = T[2 * qc], T[2 * qc + 1]
        sums += [f"v_add_f32 v{a}, v{S}, v{S+1}", f"v_add_f32 v{b}, v{S+2}, v{S+3}",
                 f"v_add_f32 v{a}, v{a}, v{S+4}", f"v_add_f32 v{b}, v{b}, v{S+5}",
                 f"v_add_f32 v{a}, v{a}, v{S+6}", f"v_add_f32 v{b}, v{b}, v{S+7}",
                 f"v_add_f32 v{a}, v{a}, v{b}", f"v_add_f32 v{V_L+qc}, v{V_L+qc}, v{a}"]
    e("s_nop 1")
    for db in range(16):
        A.lds_wait(("v", db))
        for qc in range(2):
            e(mfma(V_O + 8 * db + 4 * qc, V_F + 4 * (db % 4), V_P + 4 * qc))
        if db + PF < 16:
            rdV(db + PF)
        if sums:
            e(sums.pop(0))
    assert not A.lds and not sums
    e(f"v_add_u32 v{V_AV}, s39, v{V_AV}")
    e(f"s_add_u32 s{S_CNT}, s{S_CNT}, 1")
    e(f"s_cmp_lt_u32 s{S_CNT}, 32")
    e("s_cbranch_scc1 L_loop")
    A.nbar = nb0 + 32

    A.stamp(2)
    for qc in range(2):
        e(f"v_mov_b32 v{T[qc]}, v{V_L+qc}")
    e("s_nop 1")
    for qc in range(2):
        e(f"v_permlane16_swap_b32 v{V_L+qc}, v{T[qc]}")
    e("s_nop 0")
    for qc in range(2):
        e(f"v_add_f32 v{V_L+qc}, v{V_L+qc}, v{T[qc]}")
        e(f"v_mov_b32 v{T[qc]}, v{V_L+qc}")
    e("s_nop 1")
    for qc in range(2):
        e(f"v_permlane32_swap_b32 v{V_L+qc}, v{T[qc]}")
    e("s_nop 0")
    for qc in range(2):
        e(f"v_add_f32 v{V_L+qc}, v{V_L+qc}, v{T[qc]}")
        e(f"v_rcp_f32 v{V_TM+qc}, v{V_L+qc}")
    e(f"s_lshl_b32 s{S_T1}, s{S_QB}, 14")
    e(f"s_add_u32 s{S_T1}, s{S_T1}, {3*SLOT}")
    e(f"s_add_u32 s{S_T0}, s{S_T1}, 32768")
    e(f"s_cmp_eq_u32 s{S_HEAD}, 0")
    e(f"s_cselect_b32 s{S_T2}, s{S_T1}, s{S_T0}")
    V_AB, V_ABC, V_AOWN = V_AK, V_AV, V_AT
    V_AWO = V_S + 8
    e(f"v_lshlrev_b32 v{T[4]}, 4, v{L}")
    e(f"v_add_u32 v{V_AB}, s{S_T1}, v{T[4]}")
    e(f"v_add_u32 v{V_AOWN}, s{S_T2}, v{T[4]}")
    e("s_nop 7")
    for u in range(8):
        for qc in range(2):
            q = V_Q + 4 * (2 * u + qc)
            for v in range(2):
                a_ = V_O + 8 * (2 * u + v) + 4 * qc
                for r in range(4):
                    e(f"v_mul_f32 v{a_+r}, v{a_+r}, v{V_TM+qc}")
                e(f"v_cvt_pk_bf16_f32 v{q+2*v}, v{a_}, v{a_+1}")
                e(f"v_cvt_pk_bf16_f32 v{q+2*v+1}, v{a_+2}, v{a_+3}")
            e(f"ds_write_b128 v{V_AOWN}, {vr(q,4)} offset:{(2*u+qc)*1024}")
    lane_fields()
    e(f"v_lshlrev_b32 v{Vt0}, 2, v{Vg}")
    e(f"v_add_u32 v{Vt0}, v{Vt0}, v{Vr}")
    e(f"v_bfe_u32 v{T[6]}, v{Vt0}, 1, 2")
    e(f"v_mul_u32_u24 v{Vt0}, 896, v{Vt0}")
    e(f"v_lshlrev_b32 v{Vt1}, 3, v{Vcc}")
    e(f"v_add_u32 v{Vt0}, v{Vt0}, v{Vt1}")
    e(f"s_mul_i32 s{S_T0}, s{S_HEAD}, 448")
    e(f"s_add_u32 s{S_T0}, s{S_T0}, {RING[0]*SLOT}")
    e(f"v_add_u32 v{Vt0}, s{S_T0}, v{Vt0}")
    e(f"s_lshl_b32 s{S_T1}, s{S_HEAD}, 1")
    for e4 in range(4):
        e(f"s_add_u32 s{S_T2}, s{S_T1}, {e4}")
        e(f"s_and_b32 s{S_T2}, s{S_T2}, 3")
        e(f"v_xor_b32 v{Vt1}, s{S_T2}, v{T[6]}")
        e(f"v_subrev_u32 v{Vt1}, s{S_T2}, v{Vt1}")
        e(f"v_lshlrev_b32 v{Vt1}, 5, v{Vt1}")
        e(f"v_add_u32 v{V_AWO+e4}, v{Vt0}, v{Vt1}")
    e("s_waitcnt lgkmcnt(0)")
    A.stamp(3)

    V_ACC = 0
    V_BF = V_S
    V_AF = V_Q
    NAF = 6
    S_OK = S_R0
    e(f"s_mov_b32 s{S_OK}, " + (f"s{S_B}" if OPT["rot"] else "0"))
    for k in range(16):
        A.c(f"---- O-proj stage {k}")
        e(f"s_lshr_b32 s{S_T0}, s{S_OK}, 3")
        e(f"s_lshl_b32 s{S_T0}, s{S_T0}, 15")
        e(f"s_and_b32 s{S_T1}, s{S_OK}, 7")
        e(f"s_lshl_b32 s{S_T1}, s{S_T1}, 11")
        e(f"s_add_u32 s{S_T0}, s{S_T0}, s{S_T1}")
        e(f"v_add_u32 v{V_ABC}, s{S_T0}, v{V_AB}")
        e(f"s_add_u32 s{S_OK}, s{S_OK}, 1")
        e(f"s_and_b32 s{S_OK}, s{S_OK}, 15")
        A.barrier()
        for qc in range(2):
            A.lds_issue(("b", qc), f"ds_read_b128 {vr(V_BF+4*qc,4)}, v{V_ABC} offset:{qc*1024}")

        def rdA(nb):
            f = V_AF + 4 * (nb % 8)
            A.lds_issue(("a", nb), f"ds_read_b64_tr_b16 {vr(f,2)}, v{V_AWO+(nb&3)} offset:{nb*32}")
            A.lds_issue(("a", nb), f"ds_read_b64_tr_b16 {vr(f+2,2)}, v{V_AWO+(nb&3)} offset:{nb*32+16*896}")
        for nb in range(NAF):
            rdA(nb)
        for nb in range(14):
            A.lds_wait(("a", nb))
            for qc in range(2):
                e(mfma(V_ACC + 8 * nb + 4 * qc, V_AF + 4 * (nb % 8), V_BF + 4 * qc, k == 0))
            if nb + NAF < 14:
                rdA(nb + NAF)
        assert not A.lds
        if k < 15:
            d_ = (RING[(k + 1) % 3] - RING[k % 3]) * SLOT
            for e4 in range(4):
                e(f"v_add_u32 v{V_AWO+e4}, {d_ & 0xffffffff}, v{V_AWO+e4}")
    A.stamp(4)
    A.c("---- store bf16 partials: row (v, qc): [tile 2v | tile 2v+1]")
    e(f"v_lshlrev_b32 v{T[0]}, 4, v{L}")
    e(f"s_mul_i32 s{S_SOFF}, s{S_WID}, 14336")
    e("s_nop 15")
    for v in range(7):
        for qc in range(2):
            pk = V_Q + 8 * v + 4 * qc
            for hh in range(2):
                a_ = V_ACC + 8 * (2 * v + hh) + 4 * qc
                e(f"v_cvt_pk_bf16_f32 v{pk+2*hh}, v{a_}, v{a_+1}")
                e(f"v_cvt_pk_bf16_f32 v{pk+2*hh+1}, v{a_+2}, v{a_+3}")
            e(f"buffer_store_dwordx4 {vr(pk,4)}, v{T[0]}, {sr(SRD2,4)}, s{S_SOFF} offen offset:{(v&1)*2048 + qc*1024}{PSC}")
        if v & 1:
            e(f"s_add_u32 s{S_SOFF}, s{S_SOFF}, 4096")
    if OPT["stamp"]:
        e("s_waitcnt vmcnt(0)")
    A.stamp(5)
    A.stamp_flush(6)
    e("s_endpgm")
    nbar_cons = A.nbar

    A.label("L_rescale")
    e("s_nop 7")
    for qc in range(2):
        e(f"v_max_f32 v{T[0]}, v{V_TM+qc}, v{V_MC+qc}")
        e(f"v_sub_f32 v{T[1]}, v{V_MC+qc}, v{T[0]}")
        e(f"v_exp_f32 v{T[1]}, v{T[1]}")
        e(f"v_mov_b32 v{V_MC+qc}, v{T[0]}")
        e("s_nop 0")
        e(f"v_mul_f32 v{V_L+qc}, v{V_L+qc}, v{T[1]}")
        for db in range(16):
            for r in range(4):
                a_ = V_O + 8 * db + 4 * qc + r
                e(f"v_mul_f32 v{a_}, v{a_}, v{T[1]}")
    e("s_branch L_rescale_done")

    A.label("L_producer")
    A.nbar = 0
    A.vm = []
    A.lds = []
    S_P = 58
    e(f"s_sub_u32 s{S_P}, s{S_WID}, 4")
    e(f"s_lshl_b32 s{S_T0}, s{S_HKV}, 10")
    e(f"s_add_u32 s12, s{S_WQ}, s{S_T0}")
    e(f"s_addc_u32 s13, s{S_WQ+1}, 0")
    e(f"s_sub_u32 s14, {448*8192}, s{S_T0}")
    e("s_mov_b32 s15, 0x00020000")
    e(f"v_lshrrev_b32 v2, 3, v{L}")
    e(f"v_bfe_u32 v3, v{L}, 4, 1")
    e("v_lshlrev_b32 v3, 2, v3")
    e(f"v_and_b32 v4, 7, v{L}")
    e("v_xor_b32 v4, v4, v3")
    e("v_lshlrev_b32 v4, 4, v4")
    e("v_lshlrev_b32 v2, 13, v2")
    e("v_add_u32 v2, v2, v4")
    e(f"s_lshl_b32 s{S_T0}, s{S_P}, 8")
    e(f"v_add_u32 v26, s{S_T0}, v2")
    e(f"s_mul_i32 s16, s{S_P}, {WREG}")
    e(f"s_add_u32 s16, s16, {WBASE}")
    e(f"s_mul_i32 s17, s{S_B}, 7")
    e("s_lshr_b32 s17, s17, 3")
    if not OPT["rot"]:
        e("s_mov_b32 s17, 0")

    def w_issue(sub):
        e(f"s_lshl_b32 s{S_SOFF}, s17, 18")
        if sub & 1:
            e(f"s_add_u32 s{S_SOFF}, s{S_SOFF}, 128")
            bump(17, NJ)
        e(f"s_add_u32 m0, s16, {(sub%4)*4096}")
        e("s_nop 0")
        for i in range(4):
            A.vm_issue(("w", sub), f"buffer_load_dwordx4 v26, s[12:15], s{S_SOFF} offen offset:{i*1024} nt lds")
            if i < 3:
                e(f"s_add_u32 s{S_SOFF}, s{S_SOFF}, {65536-1024}")

    w_issue(0)
    e(f"s_mul_i32 s{S_T0}, s{S_B}, 57344")
    e(f"s_add_u32 s8, s{S_X}, s{S_T0}")
    e(f"s_addc_u32 s9, s{S_X+1}, 0")
    e("s_mov_b32 s10, 57344")
    e("s_mov_b32 s11, 0x00020000")
    e(f"s_mul_i32 s{S_T0}, s{S_P}, 896")
    e(f"s_mov_b32 s{S_T1}, {(1<<32)//56 + 1}")
    e(f"s_mul_i32 s{S_T2}, s{S_P}, 14336")
    for i in range(14):
        r0 = 32 + 4 * i
        e(f"v_add_u32 v{r0}, {64*i}, v{L}")
        e(f"v_add_u32 v{r0}, s{S_T0}, v{r0}")
        e(f"v_mul_hi_u32 v{r0+1}, v{r0}, s{S_T1}")
        e(f"v_mul_u32_u24 v{r0+2}, 56, v{r0+1}")
        e(f"v_sub_u32 v{r0+2}, v{r0}, v{r0+2}")
        e(f"v_bfe_u32 v{r0+3}, v{r0+1}, 1, 3")
        e(f"v_xor_b32 v{r0+2}, v{r0+2}, v{r0+3}")
        e(f"v_lshlrev_b32 v{r0+2}, 4, v{r0+2}")
        e(f"v_mul_u32_u24 v{r0+1}, 896, v{r0+1}")
        e(f"v_add_u32 v{r0}, v{r0+1}, v{r0+2}")
        e(f"s_add_u32 m0, s{S_T2}, {i*1024}")
        e("s_nop 0")
        A.vm_issue(("xd", 0), f"buffer_load_dwordx4 v{r0}, s[8:11], 0 offen nt lds")
    for sub in (1, 2, 3):
        w_issue(sub)
    e(f"s_lshl_b32 s{S_T0}, s{S_B}, 22")
    e(f"s_lshl_b32 s{S_T1}, s{S_HKV}, 19")
    e(f"s_add_u32 s{S_T0}, s{S_T0}, s{S_T1}")
    e(f"s_add_u32 s{SRD0}, s{S_K}, s{S_T0}")
    e(f"s_addc_u32 s{SRD0+1}, s{S_K+1}, 0")
    e(f"s_mov_b32 s{SRD0+2}, 524288")
    e(f"s_mov_b32 s{SRD0+3}, 0x00020000")
    e(f"s_add_u32 s{SRD1}, s{S_V}, s{S_T0}")
    e(f"s_addc_u32 s{SRD1+1}, s{S_V+1}, 0")
    e(f"s_mov_b32 s{SRD1+2}, 524288")
    e(f"s_mov_b32 s{SRD1+3}, 0x00020000")
    e(f"s_mul_i32 s{S_T0}, s{S_HKV}, 458752")
    e(f"s_add_u32 s{SRD2}, s{S_WO}, s{S_T0}")
    e(f"s_addc_u32 s{SRD2+1}, s{S_WO+1}, 0")
    e(f"s_mov_b32 s{SRD2+2}, 458752")
    e(f"s_mov_b32 s{SRD2+3}, 0x00020000")
    PK, PV_, PW = 10, 14, 18
    a, b2, c2, d2 = 2, 3, 4, 5
    e(f"v_lshrrev_b32 v{a}, 5, v{L}")
    e(f"v_and_b32 v{b2}, 31, v{L}")
    e(f"s_lshl_b32 s{S_T0}, s{S_P}, 3")
    e(f"v_add_u32 v{c2}, s{S_T0}, v{a}")
    e(f"v_lshlrev_b32 v{d2}, 9, v{c2}")
    for j in range(4):
        e(f"v_add_u32 v6, {2*j}, v{c2}")
        e("v_and_b32 v7, 15, v6")
        e(f"v_xor_b32 v7, v7, v{b2}")
        e("v_lshlrev_b32 v7, 4, v7")
        e(f"v_add_u32 v{PK+j}, v{d2}, v7")
        e("v_and_b32 v7, 7, v6")
        e("v_lshlrev_b32 v7, 1, v7")
        e(f"v_xor_b32 v7, v7, v{b2}")
        e("v_lshlrev_b32 v7, 4, v7")
        e(f"v_add_u32 v{PV_+j}, v{d2}, v7")
    e(f"s_mul_i32 s{S_T0}, s{S_P}, 448")
    e(f"s_mov_b32 s{S_T1}, {(1<<32)//56 + 1}")
    for j in range(7):
        e(f"v_add_u32 v6, {64*j}, v{L}")
        e(f"v_add_u32 v6, s{S_T0}, v6")
        e(f"v_mul_hi_u32 v7, v6, s{S_T1}")
        e("v_mul_u32_u24 v8, 56, v7")
        e("v_sub_u32 v8, v6, v8")
        e("v_bfe_u32 v9, v7, 1, 2")
        e("v_lshlrev_b32 v9, 1, v9")
        e("v_xor_b32 v8, v8, v9")
        e("v_lshlrev_b32 v8, 4, v8")
        e("v_mul_u32_u24 v7, 896, v7")
        e(f"v_add_u32 v{PW+j}, v7, v8")
    e(f"s_lshl_b32 s{S_M0}, s{S_P}, 12")
    e(f"s_mul_i32 s{S_T3}, s{S_P}, 7168")
    e(f"s_mov_b32 s{S_R0}, " + (f"s{S_B}" if OPT["rot"] else "0"))

    def iv_issue(i):
        if i <= 31:
            sl = ((i + 4) % 5) * SLOT
            e(f"s_mov_b32 s{S_SOFF}, {i*16384}")
            e(f"s_add_u32 m0, s{S_M0}, {sl}")
            e("s_nop 0")
            for j in range(4):
                A.vm_issue(("iv", i), f"buffer_load_dwordx4 v{PK+j}, {sr(SRD0,4)}, s{S_SOFF} offen offset:{j*1024} nt lds")
            e(f"s_add_u32 m0, s{S_M0}, {sl+16384}")
            e("s_nop 0")
            for j in range(4):
                A.vm_issue(("iv", i), f"buffer_load_dwordx4 v{PV_+j}, {sr(SRD1,4)}, s{S_SOFF} offen offset:{j*1024} nt lds")
        else:
            k = i - 32
            sl = RING[k % 3] * SLOT
            e(f"s_mul_i32 s{S_SOFF}, s{S_R0}, 28672")
            e(f"s_add_u32 s{S_R0}, s{S_R0}, 1")
            e(f"s_and_b32 s{S_R0}, s{S_R0}, 15")
            for j in range(7):
                e(f"s_add_u32 m0, s{S_T3}, {sl + j*1024}")
                e("s_nop 0")
                A.vm_issue(("iv", i), f"buffer_load_dwordx4 v{PW+j}, {sr(SRD2,4)}, s{S_SOFF} offen lds")

    A.vm_wait(("xd", 0))
    A.barrier()
    A.stamp(1)
    for sub in range(1, 2 * NJ):
        A.vm_wait(("w", sub))
        A.barrier()
        if sub + 3 < 2 * NJ:
            w_issue(sub + 3)
        if sub == OPT["early"]:
            iv_issue(0)
    A.barrier()
    iv_issue(1)
    iv_issue(2)
    A.barrier()
    for i in (3, 4):
        iv_issue(i)
    A.stamp(2)
    for i in range(48):
        A.vm_wait(("iv", i))
        A.barrier()
        if i == 32:
            A.stamp(3)
        if 1 <= i and i + 4 <= 31:
            iv_issue(i + 4)
        elif i == 28:
            iv_issue(32)
        elif i == 29:
            iv_issue(33)
        elif i >= 32 and i + 2 < 48:
            iv_issue(i + 2)
    assert not A.vm
    assert A.nbar == nbar_cons, (A.nbar, nbar_cons)
    for i in range(4, 6):
        A.stamp(i)
    A.stamp_flush(6)
    A.label("L_exit")
    e("s_endpgm")
    return A.lines


def gen_reduce():
    A = Asm()
    e = A.e
    A.label(KRED)
    e("s_cmp_ge_u32 s2, 448")
    e("s_cbranch_scc1 R_exit")
    e("s_load_dwordx2 s[4:5], s[0:1], 80")
    e("s_load_dwordx2 s[6:7], s[0:1], 96")
    e(f"s_mov_b32 s16, {(1<<32)//14 + 1}")
    e("s_mul_hi_u32 s17, s2, s16")
    e("s_mul_i32 s18, s17, 14")
    e("s_sub_u32 s18, s2, s18")
    e("v_lshrrev_b32 v1, 6, v0")
    e("s_nop 0")
    e("v_readfirstlane_b32 s19, v1")
    e("s_lshl_b32 s18, s18, 2")
    e("s_add_u32 s18, s18, s19")
    e("s_mul_hi_u32 s19, s18, s16")
    e("s_mul_i32 s20, s19, 14")
    e("s_sub_u32 s20, s18, s20")
    e("s_waitcnt lgkmcnt(0)")
    e(f"s_mul_i32 s21, s17, {8*SLAB}")
    e("s_lshl_b32 s22, s18, 10")
    e("s_add_u32 s21, s21, s22")
    e("s_add_u32 s8, s6, s21")
    e("s_addc_u32 s9, s7, 0")
    e(f"s_mov_b32 s10, {7*SLAB+1024}")
    e("s_mov_b32 s11, 0x00020000")
    e("s_mov_b32 s12, s4")
    e("s_mov_b32 s13, s5")
    e("s_mov_b32 s14, 1835008")
    e("s_mov_b32 s15, 0x00020000")
    e("v_and_b32 v1, 63, v0")
    e("v_lshlrev_b32 v2, 4, v1")
    for h in range(8):
        e(f"s_mov_b32 s23, {h*SLAB}")
        e(f"buffer_load_dwordx4 {vr(8+4*h,4)}, v2, s[8:11], s23 offen")
    e("s_and_b32 s24, s17, 15")
    e("s_lshr_b32 s25, s17, 4")
    e("s_lshl_b32 s24, s24, 6")
    e("s_and_b32 s26, s19, 1")
    e("s_lshl_b32 s26, s26, 5")
    e("s_add_u32 s24, s24, s26")
    e("s_and_b32 s26, s20, 1")
    e("s_lshl_b32 s26, s26, 4")
    e("s_add_u32 s24, s24, s26")
    e("s_mul_i32 s24, s24, 896")
    e("s_mul_i32 s25, s25, 448")
    e("s_add_u32 s24, s24, s25")
    e("s_lshr_b32 s26, s19, 1")
    e("s_mul_i32 s26, s26, 224")
    e("s_add_u32 s24, s24, s26")
    e("s_lshr_b32 s26, s20, 1")
    e("s_lshl_b32 s26, s26, 5")
    e("s_add_u32 s24, s24, s26")
    e("s_lshl_b32 s24, s24, 1")
    e("v_and_b32 v3, 15, v1")
    e("v_mul_u32_u24 v3, 1792, v3")
    e("v_lshrrev_b32 v4, 4, v1")
    e("v_lshlrev_b32 v4, 3, v4")
    e("v_add_u32 v3, v3, v4")
    for h8 in range(8):
        e(f"s_waitcnt vmcnt({7-h8})")
        for d in range(4):
            src = 8 + 4 * h8 + d
            if h8 == 0:
                e(f"v_lshlrev_b32 v{48+2*d}, 16, v{src}")
                e(f"v_and_b32 v{49+2*d}, 0xffff0000, v{src}")
            else:
                e(f"v_lshlrev_b32 v5, 16, v{src}")
                e(f"v_and_b32 v6, 0xffff0000, v{src}")
                e(f"v_add_f32 v{48+2*d}, v{48+2*d}, v5")
                e(f"v_add_f32 v{49+2*d}, v{49+2*d}, v6")
    for d in range(4):
        e(f"v_cvt_pk_bf16_f32 v{56+d}, v{48+2*d}, v{49+2*d}")
    e("buffer_store_dwordx2 v[56:57], v3, s[12:15], s24 offen")
    e("buffer_store_dwordx2 v[58:59], v3, s[12:15], s24 offen offset:32")
    A.label("R_exit")
    e("s_endpgm")
    return A.lines


def kd(name, vgpr, sgpr):
    acc = (vgpr + 3) // 4 * 4
    return f""".amdhsa_kernel {name}
  .amdhsa_next_free_vgpr {vgpr}
  .amdhsa_next_free_sgpr {sgpr}
  .amdhsa_accum_offset {acc}
  .amdhsa_group_segment_fixed_size 0
  .amdhsa_kernarg_size 104
  .amdhsa_user_sgpr_count 2
  .amdhsa_user_sgpr_kernarg_segment_ptr 1
  .amdhsa_system_sgpr_workgroup_id_x 1
.end_amdhsa_kernel
"""


def main():
    out = []
    out.append(f"; @launch kernel={KMAIN} grid=(256,1,1) block=(512,1,1) lds=163840")
    out.append(f"; @launch kernel={KRED} grid=(448,1,1) block=(256,1,1) lds=0")
    out.append('.amdgcn_target "amdgcn-amd-amdhsa--gfx950"')
    out.append(".text")
    for name, lines in ((KMAIN, gen_main()), (KRED, gen_reduce())):
        out.append(f".globl {name}")
        out.append(".p2align 8")
        out.append(f".type {name},@function")
        out += lines
    out.append('.section .rodata,"a"')
    out.append(".p2align 6")
    out.append(kd(KMAIN, 256, 102))
    out.append(".p2align 6")
    out.append(kd(KRED, 64, 32))
    open(sys.argv[1], "w").write("\n".join(out) + "\n")


main()
```
